```python
import torch

def _softmax(x, axis=-1):
    return torch.softmax(x, dim=axis)
def _gelu(x):
    return torch.nn.functional.gelu(x, approximate="tanh")
def _silu(x):
    return torch.nn.functional.silu(x)
def _sigmoid(x):
    return torch.sigmoid(x)
def _layernorm(x, axis=-1, eps=1e-5):
    m = x.mean(dim=axis, keepdim=True)
    v = x.var(dim=axis, keepdim=True, unbiased=False)
    return (x - m) / torch.sqrt(v + eps)
def _scatter_add(tgt, idx, src, axis=0):
    return tgt.clone().index_add_(axis, idx, src)
def _segment_sum(src, seg, n):
    out = torch.zeros((n,) + src.shape[1:], dtype=src.dtype)
    return out.index_add_(0, seg, src)
def _pad(x, pw):
    flat = tuple(v for pair in reversed(pw) for v in pair)
    return torch.nn.functional.pad(x, flat)

kernel_name = 'gated_mix__spectral_fnet__moe_arch_mod__prompt'

def setup_inputs():

    _w = (lambda a: (lambda t: t.to(torch.bfloat16) if t.is_floating_point() else t)(torch.as_tensor(a)))
    def _A_setup():
        B, S, D = 1, 2048, 512
        ns = torch.arange(S)[:, None] * torch.arange(S)[None, :]
        nd = torch.arange(D)[:, None] * torch.arange(D)[None, :]
        Ws_re = torch.cos(-2.0 * torch.pi * ns / S).to(float)
        Ws_im = torch.sin(-2.0 * torch.pi * ns / S).to(float)
        Wd_re = torch.cos(-2.0 * torch.pi * nd / D).to(float)
        Wd_im = torch.sin(-2.0 * torch.pi * nd / D).to(float)
        return {
            "x": _w((lambda *s: torch.randn(*s, dtype=torch.bfloat16) * 0.05)(B, S, D)),
            "dft_seq_re": _w(Ws_re),
            "dft_seq_im": _w(Ws_im),
            "dft_hid_re": _w(Wd_re),
            "dft_hid_im": _w(Wd_im),
        }
    _A_in = _A_setup()

    def _B_setup():
        B, S, D, F, C = 1, 2048, 512, 1792, 1
        return {
            "x": _w((lambda *s: torch.randn(*s, dtype=torch.bfloat16) * 0.05)(B, S, D)),
            "w_r": _w((lambda *s: torch.randn(*s, dtype=torch.bfloat16) * 1.6)(D)),
            "w_gate": _w((lambda *s: torch.randn(*s, dtype=torch.bfloat16) * 1.6)(D, F)),
            "w_up": _w((lambda *s: torch.randn(*s, dtype=torch.bfloat16) * 1.6)(D, F)),
            "w_down": _w((lambda *s: torch.randn(*s, dtype=torch.bfloat16) * 1.6)(F, D)),
        }
    _B_in = _B_setup()

    return {
        "A_x": _A_in["x"],
        "A_dft_seq_re": _A_in["dft_seq_re"],
        "A_dft_seq_im": _A_in["dft_seq_im"],
        "A_dft_hid_re": _A_in["dft_hid_re"],
        "A_dft_hid_im": _A_in["dft_hid_im"],
        "B_x": _B_in["x"],
        "B_w_r": _B_in["w_r"],
        "B_w_gate": _B_in["w_gate"],
        "B_w_up": _B_in["w_up"],
        "B_w_down": _B_in["w_down"],
        "gate_w": _w((lambda *s: torch.randn(*s, dtype=torch.bfloat16) * 0.05)(512) * 16.0),
    }

def reference(A_x, A_dft_seq_re, A_dft_seq_im, A_dft_hid_re, A_dft_hid_im, B_x, B_w_r, B_w_gate, B_w_up, B_w_down, gate_w):
    def _A_ref(x, dft_seq_re, dft_seq_im, dft_hid_re, dft_hid_im):
        a = torch.einsum("bsd,ed->bse", x, dft_hid_re)
        b = torch.einsum("bsd,ed->bse", x, dft_hid_im)
        y = torch.einsum("ts,bse->bte", dft_seq_re, a) - torch.einsum("ts,bse->bte", dft_seq_im, b)
        return y

    def _B_ref(x, w_r, w_gate, w_up, w_down):
        B, S, D = x.shape
        C = 1
        r = x @ w_r
        idx = torch.argsort(-r, axis=-1)[:, :C]
        idx_e = (lambda x, n, axis: torch.repeat_interleave(x, n, dim=axis))(idx.reshape(B, C, 1), D, axis=2)
        x_sel = (lambda x, i, axis: torch.take_along_dim(x, i, dim=axis))(x, idx_e, axis=1)
        g = _silu(x_sel @ w_gate)
        u = x_sel @ w_up
        y = (g * u) @ w_down
        r_sel = _sigmoid((lambda x, i, axis: torch.take_along_dim(x, i, dim=axis))(r, idx, axis=1))
        y = y * r_sel.reshape(B, C, 1)
        b_off = (torch.arange(B) * S).reshape(B, 1)
        flat_idx = (idx + b_off).reshape(B * C)
        zero = (x * 0.0).reshape(B * S, D)
        upd = _scatter_add(zero, flat_idx, y.reshape(B * C, D), axis=0)
        return x + upd.reshape(B, S, D)

    x = A_x
    g = _sigmoid((x * gate_w).sum(-1, keepdims=True))
    a = _A_ref(x, A_dft_seq_re, A_dft_seq_im, A_dft_hid_re, A_dft_hid_im)
    b = _B_ref(x, B_w_r, B_w_gate, B_w_up, B_w_down)
    return g * a + (1 - g) * b
```

```python
NAME = "gated_mix__spectral_fnet__moe_arch_mod__prompt"
KA_X, KA_CR, KA_CI, KA_DR, KA_DI, KA_BX, KA_WR, KA_WG, KA_WU, KA_WD, KA_GW, KA_OUT, KA_DBG, KA_WS = [8 * i for i in range(14)]

HEADER = """; Kernarg layout for this problem (112 bytes, ptrs only, base s[0:1]):
"""


class Asm:
    def __init__(self):
        self.lines = []
        self.uid = 0

    def __call__(self, s):
        for l in s.strip("\n").split("\n"):
            l = l.strip()
            if l:
                self.lines.append("    " + l)

    def label(self, l):
        self.lines.append(l + ":")

    def raw(self, s):
        self.lines.append(s)

    def c(self, s):
        self.lines.append("    ; " + s)

    def L(self, p):
        self.uid += 1
        return f"L_{p}{self.uid}"

    def nop(self, n):
        while n > 0:
            k = min(n, 16)
            self("s_nop %d" % (k - 1))
            n -= k

    def srd(self, d, base, nbytes):
        self(f"s_mov_b32 s{d}, s{base}")
        self(f"s_mov_b32 s{d+1}, s{base+1}")
        self(f"s_mov_b32 s{d+2}, {nbytes:#x}")
        self(f"s_mov_b32 s{d+3}, 0x20000")

    def text(self):
        return "\n".join(self.lines) + "\n"


def R4(r):
    return f"s[{r}:{r+3}]"


def V(r, n):
    return f"v[{r}:{r+n-1}]" if n > 1 else f"v{r}"


def finish(a, path, grid, block, lds, vgpr, sgpr=96, accum=None):
    name = NAME + "_kernel"
    accum = accum or ((vgpr + 3) // 4) * 4
    head = HEADER + f"; @launch grid=({grid},1,1) block=({block},1,1) lds={lds}\n"
    head += '.amdgcn_target "amdgcn-amd-amdhsa--gfx950"\n.text\n'
    head += f".globl {name}\n.p2align 8\n.type {name},@function\n{name}:\n"
    tail = f""".section .rodata,"a"
.p2align 6
.amdhsa_kernel {name}
  .amdhsa_next_free_vgpr {vgpr}
  .amdhsa_next_free_sgpr {sgpr}
  .amdhsa_accum_offset {accum}
  .amdhsa_group_segment_fixed_size 0
  .amdhsa_kernarg_size 112
  .amdhsa_user_sgpr_count 2
  .amdhsa_user_sgpr_kernarg_segment_ptr 1
  .amdhsa_system_sgpr_workgroup_id_x 1
.end_amdhsa_kernel
"""
    open(path, "w").write(head + a.text() + tail)
```

```python
import re

TRANS = ("v_exp_f32", "v_log_f32", "v_rcp_f32", "v_rsq_f32", "v_sqrt_f32", "v_sin_f32", "v_cos_f32")


def regs(tok):
    tok = tok.strip()
    tok = re.sub(r"^-|^abs\(|\)$|^\|\|$", "", tok)
    tok = tok.strip("|")
    m = re.fullmatch(r"([vsa])(\d+)", tok)
    if m:
        return {(m.group(1), int(m.group(2)))}
    m = re.fullmatch(r"([vsa])\[(\d+):(\d+)\]", tok)
    if m:
        return {(m.group(1), i) for i in range(int(m.group(2)), int(m.group(3)) + 1)}
    if tok == "vcc":
        return {("s", "vcc")}
    if tok in ("vcc_lo", "vcc_hi"):
        return {("s", "vcc")}
    if tok == "m0":
        return {("s", "m0")}
    if tok in ("exec", "exec_lo", "exec_hi"):
        return {("s", "exec")}
    return set()


class I:
    def __init__(self, text):
        self.text = text
        t = text.split(";")[0].strip()
        parts = t.split(None, 1)
        self.op = parts[0]
        rest = parts[1] if len(parts) > 1 else ""
        ops = [x.strip() for x in rest.split(",")] if rest else []
        mods = ""
        if ops:
            last = ops[-1].split(None, 1)
            ops[-1] = last[0]
            mods = last[1] if len(last) > 1 else ""
        clean = []
        for k, x in enumerate(ops):
            w = x.split(None, 1)
            clean.append(w[0])
            if len(w) > 1:
                mods = " ".join([w[1]] + ops[k + 1:]) + " " + mods
                break
        self.ops = clean
        self.mods = mods
        op = self.op
        self.mfma = op.startswith("v_mfma")
        self.valu = op.startswith("v_") and not self.mfma
        self.trans = any(op.startswith(x) for x in TRANS)
        self.vmem = op.startswith("buffer_") or op.startswith("global_")
        self.ds = op.startswith("ds_")
        self.salu = op.startswith("s_")
        self.dpp = "_dpp" in op or "row_" in mods or "quad_perm" in mods
        self.perml = op.startswith("v_permlane")
        self.rdl = op.startswith("v_readlane") or op.startswith("v_readfirstlane")
        self.w = set(); self.r = set()
        R = [regs(x) for x in self.ops]
        if self.mfma:
            self.w = R[0]; self.A = R[1]; self.B = R[2]; self.C = R[3] if len(R) > 3 else set()
            self.r = self.A | self.B | self.C
            self.passes = 8 if "32x32" in op else 4
        elif self.valu:
            if self.perml or op.startswith("v_swap"):
                self.w = R[0] | R[1]; self.r = R[0] | R[1]
            else:
                self.w = set(R[0]) if R else set()
                for x in R[1:]:
                    self.r |= x
                if op.startswith(("v_fmac", "v_dot2c", "v_writelane")) or self.dpp:
                    self.r |= R[0]
                if op.startswith("v_cndmask") and len(R) == 3:
                    self.r |= {("s", "vcc")}
        elif self.vmem:
            lds = " lds" in (" " + mods)
            self.lds = lds
            if "load" in op and not lds:
                self.w = R[0]
                for x in R[1:]:
                    self.r |= x
            else:
                for x in R:
                    self.r |= x
                if "atomic" in op and "sc0" in mods:
                    self.w = R[0]
            self.wide = ("store" in op) and ("x3" in op or "x4" in op)
            self.data = R[0] if "store" in op else set()
        elif self.ds:
            if op.startswith(("ds_read", "ds_bpermute", "ds_permute", "ds_swizzle")) or "_rtn" in op:
                self.w = R[0]
                for x in R[1:]:
                    self.r |= x
            else:
                for x in R:
                    self.r |= x
        elif self.salu:
            if R and not op.startswith(("s_cmp", "s_cbranch", "s_branch", "s_waitcnt", "s_nop", "s_barrier", "s_sleep", "s_bitcmp", "s_endpgm", "s_setprio")):
                self.w = R[0]
                for x in R[1:]:
                    self.r |= x
            else:
                for x in R:
                    self.r |= x
        self.states = 1
        if op == "s_nop":
            self.states = int(self.ops[0], 0) + 1


def need(p, c):
    n = 0
    vw = {x for x in p.w if x[0] in "va"}
    sw = {x for x in p.w if x[0] == "s"}
    if p.valu and p.op.startswith("v_dot"):
        if (c.valu or c.mfma or c.vmem or c.ds) and vw & (c.r | c.w):
            same_c = c.op == p.op and len(c.ops) == 4 and not (vw & (regs(c.ops[1]) | regs(c.ops[2])))
            if not same_c:
                n = max(n, 3)
    if p.valu:
        if c.mfma and vw & c.r:
            n = max(n, 2)
        if p.trans and c.valu and not c.trans and vw & c.r:
            n = max(n, 1)
        if c.rdl and vw & c.r:
            n = max(n, 1)
        if (c.perml or (c.valu and c.dpp)) and vw & c.r:
            n = max(n, 2)
        if sw:
            if c.valu and sw & c.r:
                n = max(n, 4 if (c.rdl or c.op.startswith("v_writelane")) and False else 2)
            if c.vmem and sw & c.r:
                n = max(n, 5)
            if c.op.startswith("s_cbranch_vcc") and ("s", "vcc") in sw:
                n = max(n, 1)
            if c.salu and sw & c.r:
                n = max(n, 1)
    if p.mfma:
        d = {4: (8, 6), 8: (12, 10)}[p.passes]
        if c.mfma:
            if vw & (c.A | c.B):
                n = max(n, d[0])
            if vw & c.C and not (c.C == vw and c.passes == p.passes):
                n = max(n, d[1])
            if vw & c.w and not (c.C == vw):
                n = max(n, d[1])
        elif (c.valu or c.vmem or c.ds) and vw & (c.r | c.w):
            n = max(n, d[0])
        if c.valu and p.C & c.w:
            n = max(n, 3 if p.passes == 4 else 7)
    if p.salu and ("s", "m0") in p.w and c.vmem and getattr(c, "lds", False):
        n = max(n, 1)
    if p.vmem and p.wide and c.valu and p.data & c.w:
        n = max(n, 2)
    return n


def fix(lines):
    out = []
    hist = []
    for l in lines:
        s = l.strip()
        if not s or s.startswith(";") or s.endswith(":") or s.startswith("."):
            out.append(l)
            continue
        c = I(s)
        dist = 0
        add = 0
        for p in reversed(hist[-24:]):
            add = max(add, need(p, c) - dist)
            dist += p.states
            if dist > 20:
                break
        while add > 0:
            k = min(add, 16)
            nop = I(f"s_nop {k-1}")
            out.append(f"    s_nop {k-1}")
            hist.append(nop)
            add -= k
        out.append(l)
        hist.append(c)
        if c.op in ("s_branch", "s_endpgm"):
            hist = []
    return out


def _instrs(lines):
    res = []
    for idx, l in enumerate(lines):
        s = l.strip()
        if not s or s.startswith(";") or s.startswith("."):
            continue
        if s.endswith(":"):
            res.append((idx, s[:-1], None))
        else:
            res.append((idx, None, I(s)))
    return res


def fix_branches(lines):
    while True:
        ins = _instrs(lines)
        lab = {name: k for k, (idx, name, i) in enumerate(ins) if name}
        todo = None
        for k, (idx, name, i) in enumerate(ins):
            if i is None or not (i.op.startswith("s_cbranch") or i.op == "s_branch"):
                continue
            tgt = lab.get(i.ops[0])
            if tgt is None:
                continue
            prods = []
            d = 1
            for j in range(k - 1, -1, -1):
                p = ins[j][2]
                if p is None:
                    continue
                if p.op in ("s_branch", "s_endpgm"):
                    break
                prods.append((p, d))
                d += p.states
                if d > 20:
                    break
            dc = 0
            add = 0
            for j in range(tgt + 1, len(ins)):
                c = ins[j][2]
                if c is None:
                    continue
                for p, d in prods:
                    add = max(add, need(p, c) - d - dc)
                dc += c.states
                if dc > 20 or c.op in ("s_branch", "s_endpgm"):
                    break
            if add > 0:
                todo = (idx, add)
                break
        if todo is None:
            return lines
        idx, add = todo
        lines = lines[:idx] + [f"    s_nop {min(add,16)-1}"] + lines[idx:]


def fix_all(lines):
    return fix_branches(fix(lines))
```

```python
import argparse
from fw import *
import haz

WS_EPOCH = 0
WS_FLAG = 0x4000
WS_PART = 0x10000
WS_KEY = 0x40000
WS_P = 0x200000
WS_STAMP = 8 << 20
R_X, R_WS, R_OUT, R_A, R_B, R_C = 32, 36, 40, 44, 48, 52
XC, KK, PRM, TAG = 56, 57, 58, 59
T0, T1, T2, T3 = 60, 61, 62, 63
ST = 64
SPIN, TB, ROWA, ROWB, FINM, WSEL, RHO, SEL = 88, 89, 90, 91, 92, 93, 94, 95
GA, GB, RA, RB = 6, 7, 8, 9
REP = 10
MF = "v_mfma_f32_16x16x32_bf16"
VN, VQ = 2, 3
L_KEY = 40960
L_SEL = L_KEY + 4
L_Y = L_KEY + 256
LF_WD = 65536
LF_X = 98304
LF_E = LF_X + 1024
LF_H = LF_E + 1024
LDS_BYTES = LF_H + 512
LOG2E_N = 0xbfb8aa3b


def gen(a, o):
    WS_BYTES = (16 << 20) if o.stamps else (4 << 20)

    def stamp(k):
        if o.stamps:
            a(f"s_memrealtime s[{ST+2*k}:{ST+2*k+1}]")

    def fini(n):
        if o.stamps:
            a("s_mov_b64 exec, -1")
            a("s_waitcnt vmcnt(0) lgkmcnt(0)")
            a(f"s_memrealtime s[{ST+2*n}:{ST+2*n+1}]")
            a("s_waitcnt lgkmcnt(0)")
            for k in range(n + 1):
                a(f"v_writelane_b32 v200, s{ST+2*k}, {k}")
            a(f"s_mov_b32 s{T0}, {0x5a5a0000 | (n + 1):#x}")
            a(f"v_writelane_b32 v200, s{T0}, 15")
            a(f"s_lshl3_add_u32 s{T0}, s2, s3")
            a(f"s_lshl_b32 s{T0}, s{T0}, 6")
            a(f"s_add_u32 s{T0}, s{T0}, {WS_STAMP:#x}")
            a("v_lshlrev_b32 v201, 2, v0")
            a("s_mov_b64 exec, 0xffff")
            a(f"buffer_store_dword v200, v201, {R4(R_WS)}, s{T0} offen")
        a("s_endpgm")

    def retry(label, sleep=1):
        a(f"s_cbranch_vccz {label}_ok")
        if sleep:
            a(f"s_sleep {sleep}")
        a(f"s_sub_u32 s{SPIN}, s{SPIN}, 1")
        a(f"s_cbranch_scc0 {label}")
        a(f"s_mov_b32 s{SPIN}, 0")
        a.label(f"{label}_ok")

    def srds():
        a("s_waitcnt lgkmcnt(0)")
        if o.stamps:
            for k in range(2, 12):
                a(f"s_mov_b32 s{ST+2*k}, s{ST}")
        stamp(1)
        a(f"s_load_dword s{TAG}, s[30:31], {WS_EPOCH}")
        a.srd(R_X, 4, 2 << 20)
        a.srd(R_WS, 30, WS_BYTES)

    def tag_ready():
        a("s_waitcnt lgkmcnt(0)")
        a(f"s_add_u32 s{TAG}, s{TAG}, 0x9e3779b9")
        a(f"s_and_b32 s{TB}, s{TAG}, 0x00010001")

    def cossin(c, s, num, scale):
        a(f"v_cvt_f32_u32 v{num}, v{num}")
        a(f"v_mul_f32 v{num}, {scale}, v{num}")
        a(f"v_cos_f32 v{c}, v{num}")
        a(f"v_sin_f32 v{s}, v{num}")

    def fhex(x):
        import struct
        return "0x%08x" % struct.unpack("<I", struct.pack("<f", x))[0]

    def f16consts(re, im, t):
        a(f"v_lshlrev_b32 v{t+3}, 2, v{VQ}")
        for i in range(4):
            a(f"v_add_u32 v{t}, {i}, v{t+3}")
            a(f"v_mul_u32_u24 v{t}, v{t}, v{VN}")
            cossin(t + 1, t + 2, t, fhex(1 / 16))
            a(f"v_cvt_pk_bf16_f32 v{re+i}, v{t+1}, v{t+2}")
            a(f"v_cvt_pk_bf16_f32 v{im+i}, -v{t+2}, v{t+1}")

    def sigmoid(d, s):
        a(f"v_mul_f32 v{d}, {LOG2E_N:#x}, v{s}")
        a(f"v_exp_f32 v{d}, v{d}")
        a(f"v_add_f32 v{d}, 1.0, v{d}")
        a(f"v_rcp_f32 v{d}, v{d}")

    def keys_wait(atomic, b):
        l = a.L("pk")
        a(f"s_lshl_b32 s{T0}, s{REP}, 11")
        a(f"s_add_u32 s{T0}, s{T0}, {WS_KEY:#x}")
        a(f"v_lshlrev_b32 v{b+6}, 3, v0")
        a(f"v_mov_b32 v{b+7}, 1024")
        a.label(l)
        if atomic:
            for r in range(6):
                a(f"v_mov_b32 v{b+r}, 0")
            a(f"buffer_atomic_or_x2 {V(b,2)}, v{b+6}, {R4(R_WS)}, s{T0} offen sc0 sc1")
            a(f"buffer_atomic_or_x2 {V(b+2,2)}, v{b+6}, {R4(R_WS)}, s{T0} offen offset:512 sc0 sc1")
            a("s_mov_b64 exec, 1")
            a(f"buffer_atomic_or_x2 {V(b+4,2)}, v{b+7}, {R4(R_WS)}, s{T0} offen sc0 sc1")
            a("s_mov_b64 exec, -2")
            a(f"v_mov_b32 v{b+5}, s{TAG}")
            a("s_mov_b64 exec, -1")
        else:
            a(f"buffer_load_dwordx2 {V(b,2)}, v{b+6}, {R4(R_WS)}, s{T0} offen sc1")
            a(f"buffer_load_dwordx2 {V(b+2,2)}, v{b+6}, {R4(R_WS)}, s{T0} offen offset:512 sc1")
            a(f"buffer_load_dwordx2 {V(b+4,2)}, v{b+7}, {R4(R_WS)}, s{T0} offen sc1")
        a("s_waitcnt vmcnt(0)")
        a(f"v_xor_b32 v{b+1}, s{TAG}, v{b+1}")
        a(f"v_xor_b32 v{b+3}, s{TAG}, v{b+3}")
        a(f"v_xor_b32 v{b+5}, s{TAG}, v{b+5}")
        a(f"v_or3_b32 v{b+1}, v{b+1}, v{b+3}, v{b+5}")
        a(f"v_cmp_ne_u32 vcc, 0, v{b+1}")
        a(f"v_max3_u32 v{b}, v{b}, v{b+2}, v{b+4}")
        retry(l)
        for r in (8, 4, 2, 1):
            a(f"v_max_u32_dpp v{b}, v{b}, v{b} row_ror:{r} row_mask:0xf bank_mask:0xf")
        a(f"v_readlane_b32 s{SEL}, v{b}, 0")
        a(f"v_readlane_b32 s{T0}, v{b}, 16")
        a(f"v_readlane_b32 s{T1}, v{b}, 32")
        a(f"v_readlane_b32 s{T2}, v{b}, 48")
        a(f"s_max_u32 s{SEL}, s{SEL}, s{T0}")
        a(f"s_max_u32 s{T1}, s{T1}, s{T2}")
        a(f"s_max_u32 s{SEL}, s{SEL}, s{T1}")
        a(f"s_and_b32 s{SEL}, s{SEL}, 2047")

    def fold4(x0, x1, x2, x3):
        a(f"v_permlane32_swap_b32 v{x0}, v{x1}")
        a(f"v_permlane32_swap_b32 v{x2}, v{x3}")
        a(f"v_add_f32 v{x0}, v{x0}, v{x1}")
        a(f"v_add_f32 v{x2}, v{x2}, v{x3}")
        a(f"v_permlane16_swap_b32 v{x0}, v{x2}")
        a(f"v_add_f32 v{x0}, v{x0}, v{x2}")

    a("s_cmp_ge_u32 s2, 256")
    a("s_cbranch_scc1 L_end")
    stamp(0)
    a(f"s_load_dwordx2 s[4:5], s[0:1], {KA_X}")
    a(f"s_load_dwordx16 s[16:31], s[0:1], {KA_WR}")
    a("v_lshrrev_b32 v1, 6, v0")
    a("v_and_b32 v0, 63, v0")
    a("v_readfirstlane_b32 s3, v1")
    a(f"v_and_b32 v{VN}, 15, v0")
    a(f"v_lshrrev_b32 v{VQ}, 4, v0")
    a(f"s_and_b32 s{XC}, s2, 7")
    a(f"s_lshr_b32 s{KK}, s2, 3")
    a(f"s_mov_b32 s{SPIN}, 400000")
    a(f"s_mov_b32 s{FINM}, 0")
    a(f"s_cmp_ge_u32 s{KK}, 16")
    a("s_cbranch_scc1 L_p2")
    a(f"s_cmp_lt_u32 s{KK}, 8")
    a("s_cbranch_scc1 L_f0")

    LD, FR, FRE, FIM, TC, TS, D, TT = 8, 24, 40, 44, 48, 56, 64, 96
    a(f"s_sub_u32 s{PRM}, s{KK}, 8")
    a(f"v_lshlrev_b32 v4, 19, v{VQ}")
    a(f"v_lshl_add_u32 v4, v{VN}, 3, v4")
    a("v_add_u32 v5, 8192, v4")
    a(f"s_lshl_b32 s12, s3, 14")
    a(f"s_lshl_b32 s{T1}, s{XC}, 10")
    a(f"s_add_u32 s12, s12, s{T1}")
    a(f"s_lshl_b32 s{T1}, s{PRM}, 7")
    a(f"s_add_u32 s12, s12, s{T1}")
    for i in range(1, 4):
        a(f"s_add_u32 s{12+i}, s12, {i*131072}")
    srds()
    for i in range(4):
        for u in range(2):
            a(f"buffer_load_dwordx2 {V(LD+4*i+2*u,2)}, v{4+u}, {R4(R_X)}, s{12+i} offen")
    if o.tlb:
        a(f"v_mov_b32 v112, {WS_P:#x}")
        a(f"buffer_load_dword v113, v112, {R4(R_WS)}, 0 offen")
    for i in range(4):
        a(f"s_add_u32 s{12+i}, s{12+i}, {WS_P:#x}")
    f16consts(FRE, FIM, 116)
    a(f"v_lshlrev_b32 v119, 2, v{VQ}")
    a(f"s_lshl_b32 s{T0}, s3, 1")
    a(f"s_add_u32 s{T1}, s{T0}, 1")
    for u in range(2):
        for i in range(4):
            a(f"v_add_u32 v116, {i}, v119")
            a(f"v_mul_u32_u24 v116, s{T0+u}, v116")
            cossin(TC + 4 * u + i, TS + 4 * u + i, 116, fhex(1 / 256))
    a(f"v_bfe_u32 v116, v{VN}, 1, 2")
    a(f"s_lshr_b32 s{T0}, s3, 1")
    a(f"v_xor_b32 v116, s{T0}, v116")
    a(f"v_lshlrev_b32 v116, 4, v116")
    a(f"v_lshl_add_u32 v116, v{VN}, 6, v116")
    a(f"v_lshl_add_u32 v116, v{VQ}, 13, v116")
    a(f"s_and_b32 s{T0}, s3, 1")
    a(f"s_lshl_b32 s{T0}, s{T0}, 3")
    a(f"v_add_u32 v6, s{T0}, v116")
    a("v_xor_b32 v7, 32, v6")
    a(f"v_and_b32 v116, 1, v{VN}")
    a(f"v_lshrrev_b32 v117, 2, v{VN}")
    a(f"v_lshlrev_b32 v118, 1, v116")
    a(f"v_xor_b32 v117, v117, v118")
    a(f"v_xor_b32 v117, v117, v{VQ}")
    a(f"v_lshrrev_b32 v118, 1, v{VN}")
    a(f"v_lshl_add_u32 v118, v116, 4, v118")
    a(f"v_lshlrev_b32 v118, 6, v118")
    a(f"v_lshl_add_u32 v118, v117, 4, v118")
    a(f"s_lshl_b32 s{T0}, s3, 12")
    a(f"v_add_u32 v114, s{T0}, v118")
    a("v_mov_b32 v115, 0x00010001")
    tag_ready()
    stamp(2)
    for u in range(2):
        a(f"s_waitcnt vmcnt({(1 - u) + (1 if o.tlb else 0)})")
        for c in range(2):
            for i in range(4):
                a(f"v_mov_b32 v{FR+8*u+4*c+i}, v{LD+4*i+2*u+c}")
    stamp(3)
    for u in range(2):
        for c in range(2):
            k = 2 * u + c
            a(f"{MF} {V(D+8*k,4)}, {V(FRE,4)}, {V(FR+4*k,4)}, 0")
            a(f"{MF} {V(D+8*k+4,4)}, {V(FIM,4)}, {V(FR+4*k,4)}, 0")
    for c in range(2):
        for u in range(2):
            k = 2 * u + c
            for i in range(4):
                r, m = D + 8 * k + i, D + 8 * k + 4 + i
                tc, ts = TC + 4 * u + i, TS + 4 * u + i
                a(f"v_mul_f32 v{116+i}, v{r}, v{tc}")
                a(f"v_mul_f32 v{120+i}, v{m}, v{tc}")
            for i in range(4):
                r, m = D + 8 * k + i, D + 8 * k + 4 + i
                tc, ts = TC + 4 * u + i, TS + 4 * u + i
                a(f"v_fmac_f32 v{116+i}, v{m}, v{ts}")
                a(f"v_fma_f32 v{120+i}, -v{r}, v{ts}, v{120+i}")
            for i in range(4):
                a(f"v_cvt_pk_bf16_f32 v{TT+(4*c+i)*2+u}, v{116+i}, v{120+i}")
        for i in range(4):
            a(f"ds_write_b64 v{6+c}, {V(TT+(4*c+i)*2,2)} offset:{i*2048+c*1024}")
    a("s_waitcnt lgkmcnt(0)")
    a("s_barrier")
    stamp(4)
    for al in range(2):
        for c in range(2):
            a(f"ds_read_b128 {V(LD+4*(2*al+c),4)}, v114 offset:{al*2048+c*512}")
    for al in range(2):
        for c in range(2):
            k = 2 * al + c
            a(f"s_waitcnt lgkmcnt({0 if o.stamps else 3-k})")
            a(f"{MF} {V(D+8*k,4)}, {V(FRE,4)}, {V(LD+4*k,4)}, 0")
            a(f"{MF} {V(D+8*k+4,4)}, {V(FIM,4)}, {V(LD+4*k,4)}, 0")
    for al in range(2):
        for i in range(4):
            O = TT + (4 * al + i) * 2
            for c in range(2):
                k = 2 * al + c
                a(f"v_cvt_pk_bf16_f32 v{O+c}, v{D+8*k+i}, v{D+8*k+4+i}")
            for c in range(2):
                a(f"v_bfi_b32 v{O+c}, v115, s{TB}, v{O+c}")
            a(f"buffer_store_dwordx2 {V(O,2)}, v{4+al}, {R4(R_WS)}, s{12+i} offen sc1")
    stamp(5)
    a("s_barrier")
    a("s_cmp_lg_u32 s3, 0")
    a("s_cbranch_scc1 L_p1b")
    a(f"s_lshl3_add_u32 s{T0}, s{PRM}, s{XC}")
    a(f"s_lshl_b32 s{T0}, s{T0}, 2")
    a(f"s_add_u32 s{T0}, s{T0}, {WS_FLAG:#x}")
    a("v_lshlrev_b32 v116, 8, v0")
    a(f"v_mov_b32 v117, s{TAG}")
    a(f"buffer_store_dword v117, v116, {R4(R_WS)}, s{T0} offen sc1")
    a.label("L_p1b")
    a(f"s_cmp_eq_u32 s{PRM}, 0")
    a("s_cbranch_scc1 L_fin")
    fini(6)

    a.label("L_fin")
    a(f"s_add_u32 s{REP}, s{XC}, 56")
    a("s_cmp_lg_u32 s3, 0")
    a("s_cbranch_scc1 L_fin1")
    keys_wait(True, 160)
    a(f"v_mov_b32 v160, {L_SEL}")
    a(f"v_mov_b32 v161, s{SEL}")
    a("ds_write_b32 v160, v161")
    a("s_waitcnt lgkmcnt(0)")
    a.label("L_fin1")
    a("s_barrier")
    a(f"v_mov_b32 v160, {L_SEL}")
    a("ds_read_b32 v161, v160")
    a("s_waitcnt lgkmcnt(0)")
    a(f"v_readfirstlane_b32 s{SEL}, v161")
    a(f"s_mov_b32 s{FINM}, 1")
    a(f"s_and_b32 s{T0}, s{SEL}, 255")
    a(f"s_sub_u32 s{T1}, 2048, s{SEL}")
    a(f"s_cmp_gt_u32 s{T0}, 128")
    a(f"s_cselect_b32 s{RHO}, 1, 0")
    a(f"s_cselect_b32 s{T0}, s{T1}, s{SEL}")
    a(f"s_and_b32 s{PRM}, s{T0}, 255")
    a(f"s_lshr_b32 s{WSEL}, s{T0}, 8")
    a("s_branch L_p2fin")

    a.label("L_f0")
    a(f"s_cmp_lt_u32 s{XC}, 4")
    a("s_cbranch_scc1 L_f")
    a(f"s_cmp_lt_u32 s{KK}, 6")
    a("s_cbranch_scc1 L_f")
    a(f"s_cmp_lg_u32 s2, {6*8+4}")
    a("s_cbranch_scc1 L_end")
    a(f"s_mov_b32 s{PRM}, 128")
    a("s_branch L_p2b")
    a.label("L_f")
    WGF, WDF, XF, DG, DD = 16, 48, 64, 80, 88
    a(f"s_lshl3_add_u32 s{T0}, s{XC}, s{KK}")
    a(f"s_mul_i32 s{T2}, s{XC}, 6")
    a(f"s_add_u32 s{T2}, s{T2}, 8")
    a(f"s_add_u32 s{T2}, s{T2}, s{KK}")
    a(f"s_cmp_lt_u32 s{XC}, 4")
    a(f"s_cselect_b32 s{PRM}, s{T0}, s{T2}")
    a(f"s_mov_b32 s{REP}, s{PRM}")
    a("v_lshrrev_b32 v8, 2, v0")
    a("v_mul_u32_u24 v4, 3584, v8")
    a("v_lshrrev_b32 v8, 2, v8")
    a("v_and_b32 v8, 2, v8")
    a("v_and_b32 v9, 3, v0")
    a("v_xor_b32 v8, v8, v9")
    a("v_lshl_add_u32 v4, v8, 4, v4")
    a("v_lshrrev_b32 v8, 3, v0")
    a("v_and_b32 v9, 2, v8")
    a("v_and_b32 v10, 7, v0")
    a("v_xor_b32 v9, v9, v10")
    a("v_lshlrev_b32 v9, 4, v9")
    a("v_lshl_add_u32 v5, v8, 10, v9")
    a("v_xor_b32 v6, 64, v5")
    a(f"s_and_b32 s{T0}, s3, 3")
    a(f"s_mul_i32 s12, s{T0}, {128*3584}")
    a(f"s_lshl_b32 s{T1}, s{PRM}, 6")
    a(f"s_add_u32 s12, s12, s{T1}")
    a(f"s_lshl_b32 s13, s{PRM}, 15")
    a(f"s_lshl_b32 s{T1}, s3, 7")
    a(f"s_add_u32 s13, s13, s{T1}")
    a(f"s_lshl_b32 s14, s3, 13")
    a(f"s_lshl_b32 s15, s3, 12")
    a(f"s_add_u32 s15, s15, {LF_WD}")
    srds()
    a("s_cmp_lt_u32 s3, 4")
    a(f"s_cselect_b32 s{R_A}, s18, s20")
    a(f"s_cselect_b32 s{R_A+1}, s19, s21")
    a(f"s_mov_b32 s{R_A+2}, {512*3584:#x}")
    a(f"s_mov_b32 s{R_A+3}, 0x20000")
    a.srd(R_C, 22, 1792 * 1024)
    for n in range(8):
        a(f"s_add_u32 m0, s14, {n*1024}")
        a(f"buffer_load_dwordx4 v4, {R4(R_A)}, s12 offen lds")
        if n < 7:
            a(f"s_add_u32 s12, s12, {16*3584}")
    for n in range(4):
        a(f"s_add_u32 m0, s15, {n*1024}")
        a(f"buffer_load_dwordx4 v{5+(n&1)}, {R4(R_C)}, s13 offen lds")
        if n < 3:
            a(f"s_add_u32 s13, s13, 8192")
    a(f"v_lshrrev_b32 v8, 2, v{VN}")
    a(f"v_lshl_add_u32 v9, v{VQ}, 3, v8")
    a("v_and_b32 v10, 3, v0")
    a("v_lshlrev_b32 v10, 3, v10")
    a(f"v_and_b32 v11, 1, v{VQ}")
    a("v_lshl_add_u32 v7, v9, 6, v10")
    a("v_lshl_add_u32 v7, v11, 5, v7")
    a("v_add_u32 v7, s14, v7")
    a("v_xor_b32 v12, 32, v7")
    a("v_lshrrev_b32 v8, 1, v8")
    a("v_lshl_add_u32 v8, v11, 1, v8")
    a("v_lshl_add_u32 v13, v9, 7, v10")
    a("v_lshl_add_u32 v13, v8, 5, v13")
    a("v_add_u32 v13, s15, v13")
    a(f"s_and_b32 s{T0}, s3, 3")
    a(f"s_lshl_b32 s{T0}, s{T0}, 8")
    a(f"s_add_u32 s{T0}, s{T0}, {LF_X}")
    a(f"v_lshlrev_b32 v14, 4, v{VQ}")
    a(f"v_add_u32 v15, s{T0}, v14")
    a(f"s_lshl_b32 s{T0}, s3, 7")
    a(f"s_add_u32 s{T0}, s{T0}, {LF_E}")
    a(f"v_add_u32 v104, s{T0}, v14")
    a("v_and_b32 v105, 31, v0")
    a(f"s_lshl_b32 s{T0}, s3, 6")
    a(f"s_add_u32 s{T0}, s{T0}, {LF_H}")
    a(f"v_lshl_add_u32 v106, v105, 1, s{T0}")
    a(f"v_add_u32 v107, s{T0}, v14")
    a("v_lshlrev_b32 v105, 2, v105")
    a(f"v_add_u32 v105, {LF_E}, v105")
    a(f"v_lshl_add_u32 v108, v{VN}, 6, v14")
    a("v_lshlrev_b32 v109, 4, v0")
    tag_ready()
    a(f"v_mov_b32 v121, s{TAG}")
    a(f"v_mov_b32 v123, s{TAG}")
    a(f"s_mul_i32 s12, s3, {56*256}")
    a(f"s_lshl_b32 s{T1}, s{PRM}, 8")
    a(f"s_add_u32 s12, s12, s{T1}")
    a(f"s_add_u32 s12, s12, {WS_PART:#x}")
    for sg in range(4):
        a(f"s_waitcnt vmcnt({10 - 2*sg})")
        for t in range(2):
            for hh in range(2):
                a(f"ds_read_b64_tr_b16 {V(WGF+8*sg+4*t+2*hh,2)}, v{12 if t else 7} offset:{sg*2048+hh*256}")
    a("s_waitcnt vmcnt(0)")
    for u in range(4):
        a(f"v_xor_b32 v8, {32*u}, v13")
        for hh in range(2):
            a(f"ds_read_b64_tr_b16 {V(WDF+4*u+2*hh,2)}, v8 offset:{hh*512}")
    stamp(2)
    a("s_cmp_lg_u32 s3, 0")
    a("s_cbranch_scc1 L_f2")
    keys_wait(True, 160)
    stamp(3)
    a(f"s_lshl_b32 s{T0}, s{SEL}, 10")
    a(f"s_mov_b32 m0, {LF_X}")
    a(f"buffer_load_dwordx4 v109, {R4(R_X)}, s{T0} offen lds")
    a("s_waitcnt vmcnt(0)")
    a.label("L_f2")
    a("s_waitcnt lgkmcnt(0)")
    stamp(4)
    a("s_barrier")
    stamp(5)
    for sg in range(4):
        a(f"ds_read_b128 {V(XF+4*sg,4)}, v15 offset:{sg*64}")
    for sg in range(4):
        a(f"s_waitcnt lgkmcnt({0 if o.stamps else 3-sg})")
        for t in range(2):
            a(f"{MF} {V(DG+4*t,4)}, {V(WGF+8*sg+4*t,4)}, {V(XF+4*sg,4)}, {V(DG+4*t,4) if sg else 0}")
    a("s_mov_b32 exec_lo, 0x00010001")
    a("s_mov_b32 exec_hi, 0x00010001")
    for t in range(2):
        a(f"ds_write_b128 v104, {V(DG+4*t,4)} offset:{t*64}")
    a("s_mov_b64 exec, -1")
    a("s_waitcnt lgkmcnt(0)")
    a("s_barrier")
    for k in range(4):
        a(f"ds_read2_b32 {V(XF+2*k,2)}, v105 offset0:{64*k} offset1:{64*k+32}")
    a("s_waitcnt lgkmcnt(0)")
    a(f"v_add_f32 v{XF}, v{XF}, v{XF+1}")
    a(f"v_add_f32 v{XF+2}, v{XF+2}, v{XF+3}")
    a(f"v_add_f32 v{XF+4}, v{XF+4}, v{XF+5}")
    a(f"v_add_f32 v{XF+6}, v{XF+6}, v{XF+7}")
    a(f"v_add_f32 v{XF}, v{XF}, v{XF+2}")
    a(f"v_add_f32 v{XF+4}, v{XF+4}, v{XF+6}")
    sigmoid(XF + 1, XF)
    a(f"v_mul_f32 v{XF}, v{XF}, v{XF+4}")
    a(f"v_mul_f32 v{XF}, v{XF}, v{XF+1}")
    a(f"v_cvt_pk_bf16_f32 v{XF}, v{XF}, v{XF}")
    a(f"ds_write_b16 v106, v{XF}")
    a("s_waitcnt lgkmcnt(0)")
    a(f"ds_read_b128 {V(XF+8,4)}, v107")
    a("s_waitcnt lgkmcnt(0)")
    for u in range(4):
        a(f"{MF} {V(DD+4*u,4)}, {V(WDF+4*u,4)}, {V(XF+8,4)}, 0")
    for u in range(4):
        a(f"s_mov_b32 exec_lo, {0x00010001 << u:#x}")
        a(f"s_mov_b32 exec_hi, {0x00010001 << u:#x}")
        a(f"v_cvt_pk_bf16_f32 v120, v{DD+4*u}, v{DD+4*u+1}")
        a(f"v_cvt_pk_bf16_f32 v122, v{DD+4*u+2}, v{DD+4*u+3}")
    a("s_mov_b32 exec_lo, 0x000f000f")
    a("s_mov_b32 exec_hi, 0x000f000f")
    a(f"buffer_store_dwordx4 v[120:123], v108, {R4(R_WS)}, s12 offen sc1")
    stamp(6)
    fini(7)

    XA, WR, GW = 8, 16, 20
    D1, D2 = 24, 24
    A1R, A1I, FRE, FIM, FRC, FIC, B3, TW, XG = 64, 68, 72, 76, 80, 84, 88, 104, 136
    t = 152
    a.label("L_p2")
    a(f"s_sub_u32 s{PRM}, s{KK}, 16")
    a(f"s_lshl3_add_u32 s{PRM}, s{PRM}, s{XC}")
    a.label("L_p2b")
    a(f"s_and_b32 s{REP}, s{PRM}, 63")
    srds()
    a.label("L_p2fin")
    a(f"v_lshlrev_b32 v4, 5, v{VN}")
    a(f"v_lshl_add_u32 v4, v{VQ}, 3, v4")
    a(f"s_lshl_b32 s{T0}, s3, 8")
    a(f"s_add_u32 s{ROWA}, s{T0}, s{PRM}")
    a(f"s_sub_u32 s{ROWB}, 2048, s{ROWA}")
    a(f"s_and_b32 s{ROWB}, s{ROWB}, 2047")
    a(f"s_lshl_b32 s12, s{ROWA}, 10")
    a(f"s_lshl_b32 s13, s{ROWB}, 10")
    a.srd(R_A, 16, 1024)
    a.srd(R_B, 24, 1024)
    a.srd(R_OUT, 26, 2 << 20)
    for rho in range(2):
        for tau in range(2):
            a(f"buffer_load_dwordx2 {V(XA+4*rho+2*tau,2)}, v4, {R4(R_X)}, s{12+rho} offen offset:{512*tau}")
    for tau in range(2):
        a(f"buffer_load_dwordx2 {V(WR+2*tau,2)}, v4, {R4(R_A)}, 0 offen offset:{512*tau}")
    for tau in range(2):
        a(f"buffer_load_dwordx2 {V(GW+2*tau,2)}, v4, {R4(R_B)}, 0 offen offset:{512*tau}")
    if o.tlb:
        a(f"v_mov_b32 v56, {WS_P:#x}")
        a(f"v_mov_b32 v57, 0")
        a(f"buffer_load_dword v58, v56, {R4(R_WS)}, 0 offen")
        a(f"buffer_load_dword v59, v57, {R4(R_OUT)}, 0 offen")
    a(f"v_mov_b32 v160, {L_KEY}")
    a("v_mov_b32 v161, 0")
    a("ds_write_b32 v160, v161")
    f16consts(FRE, FIM, t + 4)
    a(f"v_mov_b32 v{t+4}, 0x80000000")
    for i in range(4):
        a(f"v_xor_b32 v{FRC+i}, v{t+4}, v{FRE+i}")
        a(f"v_xor_b32 v{FIC+i}, v{t+4}, v{FIM+i}")
    a(f"s_cmp_eq_u32 s{FINM}, 1")
    a("s_cbranch_scc1 L_p2t")
    tag_ready()
    a.label("L_p2t")
    a("s_waitcnt lgkmcnt(0)")
    a("s_barrier")
    a(f"s_waitcnt vmcnt({2 if o.tlb else 0})")
    stamp(2)
    for k in range(4):
        for rho in range(2):
            for wv, W in enumerate((WR, GW)):
                d = D1 + 2 * rho + wv
                a(f"v_dot2_f32_bf16 v{d}, v{XA+4*rho+k}, v{W+k}, {('v%d' % d) if k else 0}")
    fold4(D1, D1 + 1, D1 + 2, D1 + 3)
    for r in (8, 4, 2, 1):
        a(f"v_add_f32_dpp v{D1}, v{D1}, v{D1} row_ror:{r} row_mask:0xf bank_mask:0xf")
    a(f"v_ashrrev_i32 v{D1+1}, 31, v{D1}")
    a(f"v_or_b32 v{D1+1}, 0x80000000, v{D1+1}")
    a(f"v_xor_b32 v{D1+1}, v{D1+1}, v{D1}")
    a(f"v_and_b32 v{D1+1}, 0xfffff800, v{D1+1}")
    a(f"v_readlane_b32 s{T0}, v{D1+1}, 0")
    a(f"v_readlane_b32 s{T1}, v{D1+1}, 16")
    a(f"s_or_b32 s{T0}, s{T0}, s{ROWA}")
    a(f"s_or_b32 s{T1}, s{T1}, s{ROWB}")
    a(f"s_max_u32 s{T0}, s{T0}, s{T1}")
    a(f"v_mov_b32 v161, s{T0}")
    a("s_mov_b64 exec, 1")
    a("ds_max_u32 v160, v161")
    a("s_mov_b64 exec, -1")
    sigmoid(D1 + 2, D1)
    a("s_waitcnt lgkmcnt(0)")
    a("s_barrier")
    a(f"s_or_b32 s{T0}, s3, s{FINM}")
    a(f"s_cmp_lg_u32 s{T0}, 0")
    a("s_cbranch_scc1 L_p2k")
    a("ds_read_b32 v162, v160")
    a(f"s_lshl_b32 s{T0}, s{PRM}, 3")
    a(f"s_add_u32 s{T0}, s{T0}, {WS_KEY:#x}")
    a("v_lshlrev_b32 v161, 11, v0")
    a(f"v_mov_b32 v163, s{TAG}")
    a("s_waitcnt lgkmcnt(0)")
    a(f"buffer_store_dwordx2 v[162:163], v161, {R4(R_WS)}, s{T0} offen sc1")
    a.label("L_p2k")
    stamp(3)
    a(f"v_readlane_b32 s{RA}, v{D1+2}, 0")
    a(f"v_readlane_b32 s{RB}, v{D1+2}, 16")
    a(f"v_readlane_b32 s{GA}, v{D1+2}, 32")
    a(f"v_readlane_b32 s{GB}, v{D1+2}, 48")
    for rho in range(2):
        a(f"v_sub_f32 v{t}, 1.0, s{GA+rho}")
        for k in range(4):
            x = XA + 4 * rho + k
            d = XG + 8 * rho + 2 * k
            a(f"v_lshlrev_b32 v{d}, 16, v{x}")
            a(f"v_and_b32 v{d+1}, 0xffff0000, v{x}")
            a(f"v_mul_f32 v{d}, v{t}, v{d}")
            a(f"v_mul_f32 v{d+1}, v{t}, v{d+1}")
    a(f"v_lshrrev_b32 v{t}, 1, v{VN}")
    a(f"v_lshlrev_b32 v{t}, 8, v{t}")
    a(f"v_add_u32 v{t}, s{PRM}, v{t}")
    a(f"v_and_b32 v{t+1}, 1, v{VN}")
    a(f"v_lshlrev_b32 v{t+1}, 9, v{t+1}")
    a(f"v_cmp_gt_u32 vcc, 2, v{VQ}")
    a(f"v_sub_u32 v{t+2}, 2048, v{t+1}")
    a(f"v_cndmask_b32 v{t+1}, v{t+2}, v{t+1}, vcc")
    a(f"v_mov_b32 v{t+2}, -0.5")
    a(f"v_mov_b32 v{t+3}, 0.5")
    a(f"v_cndmask_b32 v{t+2}, v{t+2}, v{t+3}, vcc")
    a(f"v_and_b32 v{t+3}, 1, v{VQ}")
    a(f"v_lshlrev_b32 v{t+3}, 2, v{t+3}")
    for i in range(4):
        a(f"v_add_u32 v{t+4}, {i}, v{t+3}")
        a(f"v_mad_u32_u24 v{t+4}, v{t+4}, v{t}, v{t+1}")
        a(f"v_and_b32 v{t+4}, 2047, v{t+4}")
        cossin(t + 5, t + 6, t + 4, fhex(1 / 2048))
        a(f"v_mul_f32 v{t+4}, 0.5, v{t+5}")
        a(f"v_mul_f32 v{t+7}, v{t+2}, v{t+6}")
        a(f"v_cvt_pk_bf16_f32 v{A1R+i}, v{t+4}, v{t+7}")
        a(f"v_mul_f32 v{t+4}, -0.5, v{t+6}")
        a(f"v_mul_f32 v{t+7}, v{t+2}, v{t+5}")
        a(f"v_cvt_pk_bf16_f32 v{A1I+i}, v{t+4}, v{t+7}")
    a(f"v_lshlrev_b32 v{t}, 3, v{VQ}")
    a(f"v_add_u32 v{t+1}, 16, v{VN}")
    for h in range(2):
        for i in range(4):
            a(f"v_add_u32 v{t+2}, {2*i+h}, v{t}")
            a(f"v_mul_u32_u24 v{t+3}, v{t+2}, v{VN}")
            a(f"v_mul_u32_u24 v{t+4}, v{t+2}, v{t+1}")
            a(f"v_cvt_f32_u32 v{t+3}, v{t+3}")
            a(f"v_mul_f32 v{t+2}, {fhex(1/512)}, v{t+3}")
            a(f"v_cos_f32 v{t+5}, v{t+2}")
            a(f"v_sin_f32 v{t+6}, v{t+2}")
            a(f"v_mul_f32 v{t+3}, {fhex(1/32)}, v{t+3}")
            for rho in range(2):
                a(f"v_mul_f32 v{TW+16*rho+8*h+i}, s{GA+rho}, v{t+5}")
                a(f"v_mul_f32 v{TW+16*rho+8*h+4+i}, s{GA+rho}, v{t+6}")
            a(f"v_cos_f32 v{t+5}, v{t+3}")
            a(f"v_sin_f32 v{t+6}, v{t+3}")
            a(f"v_cvt_pk_bf16_f32 v{B3+8*h+i}, v{t+5}, v{t+6}")
            cossin(t + 5, t + 6, t + 4, fhex(1 / 32))
            a(f"v_cvt_pk_bf16_f32 v{B3+8*h+4+i}, v{t+5}, v{t+6}")
    a(f"s_sub_u32 s{T1}, 256, s{PRM}")
    a(f"s_and_b32 s{T1}, s{T1}, 255")
    a(f"s_lshl_b32 s{T1}, s{T1}, 13")
    a(f"s_lshl_b32 s{T2}, s{PRM}, 13")
    a(f"v_mov_b32 v5, s{T1}")
    a(f"v_mov_b32 v{t}, s{T2}")
    a(f"v_cndmask_b32 v5, v5, v{t}, vcc")
    a(f"v_lshl_add_u32 v5, v{VN}, 3, v5")
    a(f"v_and_b32 v{t}, 1, v{VQ}")
    a(f"v_lshl_add_u32 v5, v{t}, 12, v5")
    a(f"s_lshl_b32 s14, s3, 7")
    a(f"s_add_u32 s14, s14, {WS_P:#x}")
    a(f"v_lshrrev_b32 v{t}, 3, v{VN}")
    a(f"v_bfe_u32 v{t+1}, v{VN}, 2, 1")
    a(f"v_xor_b32 v{t+1}, v{t+1}, v{t}")
    a(f"v_lshl_add_u32 v{t}, v{t+1}, 1, v{t}")
    a(f"s_lshr_b32 s{T0}, s3, 1")
    a(f"v_xor_b32 v{t+1}, s{T0}, v{t}")
    a(f"v_lshlrev_b32 v{t+1}, 4, v{t+1}")
    a(f"v_lshl_add_u32 v{t+1}, v{VN}, 6, v{t+1}")
    a(f"v_lshl_add_u32 v{t+1}, v{VQ}, 12, v{t+1}")
    a(f"s_and_b32 s{T0}, s3, 1")
    a(f"s_lshl_b32 s{T0}, s{T0}, 3")
    a(f"v_add_u32 v6, s{T0}, v{t+1}")
    a(f"v_xor_b32 v{t}, v{t}, v{VQ}")
    a(f"v_lshlrev_b32 v{t}, 4, v{t}")
    a(f"v_lshl_add_u32 v{t}, v{VN}, 6, v{t}")
    a(f"s_lshl_b32 s{T0}, s3, 11")
    a(f"v_add_u32 v7, s{T0}, v{t}")
    a(f"v_mov_b32 v{t+7}, 0x00010001")
    stamp(4)
    a("s_cmp_lg_u32 s3, 0")
    a("s_cbranch_scc1 L_p2c")
    a(f"s_lshl_b32 s{T0}, s{REP}, 8")
    a(f"s_add_u32 s{T0}, s{T0}, {WS_FLAG:#x}")
    a("v_lshlrev_b32 v161, 2, v0")
    a.label("L_pf")
    a("v_mov_b32 v162, 0")
    a(f"buffer_atomic_or v162, v161, {R4(R_WS)}, s{T0} offen sc0 sc1")
    a("s_waitcnt vmcnt(0)")
    a(f"v_cmp_ne_u32 vcc, s{TAG}, v162")
    retry("L_pf")
    a.label("L_p2c")
    a("s_barrier")
    stamp(5)
    a.label("L_pl")
    for i in range(4):
        a(f"buffer_load_dwordx2 {V(8+2*i,2)}, v5, {R4(R_WS)}, s14 offen offset:{1024*i} sc1")
    a("s_waitcnt vmcnt(0)")
    a(f"v_xor_b32 v{t}, s{TB}, v8")
    for r in range(9, 16):
        a(f"v_bitop3_b32 v{t}, v{r}, s{TB}, v{t} bitop3:0xbe")
    a(f"v_and_b32 v{t}, v{t+7}, v{t}")
    a(f"v_cmp_ne_u32 vcc, 0, v{t}")
    for c in range(2):
        for i in range(4):
            a(f"v_mov_b32 v{16+4*c+i}, v{8+2*i+c}")
    retry("L_pl")
    stamp(6)
    for c in range(2):
        a(f"{MF} {V(D1+8*c,4)}, {V(A1R,4)}, {V(16+4*c,4)}, 0")
        a(f"{MF} {V(D1+8*c+4,4)}, {V(A1I,4)}, {V(16+4*c,4)}, 0")
    for i in range(4):
        for c in range(2):
            a(f"v_cvt_pk_bf16_f32 v{8+2*i+c}, v{D1+8*c+i}, v{D1+8*c+4+i}")
        a(f"ds_write_b64 v6, {V(8+2*i,2)} offset:{i*1024}")
    a(f"s_lshl_b32 s{T0}, s{FINM}, 3")
    a(f"s_or_b32 s{T0}, s{T0}, s3")
    a(f"s_cmp_lg_u32 s{T0}, 7")
    a("s_cbranch_scc1 L_p2d")
    keys_wait(False, 160)
    a(f"v_mov_b32 v160, {L_SEL}")
    a(f"v_mov_b32 v161, s{SEL}")
    a("ds_write_b32 v160, v161")
    a.label("L_p2d")
    a("s_waitcnt lgkmcnt(0)")
    a("s_barrier")
    stamp(7)
    for h in range(2):
        a(f"ds_read_b128 {V(16+4*h,4)}, v7 offset:{h*1024}")
    a(f"v_mov_b32 v160, {L_SEL}")
    a("ds_read_b32 v161, v160")
    a("s_waitcnt lgkmcnt(0)")
    for rho in range(2):
        for h in range(2):
            k = 2 * rho + h
            a(f"{MF} {V(D2+8*k,4)}, {V(16+4*h,4)}, {V(FRC if rho else FRE,4)}, 0")
            a(f"{MF} {V(D2+8*k+4,4)}, {V(16+4*h,4)}, {V(FIC if rho else FIM,4)}, 0")
    a(f"v_readfirstlane_b32 s{SEL}, v161")
    for rho in range(2):
        for h in range(2):
            k = 2 * rho + h
            for i in range(4):
                r, m = D2 + 8 * k + i, D2 + 8 * k + 4 + i
                tc = TW + 8 * k + i
                a(f"v_mul_f32 v{t+i}, v{r}, v{tc}")
                a(f"v_mul_f32 v{164+i}, v{m}, v{tc}")
            for i in range(4):
                r, m = D2 + 8 * k + i, D2 + 8 * k + 4 + i
                ts = TW + 8 * k + 4 + i
                a(f"v_fmac_f32 v{t+i}, v{m}, v{ts}")
                a(f"v_fma_f32 v{164+i}, -v{r}, v{ts}, v{164+i}")
            for i in range(4):
                a(f"v_cvt_pk_bf16_f32 v{168+4*k+i}, v{t+i}, v{164+i}")
        for h in range(2):
            for tau in range(2):
                acc = V(XG + 8 * rho + 4 * tau, 4)
                a(f"{MF} {acc}, {V(168+4*(2*rho+h),4)}, {V(B3+8*h+4*tau,4)}, {acc}")
    stamp(8)
    a(f"s_cmp_eq_u32 s{FINM}, 1")
    a("s_cbranch_scc1 L_fin2")
    for rho in range(2):
        l = a.L("sk")
        for k in range(4):
            a(f"v_cvt_pk_bf16_f32 v{8+4*rho+k}, v{XG+8*rho+2*k}, v{XG+8*rho+2*k+1}")
        a(f"s_cmp_eq_u32 s{ROWA+rho}, s{SEL}")
        a(f"s_cbranch_scc1 {l}")
        if rho:
            a(f"s_and_b32 s{T0}, s{PRM}, 127")
            a(f"s_cbranch_scc0 {l}")
        for tau in range(2):
            a(f"buffer_store_dwordx2 {V(8+4*rho+2*tau,2)}, v4, {R4(R_OUT)}, s{12+rho} offen offset:{512*tau} sc1")
        a.label(l)
    fini(9)

    a.label("L_fin2")
    a("s_cmp_eq_u32 s3, 7")
    a("s_cbranch_scc1 L_fin3")
    a(f"s_mul_i32 s{T0}, s{XC}, {56*256}")
    a(f"s_lshl_b32 s{T1}, s3, 11")
    a(f"s_add_u32 s{T0}, s{T0}, s{T1}")
    a(f"s_add_u32 s{T0}, s{T0}, {WS_PART:#x}")
    a("v_lshlrev_b32 v160, 4, v0")
    a.label("L_pp")
    a(f"buffer_load_dwordx4 v[8:11], v160, {R4(R_WS)}, s{T0} offen sc1")
    a(f"buffer_load_dwordx4 v[12:15], v160, {R4(R_WS)}, s{T0} offen offset:1024 sc1")
    a("s_waitcnt vmcnt(0)")
    a(f"v_xor_b32 v9, s{TAG}, v9")
    for r in (11, 13, 15):
        a(f"v_bitop3_b32 v9, v{r}, s{TAG}, v9 bitop3:0xbe")
    a("v_cmp_ne_u32 vcc, 0, v9")
    retry("L_pp")
    for k, (x, y) in enumerate(((8, 12), (10, 14))):
        a(f"v_lshlrev_b32 v{16+2*k}, 16, v{x}")
        a(f"v_lshlrev_b32 v{20+2*k}, 16, v{y}")
        a(f"v_and_b32 v{17+2*k}, 0xffff0000, v{x}")
        a(f"v_and_b32 v{21+2*k}, 0xffff0000, v{y}")
    for k in range(4):
        a(f"v_add_f32 v{16+k}, v{16+k}, v{20+k}")
    fold4(16, 17, 18, 19)
    a(f"v_and_b32 v20, 1, v{VQ}")
    a(f"v_lshrrev_b32 v21, 1, v{VQ}")
    a("v_lshl_add_u32 v20, v20, 1, v21")
    a(f"v_lshl_add_u32 v20, v{VN}, 2, v20")
    a(f"s_lshl_b32 s{T0}, s3, 8")
    a(f"s_add_u32 s{T0}, s{T0}, {L_Y}")
    a(f"v_lshl_add_u32 v20, v20, 2, s{T0}")
    a("ds_write_b32 v20, v16")
    a("s_waitcnt lgkmcnt(0)")
    a.label("L_fin3")
    a("s_barrier")
    stamp(9)
    a(f"s_cmp_lg_u32 s3, s{WSEL}")
    a("s_cbranch_scc1 L_fin4")
    a(f"v_and_b32 v20, 3, v{VN}")
    a(f"v_lshlrev_b32 v20, 6, v20")
    a(f"v_lshl_add_u32 v20, v{VQ}, 4, v20")
    for k in range(7):
        a(f"ds_read_b128 {V(24+4*k,4)}, v20 offset:{L_Y+256*k}")
    a(f"s_lshr_b32 s{T0}, s{XC}, 2")
    a(f"s_lshl1_add_u32 s{T0}, s{RHO}, s{T0}")
    for k in range(4):
        l = a.L("acc")
        a(f"s_cmp_lg_u32 s{T0}, {k}")
        a(f"s_cbranch_scc1 {l}")
        for i in range(4):
            a(f"v_mov_b32 v{16+i}, v{XG+4*k+i}")
        a.label(l)
    a(f"s_cmp_eq_u32 s{RHO}, 1")
    a(f"s_cselect_b32 s{GA}, s{GB}, s{GA}")
    a(f"s_cselect_b32 s{RA}, s{RB}, s{RA}")
    a(f"v_sub_f32 v21, 1.0, s{GA}")
    a(f"v_mul_f32 v21, s{RA}, v21")
    a("s_waitcnt lgkmcnt(0)")
    for k in (1, 3, 5):
        for i in range(4):
            a(f"v_add_f32 v{24+4*k+i}, v{24+4*k+i}, v{28+4*k+i}")
    for i in range(4):
        a(f"v_add_f32 v{24+i}, v{24+i}, v{28+i}")
        a(f"v_add_f32 v{36+i}, v{36+i}, v{44+i}")
    for i in range(4):
        a(f"v_add_f32 v{24+i}, v{24+i}, v{36+i}")
    for i in range(4):
        a(f"v_fmac_f32 v{16+i}, v21, v{24+i}")
    a("v_cvt_pk_bf16_f32 v16, v16, v17")
    a("v_cvt_pk_bf16_f32 v17, v18, v19")
    a(f"s_lshl_b32 s{T0}, s{SEL}, 10")
    a(f"s_lshr_b32 s{T1}, s{XC}, 2")
    a(f"s_lshl_b32 s{T1}, s{T1}, 9")
    a(f"s_add_u32 s{T0}, s{T0}, s{T1}")
    a(f"s_and_b32 s{T1}, s{XC}, 3")
    a(f"s_lshl_b32 s{T1}, s{T1}, 2")
    a(f"s_lshl_b32 exec_lo, 0x000f000f, s{T1}")
    a("s_mov_b32 exec_hi, exec_lo")
    a(f"buffer_store_dwordx2 v[16:17], v4, {R4(R_OUT)}, s{T0} offen sc1")
    a(f"s_cmp_lg_u32 s{XC}, 0")
    a("s_cbranch_scc1 L_fin4")
    a("s_mov_b64 exec, 1")
    a(f"v_mov_b32 v20, {WS_EPOCH}")
    a(f"v_mov_b32 v21, s{TAG}")
    a(f"buffer_store_dword v21, v20, {R4(R_WS)}, 0 offen sc1")
    a.label("L_fin4")
    fini(10)
    a.label("L_end")
    a("s_endpgm")


if __name__ == "__main__":
    ap = argparse.ArgumentParser()
    ap.add_argument("-o", required=True)
    ap.add_argument("--stamps", type=int, default=0)
    ap.add_argument("--tlb", type=int, default=1)
    o = ap.parse_args()
    a = Asm()
    gen(a, o)
    a.lines = haz.fix_all(a.lines)
    finish(a, o.o, 256, 512, LDS_BYTES, 208 if o.stamps else 184)
```

```python
import argparse, math, struct
from fw import *
import haz

WS_EPOCH = 0
WS_ACK = 0x1000
WS_PART = 0x10000
WS_KEY = 0x40000
WS_P = 0x200000
WS_STAMP = 8 << 20
R_X, R_WS, R_OUT, R_A, R_B, R_C = 32, 36, 40, 44, 48, 52
RS, SLOT, TABS = 8, 9, 10
XC, KK, PRM, TAG = 56, 57, 58, 59
T0, T1, T2, T3 = 60, 61, 62, 63
ST = 64
SPIN, TB0, TB1, ROWA, ROWB, REP, RHO, SEL, WSEL = 90, 91, 92, 93, 94, 95, 96, 97, 98
MF = "v_mfma_f32_16x16x32_bf16"
VN, VQ = 2, 3
L_X2 = 16384
L_TAB = 32768
L_KEY = L_TAB + 10240
L_CNT = L_KEY + 4
L_SEL = L_KEY + 8
L_G = L_KEY + 64
L_Y = L_KEY + 256
LF_WD = 65536
LF_X = 98304
LF_E = LF_X + 1024
LDS_BYTES = LF_E + 1024
LOG2E_N = 0xbfb8aa3b
A1R, A1I, FRE, FIM, FRC, FIC, B3, TW, XG, D3 = 144, 148, 152, 156, 160, 164, 168, 184, 216, 232
GF, D1, D2, XR, TGV, PB = 112, 64, 64, 40, 104, 128
t = 96
XR2, GW2 = 232, 240


def f32(x):
    return struct.unpack("<I", struct.pack("<f", x))[0]


def fhex(x):
    return "0x%08x" % f32(x)


def bf(x):
    u = f32(x)
    return ((u + 0x7fff + ((u >> 16) & 1)) >> 16) & 0xffff


def cs(num, den):
    num %= den
    c, s = math.cos(2 * math.pi * num / den), math.sin(2 * math.pi * num / den)
    return (0.0 if abs(c) < 1e-12 else c), (0.0 if abs(s) < 1e-12 else s)


def tables():
    T = []
    def blk(fn):
        for l in range(64):
            for i in range(4):
                T.append(fn(l & 15, l >> 4, i))
    pk = lambda lo, hi: bf(lo) | (bf(hi) << 16)
    blk(lambda n, q, i: pk(*cs((4 * q + i) * n, 16)))
    blk(lambda n, q, i: pk(-cs((4 * q + i) * n, 16)[1], cs((4 * q + i) * n, 16)[0]))
    for h in range(2):
        for k in range(2):
            blk(lambda n, q, i: f32(cs((2 * (4 * q + i) + h) * n, 512)[k]))
    for h in range(2):
        for tau in range(2):
            blk(lambda n, q, i: pk(*cs((2 * (4 * q + i) + h) * (16 * tau + n), 32)))
    return T


def gen(a, o):
    WS_BYTES = (16 << 20) if o.stamps else (4 << 20)

    def stamp(k):
        if o.stamps:
            a(f"{'s_memtime' if o.stamps == 2 else 's_memrealtime'} s[{ST+2*k}:{ST+2*k+1}]")

    def dstamp(k, early):
        if bool(o.dbg) == early:
            stamp(k)

    def lg(n):
        a(f"s_waitcnt lgkmcnt({0 if o.stamps else n})")

    def fini(n):
        if o.stamps:
            a("s_mov_b64 exec, -1")
            a("s_waitcnt vmcnt(0) lgkmcnt(0)")
            stamp(n)
            a("s_waitcnt lgkmcnt(0)")
            for k in range(n + 1):
                a(f"v_writelane_b32 v250, s{ST+2*k}, {k}")
            a(f"s_mov_b32 s{T0}, {0x5a5a0000 | (n + 1):#x}")
            a(f"v_writelane_b32 v250, s{T0}, 15")
            a(f"s_lshl3_add_u32 s{T0}, s2, s3")
            a(f"s_lshl_b32 s{T0}, s{T0}, 6")
            a(f"s_add_u32 s{T0}, s{T0}, {WS_STAMP:#x}")
            a("v_lshlrev_b32 v251, 2, v0")
            a("s_mov_b64 exec, 0xffff")
            a(f"buffer_store_dword v250, v251, {R4(R_WS)}, s{T0} offen")
        a("s_endpgm")

    def retry(label, sleep=1):
        a(f"s_cbranch_vccz {label}_ok")
        if sleep:
            a(f"s_sleep {sleep}")
        a(f"s_sub_u32 s{SPIN}, s{SPIN}, 1")
        a(f"s_cbranch_scc0 {label}")
        a(f"s_mov_b32 s{SPIN}, 0")
        a.label(f"{label}_ok")

    def srds(epoch=True):
        a("s_waitcnt lgkmcnt(0)")
        if o.stamps:
            for k in range(2, 13):
                a(f"s_mov_b32 s{ST+2*k}, s{ST}")
        stamp(1)
        if epoch:
            a(f"s_load_dword s{TAG}, s[30:31], {WS_EPOCH}")
        a.srd(R_X, 4, 2 << 20)
        a.srd(R_WS, 30, WS_BYTES)

    def tag_ready():
        a("s_waitcnt lgkmcnt(0)")
        a(f"s_add_u32 s{TAG}, s{TAG}, 0x9e3779b9")
        a(f"s_bitcmp1_b32 s{TAG}, 0")
        a(f"s_cselect_b32 s{TB0}, 1, 0x10000")
        a(f"s_xor_b32 s{TB1}, s{TB0}, 0x10001")

    def tagv(v):
        a(f"v_mov_b32 v{v}, s{TB0}")
        a(f"v_mov_b32 v{v+1}, s{TB1}")
        a(f"v_mov_b32 v{v+2}, 0x00010001")

    def touch(items):
        if not o.tlb:
            return 0
        for k, (srd, off) in enumerate(items):
            a(f"v_mov_b32 v{252+k}, {off:#x}")
            a(f"buffer_load_dword v{252+k}, v{252+k}, {R4(srd)}, 0 offen")
        return len(items)

    def sigmoid(d, s):
        a(f"v_mul_f32 v{d}, {LOG2E_N:#x}, v{s}")
        a(f"v_exp_f32 v{d}, v{d}")
        a(f"v_add_f32 v{d}, 1.0, v{d}")
        a(f"v_rcp_f32 v{d}, v{d}")

    def keys_addr(b):
        a(f"s_and_b32 s15, s{REP}, {o.kr-1}")
        a(f"s_lshl_b32 s15, s15, 11")
        a(f"s_add_u32 s15, s15, {WS_KEY:#x}")
        a(f"v_lshlrev_b32 v{b+6}, 3, v0")

    def keys_issue(b):
        for r in range(4):
            a(f"v_mov_b32 v{b+r}, 0")
        a(f"buffer_atomic_or_x2 {V(b,2)}, v{b+6}, {R4(R_WS)}, s15 offen sc0 sc1")
        a(f"buffer_atomic_or_x2 {V(b+2,2)}, v{b+6}, {R4(R_WS)}, s15 offen offset:512 sc0 sc1")

    def keys_wait(b, issued=False):
        l = a.L("pk")
        if issued:
            a(f"s_branch {l}_w")
        a.label(l)
        keys_issue(b)
        a.label(f"{l}_w")
        a("s_waitcnt vmcnt(0)")
        a(f"v_xor_b32 v{b+1}, s{TAG}, v{b+1}")
        a(f"v_bitop3_b32 v{b+1}, v{b+3}, s{TAG}, v{b+1} bitop3:0xbe")
        a(f"v_cmp_ne_u32 vcc, 0, v{b+1}")
        a(f"v_max_u32 v{b}, v{b}, v{b+2}")
        retry(l, o.ksleep)
        for r in (8, 4, 2, 1):
            a(f"v_max_u32_dpp v{b}, v{b}, v{b} row_ror:{r} row_mask:0xf bank_mask:0xf")
        a(f"v_readlane_b32 s{SEL}, v{b}, 0")
        a(f"v_readlane_b32 s{T0}, v{b}, 16")
        a(f"v_readlane_b32 s{T1}, v{b}, 32")
        a(f"v_readlane_b32 s{T2}, v{b}, 48")
        a(f"s_max_u32 s{SEL}, s{SEL}, s{T0}")
        a(f"s_max_u32 s{T1}, s{T1}, s{T2}")
        a(f"s_max_u32 s{SEL}, s{SEL}, s{T1}")

    def fold4(x0, x1, x2, x3):
        a(f"v_permlane32_swap_b32 v{x0}, v{x1}")
        a(f"v_permlane32_swap_b32 v{x2}, v{x3}")
        a(f"v_add_f32 v{x0}, v{x0}, v{x1}")
        a(f"v_add_f32 v{x2}, v{x2}, v{x3}")
        a(f"v_permlane16_swap_b32 v{x0}, v{x2}")
        a(f"v_add_f32 v{x0}, v{x0}, v{x2}")

    def rowsum(x):
        for r in (8, 4, 2, 1):
            a(f"v_add_f32_dpp v{x}, v{x}, v{x} row_ror:{r} row_mask:0xf bank_mask:0xf")

    def cap(fn, *args):
        keep = a.lines
        a.lines = []
        fn(*args)
        out = [l.strip() for l in a.lines]
        a.lines = keep
        return out

    def weave(main, fill, every, first=0):
        fill = list(fill)
        for k, l in enumerate(main):
            if fill and k >= first and (k - first) % every == 0:
                a(fill.pop(0))
            a(l)
        for l in fill:
            a(l)

    def twpk(D, TC, TS, out):
        for p in range(2):
            a(f"v_pk_mul_f32 {V(t+2*p,2)}, {V(D+2*p,2)}, {V(TC+2*p,2)}")
            a(f"v_pk_mul_f32 {V(t+4+2*p,2)}, {V(D+4+2*p,2)}, {V(TC+2*p,2)}")
        for p in range(2):
            a(f"v_pk_fma_f32 {V(t+2*p,2)}, {V(D+4+2*p,2)}, {V(TS+2*p,2)}, {V(t+2*p,2)}")
            a(f"v_pk_fma_f32 {V(t+4+2*p,2)}, {V(D+2*p,2)}, {V(TS+2*p,2)}, {V(t+4+2*p,2)} neg_lo:[1,0,0] neg_hi:[1,0,0]")
        for i in range(4):
            a(f"v_cvt_pk_bf16_f32 v{out+i}, v{t+i}, v{t+4+i}")

    def tagcheck(first, n):
        a(f"v_xor_b32 v{t}, v{TGV}, v{first}")
        a(f"v_xor_b32 v{t+1}, v{TGV+1}, v{first+1}")
        for r in range(2, n):
            a(f"v_bitop3_b32 v{t+(r&1)}, v{first+r}, v{TGV+(r&1)}, v{t+(r&1)} bitop3:0xbe")
        a(f"v_bitop3_b32 v{t}, v{t}, v{t+1}, v{TGV+2} bitop3:0xa8")
        a(f"v_cmp_ne_u32 vcc, 0, v{t}")

    def dma_blocks(blks):
        a(f"s_lshl_b32 s{T0}, s{blks[0]}, 10")
        a(f"v_lshl_add_u32 v248, v0, 4, s{T0}")
        a(f"s_add_u32 m0, s{T0}, {L_TAB}")
        for k in blks[1]:
            a(f"global_load_lds_dwordx4 v248, s[{TABS}:{TABS+1}] offset:{k*1024}")

    def rotseq(base, step, outs):
        for i, (re, im) in enumerate(outs):
            a(f"v_cos_f32 v{t+6}, v{base}")
            a(f"v_sin_f32 v{t+7}, v{base}")
            if i < len(outs) - 1:
                a(f"v_add_f32 v{base}, v{base}, v{step}")
            a(f"v_cvt_pk_bf16_f32 v{re}, v{t+6}, v{t+7}")
            a(f"v_cvt_pk_bf16_f32 v{im}, -v{t+7}, v{t+6}")

    def a1consts(name):
        a(f"v_lshrrev_b32 v{t}, 1, v{VN}")
        a(f"v_lshlrev_b32 v{t}, 8, v{t}")
        a(f"v_add_u32 v{t}, s{PRM}, v{t}")
        a(f"v_and_b32 v{t+1}, 1, v{VN}")
        a(f"v_lshlrev_b32 v{t+2}, 1, v{VQ}")
        a(f"v_mul_u32_u24 v{t+2}, v{t+2}, v{t}")
        a(f"v_cmp_eq_u32 vcc, 0, v{t+1}")
        for i in range(2):
            a(f"v_and_b32 v{t+3}, 2047, v{t+2}")
            if i == 0:
                a(f"v_add_u32 v{t+2}, v{t+2}, v{t}")
            a(f"v_cvt_f32_u32 v{t+3}, v{t+3}")
            a(f"v_mul_f32 v{t+3}, {fhex(1/2048)}, v{t+3}")
            a(f"v_cos_f32 v{t+4}, v{t+3}")
            a(f"v_sin_f32 v{t+5}, v{t+3}")
            a(f"v_mul_f32 v{t+4}, 0.5, v{t+4}")
            a(f"v_mul_f32 v{t+5}, 0.5, v{t+5}")
            a(f"v_cndmask_b32_e64 v{t+6}, -v{t+5}, v{t+4}, vcc")
            a(f"v_cndmask_b32 v{t+7}, v{t+4}, v{t+5}, vcc")
            a(f"v_cvt_pk_bf16_f32 v{A1R+2*i}, v{t+6}, v{t+7}")
            a(f"v_cvt_pk_bf16_f32 v{A1I+2*i}, -v{t+7}, v{t+6}")
            a(f"v_cndmask_b32 v{t+6}, v{t+5}, v{t+4}, vcc")
            a(f"v_cndmask_b32_e64 v{t+7}, -v{t+4}, v{t+5}, vcc")
            a(f"v_cvt_pk_bf16_f32 v{A1R+2*i+1}, v{t+6}, -v{t+7}")
            a(f"v_cvt_pk_bf16_f32 v{A1I+2*i+1}, -v{t+7}, -v{t+6}")
            a(f"s_and_b32 s{T0}, s{PRM}, 127")
            a(f"s_cbranch_scc1 {name}_a1{i}")
            a(f"v_add_f32 v{t+4}, v{t+4}, v{t+4}")
            a(f"v_add_f32 v{t+5}, v{t+5}, v{t+5}")
            a(f"v_cndmask_b32 v{t+6}, 0, v{t+4}, vcc")
            a(f"v_sub_f32 v{t+7}, v{t+4}, v{t+6}")
            a(f"v_cvt_pk_bf16_f32 v{t+4}, v{t+6}, v{t+7}")
            a(f"v_cndmask_b32 v{t+6}, 0, v{t+5}, vcc")
            a(f"v_sub_f32 v{t+7}, v{t+5}, v{t+6}")
            a(f"v_cvt_pk_bf16_f32 v{t+5}, -v{t+6}, -v{t+7}")
            a(f"s_cmp_eq_u32 s{PRM}, 0")
            a(f"s_cselect_b32 s{T0}, -1, 0")
            a(f"s_cselect_b32 s{T1}, 0, -1")
            a(f"v_and_b32 v{A1R+2*i}, s{T0}, v{t+4}")
            a(f"v_and_b32 v{A1I+2*i}, s{T0}, v{t+5}")
            a(f"v_and_b32 v{A1R+2*i+1}, s{T1}, v{t+4}")
            a(f"v_and_b32 v{A1I+2*i+1}, s{T1}, v{t+5}")
            a.label(f"{name}_a1{i}")

    def p2addr():
        a(f"v_lshlrev_b32 v5, 12, v{VQ}")
        a(f"v_lshl_add_u32 v5, v{VN}, 4, v5")
        a(f"v_lshrrev_b32 v{t}, 2, v{VN}")
        a(f"v_xor_b32 v{t}, v{t}, v{VQ}")
        a(f"v_and_b32 v{t}, 1, v{t}")
        a(f"v_bfe_u32 v{t+1}, v{VN}, 1, 1")
        a(f"v_lshl_or_b32 v{t}, v{t}, 1, v{t+1}")
        a(f"s_lshr_b32 s{T0}, s3, 1")
        a(f"v_xor_b32 v{t}, s{T0}, v{t}")
        a(f"v_lshlrev_b32 v{t}, 4, v{t}")
        a(f"v_and_b32 v{t+2}, 7, v{VN}")
        a(f"v_lshl_add_u32 v{t}, v{t+2}, 6, v{t}")
        a(f"v_lshl_add_u32 v{t}, v{VQ}, 12, v{t}")
        a(f"v_lshrrev_b32 v{t+2}, 3, v{VN}")
        a(f"v_lshl_add_u32 v{t}, v{t+2}, 2, v{t}")
        a(f"s_and_b32 s{T0}, s3, 1")
        a(f"s_lshl_b32 s{T0}, s{T0}, 3")
        a(f"s_add_u32 s{T0}, s{T0}, {L_X2}")
        a(f"v_add_u32 v6, s{T0}, v{t}")
        a(f"v_xor_b32 v7, 48, v6")
        a(f"v_bfe_u32 v{t}, v{VN}, 2, 1")
        a(f"v_xor_b32 v{t}, v{t}, v{t+2}")
        a(f"v_lshl_or_b32 v{t}, v{t}, 1, v{t+2}")
        a(f"v_xor_b32 v{t}, v{t}, v{t+1}")
        a(f"v_xor_b32 v{t}, v{t}, v{VQ}")
        a(f"v_lshlrev_b32 v{t}, 4, v{t}")
        a(f"v_lshl_add_u32 v62, v{VN}, 6, v{t}")

    def p2read_addr(t0):
        a(f"s_lshl_b32 s{T0}, s{t0}, 4")
        a(f"s_and_b32 s{T0}, s{T0}, 32")
        a(f"v_xor_b32 v62, s{T0}, v62")
        a(f"s_lshl_b32 s{T0}, s{t0}, 11")
        a(f"s_add_u32 s{T0}, s{T0}, {L_X2}")
        a(f"v_add_u32 v62, s{T0}, v62")

    def rowoff():
        a(f"v_lshlrev_b32 v4, 5, v{VN}")
        a(f"v_and_b32 v{t}, 1, v{VQ}")
        a(f"v_lshl_add_u32 v4, v{t}, 9, v4")
        a(f"v_lshrrev_b32 v{t}, 1, v{VQ}")
        a(f"v_lshl_add_u32 v4, v{t}, 4, v4")

    def p_issue():
        for i in range(2):
            a(f"buffer_load_dwordx4 {V(8+4*i,4)}, v5, {R4(R_WS)}, s14 offen offset:{2048*i} sc1")

    def c1(name):
        a(f"s_branch {name}_pw")
        a.label(f"{name}_pl")
        p_issue()
        a.label(f"{name}_pw")
        a("s_waitcnt vmcnt(0)")
        a("v_swap_b32 v10, v12")
        a("v_swap_b32 v11, v13")
        mf = []
        for c in range(2):
            mf.append(f"{MF} {V(D1+8*c,4)}, {V(A1R,4)}, {V(8+4*c,4)}, 0")
            mf.append(f"{MF} {V(D1+8*c+4,4)}, {V(A1I,4)}, {V(8+4*c,4)}, 0")
        weave(cap(tagcheck, 8, 8), mf, 2, 2)
        retry(f"{name}_pl")
        stamp(6)
        for c in range(2):
            for i in range(4):
                a(f"v_cvt_pk_bf16_f32 v{16+4*c+i}, v{D1+8*c+i}, v{D1+8*c+4+i}")
                if i & 1:
                    a(f"ds_write2st64_b32 v{6+c}, v{16+4*c+i-1}, v{16+4*c+i} offset0:{4*(i-1)+2*c} offset1:{4*i+2*c}")

    a("s_cmp_ge_u32 s2, 256")
    a("s_cbranch_scc1 L_end")
    stamp(0)
    a(f"s_load_dwordx2 s[4:5], s[0:1], {KA_X}")
    a(f"s_load_dwordx16 s[16:31], s[0:1], {KA_WR}")
    a(f"s_getpc_b64 s[{TABS}:{TABS+1}]")
    a.label("L_pc")
    a("v_lshrrev_b32 v1, 6, v0")
    a(f"s_lshr_b32 s{KK}, s2, 3")
    if o.cpf:
        a(f"v_lshl_add_u32 v4, v0, 5, s{KK}")
        a("v_lshlrev_b32 v4, 7, v4")
        a(f"v_cmp_gt_u32 vcc, L_tabend - L_pc, v4")
        a("s_and_saveexec_b64 s[12:13], vcc")
        a("s_cbranch_execz L_nocpf")
        a(f"global_load_dword v249, v4, s[{TABS}:{TABS+1}]")
        a.label("L_nocpf")
        a("s_mov_b64 exec, s[12:13]")
    a("v_and_b32 v0, 63, v0")
    a("v_readfirstlane_b32 s3, v1")
    a(f"v_and_b32 v{VN}, 15, v0")
    a(f"v_lshrrev_b32 v{VQ}, 4, v0")
    a(f"s_add_u32 s{TABS}, s{TABS}, L_tab - L_pc")
    a(f"s_addc_u32 s{TABS+1}, s{TABS+1}, 0")
    a(f"s_and_b32 s{XC}, s2, 7")
    a(f"s_mov_b32 s{SPIN}, 400000")
    a(f"s_cmp_lt_u32 s{KK}, 16")
    a("s_cbranch_scc1 L_low")

    a(f"s_sub_u32 s{KK}, s{KK}, 16")
    a(f"s_lshl4_add_u32 s{SLOT}, s{XC}, s{KK}")
    a(f"s_lshl4_add_u32 s{PRM}, s{KK}, s{XC}")
    a(f"s_sub_u32 s{T2}, s{PRM}, 120")
    a(f"s_cmp_lt_u32 s{SLOT}, 8")
    a(f"s_cselect_b32 s{T2}, s{PRM}, s{T2}")
    a(f"s_cmp_lt_u32 s{SLOT}, 16")
    a(f"s_cselect_b32 s{PRM}, s{T2}, s{PRM}")
    a.label("L_a")
    a("s_cmp_ge_u32 s3, 4")
    a("s_cbranch_scc1 L_p1w")
    RW, WR, GW, DT, RID = 8, 24, 28, 32, 36
    a(f"s_lshl2_add_u32 s{T0}, s{KK}, s3")
    a(f"s_lshl_b32 s{T0}, s{T0}, 5")
    a(f"s_add_u32 s{T0}, s{T0}, s{XC}")
    a(f"s_lshl_b32 s12, s{T0}, 10")
    a(f"s_cmp_eq_u32 s{PRM}, 128")
    a(f"s_cselect_b32 s12, 0x40000000, s12")
    for k in range(1, 4):
        a(f"s_add_u32 s{12+k}, s12, {8192*k}")
    a("v_lshlrev_b32 v107, 4, v0")
    srds()
    for k in range(4):
        a(f"buffer_load_dwordx4 {V(RW+4*k,4)}, v107, {R4(R_X)}, s{12+k} offen")
    a.srd(R_A, 16, 1024)
    a(f"buffer_load_dwordx4 {V(WR,4)}, v107, {R4(R_A)}, 0 offen")
    dstamp(9, True)
    a(f"v_and_b32 v{RID}, 1, v{VQ}")
    a(f"v_lshrrev_b32 v108, 1, v{VQ}")
    a(f"v_lshl_add_u32 v{RID}, v{RID}, 1, v108")
    a(f"v_lshl_add_u32 v{RID}, v{RID}, 3, s{T0}")
    a(f"v_mov_b32 v108, {L_KEY}")
    a("v_mov_b32 v109, 1")
    a(f"s_mov_b32 s{RS}, 0xfffff800")
    a("s_branch L_a2c")

    LD, FR, F0R, F0I, WA, D, TT = 8, 24, 40, 44, 48, 64, 96
    a.label("L_p1w")
    a(f"v_lshlrev_b32 v107, 19, v{VQ}")
    a(f"v_bfe_u32 v108, v0, 2, 2")
    a(f"v_lshl_add_u32 v107, v108, 13, v107")
    a(f"v_and_b32 v109, 3, v0")
    a(f"v_lshl_add_u32 v107, v109, 4, v107")
    a(f"s_sub_u32 s{T2}, s3, 4")
    a(f"s_lshl_b32 s12, s{T2}, 15")
    a(f"s_lshl_b32 s{T1}, s{XC}, 10")
    a(f"s_add_u32 s12, s12, s{T1}")
    a(f"s_lshl_b32 s{T1}, s{KK}, 6")
    a(f"s_add_u32 s12, s12, s{T1}")
    a(f"s_cmp_eq_u32 s{PRM}, 128")
    a(f"s_cselect_b32 s12, 0x40000000, s12")
    for i in range(1, 4):
        a(f"s_add_u32 s{12+i}, s12, {i*131072}")
    a(f"v_mov_b32 v{t}, {L_KEY}")
    a(f"v_mov_b32 v{t+2}, 0")
    a(f"v_mov_b32 v{t+3}, 0")
    a(f"ds_write_b64 v{t}, {V(t+2,2)}")
    srds()
    if o.early:
        for i in range(4):
            a(f"buffer_load_dwordx4 {V(LD+4*i,4)}, v107, {R4(R_X)}, s{12+i} offen")
    dstamp(9, True)
    a(f"v_lshlrev_b32 v{t}, 2, v{VQ}")
    a(f"v_cvt_f32_u32 v{t}, v{t}")
    a(f"v_cvt_f32_u32 v{t+1}, v{VN}")
    a(f"v_mul_f32 v{t+1}, {fhex(1/16)}, v{t+1}")
    a(f"v_mul_f32 v{t}, v{t}, v{t+1}")
    rotseq(t, t + 1, [(F0R + i, F0I + i) for i in range(4)])
    a(f"v_lshrrev_b32 v{t}, 1, v109")
    a(f"v_mul_u32_u24 v{t}, 3, v{t}")
    a(f"v_lshlrev_b32 v{t+1}, 1, v{VQ}")
    a(f"v_and_b32 v{t+1}, 2, v{t+1}")
    a(f"v_xor_b32 v{t}, v{t}, v{t+1}")
    a(f"v_xor_b32 v{t}, s{T2}, v{t}")
    a(f"v_lshl_add_u32 v{t}, v{t}, 2, v108")
    a(f"v_lshlrev_b32 v{t}, 2, v{t}")
    a(f"v_lshl_add_u32 v{t}, v109, 8, v{t}")
    a(f"v_lshl_add_u32 v{t}, v{VQ}, 12, v{t}")
    a(f"v_and_b32 v{t+1}, 1, v109")
    a(f"v_lshl_add_u32 v{WA}, v{t+1}, 6, v{t}")
    a(f"v_xor_b32 v{WA+1}, 64, v{WA}")
    a(f"v_add_u32 v{WA+2}, 128, v{WA}")
    a(f"v_add_u32 v{WA+3}, 128, v{WA+1}")

    A2, A2X, SF, DS, XY, OUT = 112, 128, 52, 64, 96, 80
    a.label("L_a2c")
    a(f"s_xor_b32 s{WSEL}, s3, 4")
    a(f"v_lshl_add_u32 v{t}, v{VN}, 4, s{WSEL}")
    a(f"v_sub_u32 v{t+1}, 256, v{t}")
    a(f"s_cmp_lg_u32 s{WSEL}, 0")
    a("s_cbranch_scc1 L_a2d")
    a(f"v_cmp_gt_u32 vcc, 8, v{VN}")
    a(f"v_subrev_u32 v{t+2}, 120, v{t}")
    a(f"v_cndmask_b32 v{t}, v{t+2}, v{t}, vcc")
    a(f"v_sub_u32 v{t+1}, 256, v{t}")
    a(f"v_cmp_eq_u32 vcc, 0, v{VN}")
    a(f"v_mov_b32 v{t+2}, 128")
    a(f"v_cndmask_b32 v{t+1}, v{t+1}, v{t+2}, vcc")
    a.label("L_a2d")
    a(f"v_lshlrev_b32 v{t+2}, 2, v{VQ}")
    a(f"v_cvt_f32_u32 v{t+2}, v{t+2}")
    for al in range(2):
        a(f"v_cvt_f32_u32 v{t+al}, v{t+al}")
        a(f"v_mul_f32 v{t+al}, {fhex(1/256)}, v{t+al}")
        a(f"v_mul_f32 v{t+3}, v{t+2}, v{t+al}")
        rotseq(t + 3, t + al, [(A2 + 8 * al + i, A2 + 8 * al + 4 + i) for i in range(4)])
    a(f"s_cmp_lg_u32 s{WSEL}, 0")
    a("s_cbranch_scc1 L_a2e")
    a("s_mov_b32 vcc_lo, 0x00ff00ff")
    a("s_mov_b32 vcc_hi, 0x00ff00ff")
    for k in range(8):
        a(f"v_cndmask_b32_e64 v{A2X+k}, v{A2+k}, 0, vcc")
        a(f"v_cndmask_b32 v{A2+k}, 0, v{A2+k}, vcc")
        a(f"v_cndmask_b32 v{A2X+8+k}, 0, v{A2+8+k}, vcc")
        a(f"v_cndmask_b32_e64 v{A2+8+k}, v{A2+8+k}, 0, vcc")
    a.label("L_a2e")
    a(f"s_sub_u32 s{T0}, 16, s{WSEL}")
    a(f"s_cmp_eq_u32 s{WSEL}, 0")
    a(f"s_cselect_b32 s{T0}, 8, s{T0}")
    a(f"v_bfe_u32 v{t}, v{VN}, 2, 1")
    a(f"v_xor_b32 v{t}, v{t}, v{VN}")
    a(f"v_lshrrev_b32 v{t+1}, 3, v{VN}")
    a(f"v_mul_u32_u24 v{t+2}, 3, v{t+1}")
    a(f"v_xor_b32 v{t+2}, v{t+2}, v{VQ}")
    a(f"v_lshlrev_b32 v{t+2}, 4, v{t+2}")
    a(f"v_lshl_add_u32 v{t}, v{t}, 6, v{t+2}")
    for k, al in enumerate((WSEL, T0)):
        a(f"s_lshl_b32 s{T1}, s{al}, 3")
        a(f"s_and_b32 s{T1}, s{T1}, 32")
        a(f"s_lshl_b32 s{T2}, s{al}, 10")
        a(f"s_or_b32 s{T1}, s{T1}, s{T2}")
        a(f"v_xor_b32 v{60+k}, s{T1}, v{t}")
    a(f"v_lshlrev_b32 v63, 16, v{VQ}")
    a(f"v_lshl_add_u32 v63, v{t+1}, 14, v63")
    a(f"v_and_b32 v{t}, 7, v{VN}")
    a(f"v_lshl_add_u32 v63, v{t}, 4, v63")
    a(f"s_lshl_b32 s6, s{WSEL}, 18")
    a(f"s_lshl_b32 s{T1}, s{XC}, 11")
    a(f"s_add_u32 s6, s6, s{T1}")
    a(f"s_lshl_b32 s{T1}, s{KK}, 7")
    a(f"s_add_u32 s6, s6, s{T1}")
    a(f"s_add_u32 s6, s6, {WS_P:#x}")
    a(f"s_add_u32 s7, s6, 32768")
    dstamp(10, True)
    tag_ready()
    dstamp(11, True)
    tagv(TGV)
    rowoff()
    a(f"s_lshl_b32 s{T0}, s3, 8")
    a(f"s_add_u32 s{ROWA}, s{T0}, s{PRM}")
    a(f"s_sub_u32 s{ROWB}, 2048, s{ROWA}")
    a(f"s_and_b32 s{ROWB}, s{ROWB}, 2047")
    a.srd(R_B, 24, 1024)

    def own_rows():
        a(f"s_lshl_b32 s12, s{ROWA}, 10")
        a(f"s_lshl_b32 s13, s{ROWB}, 10")
        for rho in range(2):
            a(f"buffer_load_dwordx4 {V(XR2+4*rho,4)}, v4, {R4(R_X)}, s{12+rho} offen")
        a(f"buffer_load_dwordx4 {V(GW2,4)}, v4, {R4(R_B)}, 0 offen")

    a("s_cmp_ge_u32 s3, 4")
    a("s_cbranch_scc1 L_p1s")
    a(f"s_lshl_b32 s{T0}, s{SLOT}, 3")
    a(f"s_add_u32 s{T0}, s{T0}, {WS_KEY:#x}")
    a("v_lshlrev_b32 v37, 11, v0")
    a(f"v_mov_b32 v39, s{TAG}")
    a(f"s_waitcnt vmcnt({o.b0v})")
    stamp(2)
    a("s_barrier")
    a("s_waitcnt vmcnt(0)")
    stamp(3)
    for k in range(4):
        for r in range(4):
            a(f"v_dot2_f32_bf16 v{DT+r}, v{RW+4*r+k}, v{WR+k}, {('v%d' % (DT+r)) if k else 0}")
    fold4(DT, DT + 1, DT + 2, DT + 3)
    rowsum(DT)
    a(f"v_ashrrev_i32 v{DT+1}, 31, v{DT}")
    a(f"v_or_b32 v{DT+1}, 0x80000000, v{DT+1}")
    a(f"v_xor_b32 v{DT+1}, v{DT+1}, v{DT}")
    a(f"v_and_or_b32 v{DT+1}, v{DT+1}, s{RS}, v{RID}")
    a("s_mov_b32 exec_lo, 0x10001")
    a("s_mov_b32 exec_hi, 0x10001")
    a(f"ds_max_u32 v108, v{DT+1}")
    a("s_mov_b64 exec, 1")
    a(f"ds_add_rtn_u32 v{DT+2}, v108, v109 offset:4")
    a("s_mov_b64 exec, -1")
    a("ds_read_b32 v38, v108")
    a("s_waitcnt lgkmcnt(0)")
    a(f"v_readfirstlane_b32 s{T1}, v{DT+2}")
    a(f"s_cmp_lg_u32 s{T1}, 3")
    a("s_cbranch_scc1 L_b1a")
    a(f"s_cmp_eq_u32 s{PRM}, 128")
    a("s_cbranch_scc1 L_ack128")
    if o.kr < 64:
        a(f"s_mov_b64 exec, {(1 << o.kr) - 1:#x}")
    a(f"buffer_store_dwordx2 v[38:39], v37, {R4(R_WS)}, s{T0} offen sc1")
    a("s_mov_b64 exec, -1")
    a("s_branch L_b1a")
    a.label("L_ack128")
    a("s_mov_b64 exec, 1")
    a(f"s_movk_i32 s{T0}, {WS_ACK:#x}")
    a(f"buffer_store_dword v39, v37, {R4(R_WS)}, s{T0} offen sc1")
    a("s_mov_b64 exec, -1")
    a.label("L_b1a")
    own_rows()
    a("s_branch L_b1")
    a.label("L_p1s")
    stamp(2)
    a("s_barrier")
    if not o.early:
        for i in range(4):
            a(f"buffer_load_dwordx4 {V(LD+4*i,4)}, v107, {R4(R_X)}, s{12+i} offen")
    a(f"s_lshl_b32 s{T3}, s{WSEL}, 1")
    dma_blocks((T3, (0, 1)))
    a(f"s_and_b32 s{T3}, s{WSEL}, 1")
    a(f"s_add_u32 s{T3}, s{T3}, 8")
    dma_blocks((T3, (0,)))
    nt = 1 if o.tlb else 0
    if o.tlb:
        a(f"s_lshl_b32 s{T3}, s{WSEL}, 21")
        a(f"s_and_b32 s{T3}, s{T3}, {WS_P:#x}")
        a(f"v_mov_b32 v252, 0x3000")
        a(f"buffer_load_dword v252, v252, {R4(R_WS)}, s{T3} offen")
    a(f"s_waitcnt vmcnt({3 + nt})")
    stamp(3)
    for c in range(4):
        for i in range(2):
            b = 2 * (c >> 1)
            a(f"v_pk_mov_b32 {V(FR+4*c+2*i,2)}, {V(LD+8*i+b,2)}, {V(LD+8*i+4+b,2)} op_sel:[{c&1},{c&1}]")
        if c:
            a(f"{MF} {V(D+8*(c-1),4)}, {V(F0R,4)}, {V(FR+4*(c-1),4)}, 0")
            a(f"{MF} {V(D+8*(c-1)+4,4)}, {V(F0I,4)}, {V(FR+4*(c-1),4)}, 0")
    a(f"{MF} {V(D+24,4)}, {V(F0R,4)}, {V(FR+12,4)}, 0")
    a(f"{MF} {V(D+28,4)}, {V(F0I,4)}, {V(FR+12,4)}, 0")
    for c in range(4):
        for i in range(4):
            a(f"v_cvt_pk_bf16_f32 v{LD+4*c+i}, v{D+8*c+i}, v{D+8*c+4+i}")
            if i & 1:
                a(f"ds_write2st64_b32 v{WA+c}, v{LD+4*c+i-1}, v{LD+4*c+i} offset0:{4*(i-1)} offset1:{4*i}")
    own_rows()
    a(f"s_waitcnt vmcnt({nt + 3}) lgkmcnt(0)")
    a.label("L_b1")
    stamp(4)
    a("s_barrier")
    a(f"s_cmp_eq_u32 s{PRM}, 128")
    a("s_cbranch_scc1 L_nos2")
    for al in range(2):
        a(f"ds_read_b128 {V(SF+4*al,4)}, v{60+al}")
    a("s_mov_b32 vcc_lo, 0x00ff00ff")
    a("s_mov_b32 vcc_hi, 0x00ff00ff")
    for al in range(2):
        lg(1 - al)
        a(f"{MF} {V(DS+8*al,4)}, {V(A2+8*al,4)}, {V(SF+4*al,4)}, 0")
        a(f"{MF} {V(DS+8*al+4,4)}, {V(A2+8*al+4,4)}, {V(SF+4*al,4)}, 0")
    a(f"s_cmp_lg_u32 s{WSEL}, 0")
    a("s_cbranch_scc1 L_s2b")
    for al in range(2):
        a(f"{MF} {V(DS+8*al,4)}, {V(A2X+8*al,4)}, {V(SF+4*(1-al),4)}, {V(DS+8*al,4)}")
        a(f"{MF} {V(DS+8*al+4,4)}, {V(A2X+8*al+4,4)}, {V(SF+4*(1-al),4)}, {V(DS+8*al+4,4)}")
    a.label("L_s2b")
    for al in range(2):
        for i in range(4):
            a(f"v_cvt_pk_bf16_f32 v{XY+4*al+i}, v{DS+8*al+i}, v{DS+8*al+4+i}")
        for i in range(4):
            a(f"v_bitop3_b32 v{XY+4*al+i}, v{TGV+2}, v{TGV+al}, v{XY+4*al+i} bitop3:0xca")
    for p in range(2):
        for al in range(2):
            a(f"v_cndmask_b32_dpp v{OUT+4*p+al}, v{XY+4*al+2*p+1}, v{XY+4*al+2*p}, vcc row_ror:8 row_mask:0xf bank_mask:0xf")
    a("s_not_b64 vcc, vcc")
    for p in range(2):
        for al in range(2):
            a(f"v_cndmask_b32_dpp v{OUT+4*p+2+al}, v{XY+4*al+2*p}, v{XY+4*al+2*p+1}, vcc row_ror:8 row_mask:0xf bank_mask:0xf")
        a(f"buffer_store_dwordx4 {V(OUT+4*p,4)}, v63, {R4(R_WS)}, s{6+p} offen sc1")
    a.label("L_nos2")
    stamp(5)
    a.srd(R_OUT, 26, 2 << 20)
    touch([(R_OUT, 0)])
    a(f"s_mov_b32 s{REP}, s{SLOT}")
    keys_addr(PB)
    a("s_cmp_lg_u32 s3, 7")
    a("s_cbranch_scc1 L_a3")
    keys_issue(PB)
    a.label("L_a3")
    a("v_lshlrev_b32 v107, 4, v0")
    a(f"ds_read_b128 {V(FRE,4)}, v107 offset:{L_TAB}")
    a(f"ds_read_b128 {V(FIM,4)}, v107 offset:{L_TAB+1024}")
    for k in range(4):
        a(f"ds_read_b128 {V(TW+16+4*k,4)}, v107 offset:{L_TAB+2048+1024*k}")
    for k in range(4):
        a(f"ds_read_b128 {V(B3+4*k,4)}, v107 offset:{L_TAB+6144+1024*k}")
    a1consts("L_a")
    p2addr()
    p2read_addr(3)
    a(f"s_lshl_b32 s14, s{SLOT}, 14")
    a(f"s_lshl_b32 s{T0}, s3, 8")
    a(f"s_add_u32 s14, s14, s{T0}")
    a(f"s_add_u32 s14, s14, {WS_P:#x}")
    a(f"v_mov_b32 v109, {L_SEL}")
    a("s_waitcnt lgkmcnt(0)")
    a(f"v_mov_b32 v{t}, 0x80000000")
    for i in range(4):
        a(f"v_xor_b32 v{FRC+i}, v{t}, v{FRE+i}")
        a(f"v_xor_b32 v{FIC+i}, v{t}, v{FIM+i}")
    dstamp(9, False)
    a("s_cmp_lg_u32 s3, 7")
    a("s_cbranch_scc1 L_a5")
    keys_wait(PB, True)
    a(f"s_and_b32 s{SEL}, s{SEL}, 2047")
    a(f"v_mov_b32 v110, s{SEL}")
    a("ds_write_b32 v109, v110")
    a("s_waitcnt lgkmcnt(0)")
    a.label("L_a5")
    a("s_waitcnt vmcnt(0)")
    dstamp(10, False)
    a("s_barrier")
    dstamp(11, False)
    p_issue()
    a("ds_read_b32 v109, v109")
    for k in range(4):
        for rho in range(2):
            a(f"v_dot2_f32_bf16 v{110+rho}, v{XR2+4*rho+k}, v{GW2+k}, {('v%d' % (110+rho)) if k else 0}")
    for rho in range(2):
        for k in range(2):
            a(f"v_permlane16_swap_b32 v{XR2+4*rho+k}, v{XR2+4*rho+2+k}")
    a("v_permlane32_swap_b32 v110, v111")
    a("v_add_f32 v110, v110, v111")
    a("v_mov_b32 v111, v110")
    a("v_permlane16_swap_b32 v110, v111")
    a("v_add_f32 v110, v110, v111")
    xg = []
    for rho in range(2):
        for k in range(4):
            x = XR2 + 4 * rho + k
            d = XG + 8 * rho + 2 * k
            xg.append(f"v_lshlrev_b32 v{d}, 16, v{x}")
            xg.append(f"v_and_b32 v{d+1}, 0xffff0000, v{x}")
    ch = cap(rowsum, 110) + cap(sigmoid, 110, 110)
    for l in ch:
        a(l)
        a(xg.pop(0))
        a(xg.pop(0))
    a("v_mov_b32 v111, v110")
    a("v_permlane32_swap_b32 v110, v111")
    a("s_waitcnt lgkmcnt(0)")
    a(f"v_readfirstlane_b32 s{SEL}, v109")
    a(f"v_sub_f32 v{t}, 1.0, v110")
    a(f"v_sub_f32 v{t+1}, 1.0, v111")
    for k in range(8):
        a(f"v_pk_mul_f32 {V(TW+2*k,2)}, {V(TW+16+2*k,2)}, v[110:111] op_sel:[0,0] op_sel_hi:[1,0]")
    for k in range(8):
        a(f"v_pk_mul_f32 {V(TW+16+2*k,2)}, {V(TW+16+2*k,2)}, v[110:111] op_sel:[0,1] op_sel_hi:[1,1]")
    for rho in range(2):
        for k in range(4):
            d = XG + 8 * rho + 2 * k
            a(f"v_pk_mul_f32 {V(d,2)}, {V(d,2)}, {V(t,2)} op_sel:[0,{rho}] op_sel_hi:[1,{rho}]")
    c1("L_a")
    a("s_waitcnt lgkmcnt(0)")
    a("s_barrier")
    stamp(7)
    for h in range(2):
        a(f"ds_read_b128 {V(16+4*h,4)}, v62 offset:{h*1024}")

    def c2(rho, h):
        k = 2 * rho + h
        return [f"{MF} {V(D2+8*k,4)}, {V(16+4*h,4)}, {V(FRC if rho else FRE,4)}, 0",
                f"{MF} {V(D2+8*k+4,4)}, {V(16+4*h,4)}, {V(FIC if rho else FIM,4)}, 0"]

    def tw(rho, h):
        k = 2 * rho + h
        return cap(twpk, D2 + 8 * k, TW + 8 * k, TW + 8 * k + 4, GF + 4 * k)

    def c3(rho, h):
        r = []
        for tau in range(2):
            acc = V(D3 + 8 * rho + 4 * tau, 4)
            cin = acc if h else V(XG + 8 * rho + 4 * tau, 4)
            r.append(f"{MF} {acc}, {V(GF+4*(2*rho+h),4)}, {V(B3+8*h+4*tau,4)}, {cin}")
        return r

    def outrow(rho):
        l = a.L("sk")
        for k in range(4):
            a(f"v_cvt_pk_bf16_f32 v{8+4*rho+k}, v{D3+8*rho+2*k}, v{D3+8*rho+2*k+1}")
        for k in range(2):
            a(f"v_permlane16_swap_b32 v{8+4*rho+k}, v{8+4*rho+2+k}")
        a(f"s_cmp_eq_u32 s{ROWA+rho}, s{SEL}")
        a(f"s_cbranch_scc1 {l}")
        if rho:
            a(f"s_and_b32 s{T0}, s{PRM}, 127")
            a(f"s_cbranch_scc0 {l}")
        a(f"buffer_store_dwordx4 {V(8+4*rho,4)}, v4, {R4(R_OUT)}, s{12+rho} offen sc1")
        a.label(l)

    lg(1)
    for l in c2(0, 0):
        a(l)
    lg(0)
    for l in c2(0, 1) + c2(1, 0)[:1]:
        a(l)
    weave(tw(0, 0), c2(1, 0)[1:] + c2(1, 1), 4, 2)
    weave(tw(0, 1), c3(0, 0), 4, 2)
    weave(tw(1, 0), c3(0, 1), 4, 2)
    weave(tw(1, 1), c3(1, 0), 4, 2)
    a(c3(1, 1)[0])
    a(c3(1, 1)[1])
    outrow(0)
    outrow(1)
    stamp(8)
    fini(12)

    a.label("L_low")
    a(f"s_cmp_ge_u32 s{KK}, 8")
    a("s_cbranch_scc1 L_h")
    a(f"s_cmp_lt_u32 s{XC}, 4")
    a("s_cbranch_scc1 L_f")
    a(f"s_cmp_lt_u32 s{KK}, 6")
    a("s_cbranch_scc1 L_f")
    a(f"s_cmp_eq_u32 s{KK}, 7")
    a("s_cbranch_scc1 L_fin")
    a(f"s_cmp_lg_u32 s{XC}, 4")
    a("s_cbranch_scc1 L_end")
    a(f"s_mov_b32 s{PRM}, 128")
    a(f"s_mov_b32 s{SLOT}, 0")
    a("s_branch L_a")

    a.label("L_h")
    if not o.helper:
        a("s_endpgm")
    a(f"s_lshl_b32 s{T0}, s{XC}, 3")
    a(f"s_mul_i32 s{T2}, s{XC}, 6")
    a(f"s_add_u32 s{T2}, s{T2}, 8")
    a(f"s_cmp_lt_u32 s{XC}, 4")
    a(f"s_cselect_b32 s{T0}, s{T0}, s{T2}")
    a(f"s_cselect_b32 s{T1}, 16, 14")
    a(f"s_cmp_ge_u32 s{KK}, s{T1}")
    a("s_cbranch_scc1 L_end")
    a(f"s_add_u32 s{PRM}, s{T0}, s{KK}")
    a(f"s_sub_u32 s{PRM}, s{PRM}, 8")
    a("s_waitcnt lgkmcnt(0)")
    if o.stouch:
        for k, p in enumerate((16, 24, 26, 18, 20, 22)):
            a(f"s_load_dword s{64+k}, s[{p}:{p+1}], 0")
        a("s_add_u32 s30, s30, 0x200000")
        a("s_addc_u32 s31, s31, 0")
        a(f"s_load_dword s70, s[30:31], 0")
    a("s_cmp_ge_u32 s3, 4")
    a("s_cbranch_scc1 L_h2")
    a(f"s_bitcmp1_b32 s{PRM}, 0")
    a(f"s_cselect_b32 s{R_A}, s20, s18")
    a(f"s_cselect_b32 s{R_A+1}, s21, s19")
    a(f"s_cselect_b32 s{T0}, 0, 256")
    a(f"s_mov_b32 s{R_A+2}, {512*3584:#x}")
    a(f"s_mov_b32 s{R_A+3}, 0x20000")
    a(f"s_lshl_b32 s{T1}, s3, 6")
    a(f"s_add_u32 s{T0}, s{T0}, s{T1}")
    a(f"v_add_u32 v4, s{T0}, v0")
    a("v_mul_u32_u24 v4, 3584, v4")
    a(f"s_lshr_b32 s{T0}, s{PRM}, 1")
    a(f"s_lshl_b32 s{T0}, s{T0}, 7")
    a(f"buffer_load_dword v5, v4, {R4(R_A)}, s{T0} offen")
    a("s_endpgm")
    a.label("L_h2")
    a.srd(R_C, 22, 1792 * 1024)
    a(f"s_lshl_b32 s{T0}, s{PRM}, 15")
    a(f"s_and_b32 s{T1}, s3, 3")
    a(f"s_lshl_b32 s{T1}, s{T1}, 13")
    a(f"s_add_u32 s{T0}, s{T0}, s{T1}")
    a("v_lshlrev_b32 v4, 7, v0")
    a(f"buffer_load_dword v5, v4, {R4(R_C)}, s{T0} offen")
    a("s_endpgm")

    a.label("L_f")
    WGF, WDF, XF, DG, DD = 16, 48, 64, 80, 88
    a(f"s_lshl3_add_u32 s{T0}, s{XC}, s{KK}")
    a(f"s_mul_i32 s{T2}, s{XC}, 6")
    a(f"s_add_u32 s{T2}, s{T2}, 8")
    a(f"s_add_u32 s{T2}, s{T2}, s{KK}")
    a(f"s_cmp_lt_u32 s{XC}, 4")
    a(f"s_cselect_b32 s{PRM}, s{T0}, s{T2}")
    a(f"s_mov_b32 s{REP}, s{PRM}")
    a(f"s_bitcmp1_b32 s{PRM}, 0")
    a(f"s_cselect_b32 s{WSEL}, {7 if o.rot else 0}, 0")
    a(f"s_xor_b32 s{WSEL}, s{WSEL}, s3")
    a("v_lshrrev_b32 v8, 2, v0")
    a("v_mul_u32_u24 v4, 3584, v8")
    a("v_lshrrev_b32 v8, 2, v8")
    a("v_and_b32 v8, 2, v8")
    a("v_and_b32 v9, 3, v0")
    a("v_xor_b32 v8, v8, v9")
    a("v_lshl_add_u32 v4, v8, 4, v4")
    a("v_lshrrev_b32 v8, 3, v0")
    a("v_and_b32 v9, 2, v8")
    a("v_and_b32 v10, 7, v0")
    a("v_xor_b32 v9, v9, v10")
    a("v_lshlrev_b32 v9, 4, v9")
    a("v_lshl_add_u32 v5, v8, 10, v9")
    a("v_xor_b32 v6, 64, v5")
    a(f"s_and_b32 s{T0}, s{WSEL}, 3")
    a(f"s_mul_i32 s12, s{T0}, {128*3584}")
    a(f"s_lshl_b32 s{T1}, s{PRM}, 6")
    a(f"s_add_u32 s12, s12, s{T1}")
    a(f"s_lshl_b32 s13, s{PRM}, 15")
    a(f"s_lshl_b32 s{T1}, s3, 7")
    a(f"s_add_u32 s13, s13, s{T1}")
    a(f"s_lshl_b32 s14, s3, 13")
    a(f"s_lshl_b32 s6, s3, 12")
    a(f"s_add_u32 s6, s6, {LF_WD}")
    srds()
    a(f"s_cmp_lt_u32 s{WSEL}, 4")
    a(f"s_cselect_b32 s{R_A}, s18, s20")
    a(f"s_cselect_b32 s{R_A+1}, s19, s21")
    a(f"s_mov_b32 s{R_A+2}, {512*3584:#x}")
    a(f"s_mov_b32 s{R_A+3}, 0x20000")
    a.srd(R_C, 22, 1792 * 1024)
    for n in range(8):
        a(f"s_add_u32 m0, s14, {n*1024}")
        a(f"buffer_load_dwordx4 v4, {R4(R_A)}, s12 offen lds")
        if n < 7:
            a(f"s_add_u32 s12, s12, {16*3584}")
    for n in range(4):
        a(f"s_add_u32 m0, s6, {n*1024}")
        a(f"buffer_load_dwordx4 v{5+(n&1)}, {R4(R_C)}, s13 offen lds")
        if n < 3:
            a(f"s_add_u32 s13, s13, 8192")
    nt = touch([(R_X, 0), (R_WS, 0x3000)])
    a(f"v_lshrrev_b32 v8, 2, v{VN}")
    a(f"v_lshl_add_u32 v9, v{VQ}, 3, v8")
    a("v_and_b32 v10, 3, v0")
    a("v_lshlrev_b32 v10, 3, v10")
    a(f"v_and_b32 v11, 1, v{VQ}")
    a("v_lshl_add_u32 v7, v9, 6, v10")
    a("v_lshl_add_u32 v7, v11, 5, v7")
    a("v_add_u32 v7, s14, v7")
    a("v_xor_b32 v12, 32, v7")
    a("v_lshrrev_b32 v8, 1, v8")
    a("v_lshl_add_u32 v8, v11, 1, v8")
    a("v_lshl_add_u32 v13, v9, 7, v10")
    a("v_lshl_add_u32 v13, v8, 5, v13")
    a("v_add_u32 v13, s6, v13")
    a(f"s_and_b32 s{T0}, s{WSEL}, 3")
    a(f"s_lshl_b32 s{T0}, s{T0}, 8")
    a(f"s_add_u32 s{T0}, s{T0}, {LF_X}")
    a(f"v_lshlrev_b32 v14, 4, v{VQ}")
    a(f"v_add_u32 v15, s{T0}, v14")
    a(f"s_lshl_b32 s{T0}, s{WSEL}, 7")
    a(f"s_add_u32 s{T0}, s{T0}, {LF_E}")
    a(f"v_add_u32 v107, s{T0}, v14")
    a(f"v_lshl_add_u32 v111, v{VQ}, 5, v10")
    a(f"v_add_u32 v111, {LF_E}, v111")
    a(f"v_lshlrev_b32 v108, 3, v{VQ}")
    a(f"v_lshl_add_u32 v108, v{VN}, 5, v108")
    a("v_lshlrev_b32 v109, 4, v0")
    a(f"s_lshr_b32 s{T0}, s3, 1")
    a(f"s_mul_i32 s12, s{T0}, {56*256}")
    a(f"s_and_b32 s{T0}, s3, 1")
    a(f"s_lshl_b32 s{T0}, s{T0}, 7")
    a(f"s_add_u32 s12, s12, s{T0}")
    a(f"s_lshl_b32 s{T1}, s{PRM}, 8")
    a(f"s_add_u32 s12, s12, s{T1}")
    a(f"s_add_u32 s12, s12, {WS_PART:#x}")
    keys_addr(PB)
    tag_ready()
    tagv(TGV)
    stamp(7)
    for sg in range(4):
        a(f"s_waitcnt vmcnt({10 - 2*sg + nt})")
        for tt in range(2):
            for hh in range(2):
                a(f"ds_read_b64_tr_b16 {V(WGF+8*sg+4*tt+2*hh,2)}, v{12 if tt else 7} offset:{sg*2048+hh*256}")
    a(f"s_waitcnt vmcnt({nt})")
    for u in range(4):
        a(f"v_xor_b32 v8, {32*u}, v13")
        for hh in range(2):
            a(f"ds_read_b64_tr_b16 {V(WDF+4*u+2*hh,2)}, v8 offset:{hh*512}")
    stamp(2)
    a("s_cmp_lg_u32 s3, 0")
    a("s_cbranch_scc1 L_f2")
    keys_wait(PB)
    stamp(3)
    a(f"s_and_b32 s{SEL}, s{SEL}, 2047")
    a(f"s_lshl_b32 s{T0}, s{SEL}, 10")
    a(f"s_mov_b32 m0, {LF_X}")
    a(f"buffer_load_dwordx4 v109, {R4(R_X)}, s{T0} offen lds")
    a("s_waitcnt vmcnt(0)")
    a.label("L_f2")
    a("s_waitcnt lgkmcnt(0)")
    stamp(4)
    a("s_barrier")
    stamp(5)
    for sg in range(4):
        a(f"ds_read_b128 {V(XF+4*sg,4)}, v15 offset:{sg*64}")
    for sg in range(4):
        lg(3 - sg)
        for tt in range(2):
            a(f"{MF} {V(DG+4*tt,4)}, {V(WGF+8*sg+4*tt,4)}, {V(XF+4*sg,4)}, {V(DG+4*tt,4) if sg else 0}")
    a("s_mov_b32 exec_lo, 0x10001")
    a("s_mov_b32 exec_hi, 0x10001")
    for tt in range(2):
        a(f"ds_write_b128 v107, {V(DG+4*tt,4)} offset:{tt*64}")
    a("s_mov_b64 exec, -1")
    a("s_waitcnt lgkmcnt(0)")
    a("s_barrier")
    for k in range(8):
        a(f"ds_read_b64 {V(XF+2*k,2)}, v111 offset:{128*k}")
    for m in range(2):
        lg(4 - 4 * m)
        b = XF + 8 * m
        a(f"v_pk_add_f32 {V(b,2)}, {V(b,2)}, {V(b+2,2)}")
        a(f"v_pk_add_f32 {V(b+4,2)}, {V(b+4,2)}, {V(b+6,2)}")
        a(f"v_pk_add_f32 {V(b,2)}, {V(b,2)}, {V(b+4,2)}")
        if m == 0:
            weave(cap(sigmoid, XF + 2, XF), cap(sigmoid, XF + 3, XF + 1), 1)
            a(f"v_pk_mul_f32 {V(XF,2)}, {V(XF,2)}, {V(XF+2,2)}")
    a(f"v_pk_mul_f32 {V(XF,2)}, {V(XF,2)}, {V(XF+8,2)}")
    a(f"v_cvt_pk_bf16_f32 v{XF}, v{XF}, v{XF+1}")
    for k in range(4):
        a(f"v_mov_b32_dpp v{XF+8+k}, v{XF} quad_perm:[{k},{k},{k},{k}] row_mask:0xf bank_mask:0xf")
    for u in range(4):
        a(f"{MF} {V(DD+4*u,4)}, {V(WDF+4*u,4)}, {V(XF+8,4)}, 0")
    for u in range(4):
        a(f"s_mov_b32 exec_lo, {0x00010001 << u:#x}")
        a(f"s_mov_b32 exec_hi, {0x00010001 << u:#x}")
        a(f"v_cvt_pk_bf16_f32 v120, v{DD+4*u}, v{DD+4*u+1}")
        a(f"v_cvt_pk_bf16_f32 v121, v{DD+4*u+2}, v{DD+4*u+3}")
    a("s_mov_b32 exec_lo, 0x000f000f")
    a("s_mov_b32 exec_hi, 0x000f000f")
    a(f"v_bitop3_b32 v120, v{TGV+2}, v{TGV}, v120 bitop3:0xca")
    a(f"v_bitop3_b32 v121, v{TGV+2}, v{TGV+1}, v121 bitop3:0xca")
    a(f"buffer_store_dwordx2 v[120:121], v108, {R4(R_WS)}, s12 offen sc1")
    stamp(6)
    fini(8)

    a.label("L_fin")
    rowoff()
    a(f"s_add_u32 s{REP}, s{XC}, 56")
    srds()
    a.srd(R_B, 24, 1024)
    a(f"buffer_load_dwordx4 {V(GW,4)}, v4, {R4(R_B)}, 0 offen")
    dma_blocks((3, (0,)))
    a(f"s_and_b32 s{T3}, s3, 1")
    a(f"s_add_u32 s{T3}, s{T3}, 8")
    dma_blocks((T3, (0,)))
    a.srd(R_OUT, 26, 2 << 20)
    touch([(R_WS, WS_P), (R_WS, 0x3000), (R_OUT, 0), (R_X, 0)])
    p2addr()
    keys_addr(PB)
    a(f"s_and_b32 s{T0}, s{XC}, 3")
    a(f"s_mul_i32 s7, s{T0}, {56*256}")
    a(f"s_lshl_b32 s{T1}, s3, 11")
    a(f"s_add_u32 s7, s7, s{T1}")
    a(f"s_add_u32 s7, s7, {WS_PART - 2048:#x}")
    a("v_lshlrev_b32 v107, 4, v0")
    a(f"v_and_b32 v108, 1, v{VQ}")
    a(f"v_lshrrev_b32 v111, 1, v{VQ}")
    a("v_lshl_add_u32 v108, v108, 1, v111")
    a(f"v_lshl_add_u32 v108, v{VN}, 3, v108")
    a(f"s_lshl_b32 s{T0}, s3, 9")
    a(f"s_add_u32 s{T0}, s{T0}, {L_Y - 512}")
    a(f"v_lshl_add_u32 v108, v108, 2, s{T0}")
    a(f"v_and_b32 v111, 7, v{VN}")
    a(f"v_lshlrev_b32 v111, 6, v111")
    a(f"v_lshl_add_u32 v111, v{VQ}, 4, v111")
    a(f"v_mov_b32 v109, {L_SEL}")
    tag_ready()
    a("s_cmp_lg_u32 s3, 0")
    a("s_cbranch_scc1 L_fin0")
    a(f"s_cmp_eq_u32 s{XC}, 4")
    a("s_cbranch_scc1 L_fin0")
    a(f"s_and_b32 s{T0}, s{XC}, 3")
    a(f"s_lshl_b32 s{T0}, s{T0}, 7")
    a(f"v_mov_b32 v{t}, {WS_ACK:#x}")
    a(f"v_mov_b32 v{t+1}, s{TAG}")
    a("s_mov_b64 exec, 1")
    a(f"buffer_store_dword v{t+1}, v{t}, {R4(R_WS)}, s{T0} offen sc1")
    a("s_mov_b64 exec, -1")
    a.label("L_fin0")
    tagv(TGV)
    a("s_waitcnt vmcnt(0)")
    a("s_barrier")
    a(f"s_bfe_u32 s{T0}, s{XC}, 0x10001")
    a(f"s_lshl_b32 s{T0}, s{T0}, 10")
    a(f"v_add_u32 v110, s{T0}, v107")
    a(f"ds_read_b128 {V(FRE,4)}, v107 offset:{L_TAB}")
    a(f"ds_read_b128 {V(FIM,4)}, v107 offset:{L_TAB+1024}")
    for k in range(4):
        a(f"ds_read_b128 {V(TW+4*k,4)}, v107 offset:{L_TAB+2048+1024*k}")
    for h in range(2):
        a(f"ds_read_b128 {V(B3+4*h,4)}, v110 offset:{L_TAB+6144+2048*h}")
    stamp(2)
    a("s_cmp_lg_u32 s3, 0")
    a("s_cbranch_scc1 L_fin1a")
    keys_wait(PB)
    a(f"v_mov_b32 v110, s{SEL}")
    a("ds_write_b32 v109, v110")
    a(f"s_and_b32 s{T0}, s{SEL}, 2047")
    a(f"s_lshl_b32 s12, s{T0}, 10")
    a(f"buffer_load_dwordx4 {V(XR,4)}, v4, {R4(R_X)}, s12 offen")
    a("s_branch L_fin1")
    a.label("L_fin1a")
    a(f"s_lshl3_add_u32 s{T0}, s{XC}, s3")
    a(f"s_cmp_lg_u32 s{T0}, {4*8+2}")
    a("s_cbranch_scc1 L_fin1")
    a(f"v_lshlrev_b32 v{PB}, 7, v0")
    a("s_mov_b64 exec, 0xf")
    a(f"s_movk_i32 s{T0}, {WS_ACK:#x}")
    a.label("L_ack")
    a(f"buffer_load_dword v{PB+1}, v{PB}, {R4(R_WS)}, s{T0} offen sc1")
    a("s_waitcnt vmcnt(0)")
    a(f"v_cmp_ne_u32 vcc, s{TAG}, v{PB+1}")
    retry("L_ack")
    a("s_mov_b64 exec, -1")
    a.label("L_fin1")
    a("s_waitcnt lgkmcnt(0)")
    a("s_barrier")
    stamp(3)
    a("ds_read_b32 v110, v109")
    a("s_waitcnt lgkmcnt(0)")
    a(f"v_readfirstlane_b32 s{RS}, v110")
    a(f"s_and_b32 s{SEL}, s{RS}, 2047")
    a(f"s_and_b32 s{T0}, s{SEL}, 255")
    a(f"s_and_b32 s{T1}, s{SEL}, 15")
    a(f"s_and_b32 s{T2}, s{SEL}, 7")
    a(f"s_cselect_b32 s{T0}, s{T1}, s{T0}")
    a(f"s_cselect_b32 s{T1}, 8, 128")
    a(f"s_cmp_gt_u32 s{T0}, s{T1}")
    a(f"s_cselect_b32 s{RHO}, 0x80000000, 0")
    a(f"s_sub_u32 s{T1}, 2048, s{SEL}")
    a(f"s_cmp_lg_u32 s{RHO}, 0")
    a(f"s_cselect_b32 s{T0}, s{T1}, s{SEL}")
    a(f"s_and_b32 s{PRM}, s{T0}, 255")
    a(f"s_lshr_b32 s{WSEL}, s{T0}, 8")
    a(f"s_lshr_b32 s{T0}, s{PRM}, 4")
    a(f"s_and_b32 s{T1}, s{PRM}, 15")
    a(f"s_lshl4_add_u32 s{SLOT}, s{T1}, s{T0}")
    a(f"s_add_u32 s{T2}, s{T0}, s{T1}")
    a(f"s_cmp_eq_u32 s{T1}, 8")
    a(f"s_cselect_b32 s{SLOT}, s{T2}, s{SLOT}")
    a(f"s_cmp_eq_u32 s{PRM}, 128")
    a(f"s_cselect_b32 s{SLOT}, 0, s{SLOT}")
    a(f"s_lshl_b32 s14, s{SLOT}, 14")
    a(f"s_lshl_b32 s{T0}, s3, 8")
    a(f"s_add_u32 s14, s14, s{T0}")
    a(f"s_add_u32 s14, s14, {WS_P:#x}")
    if o.findelay:
        a(f"s_sleep {o.findelay}")
    p_issue()
    a1consts("L_fin")
    a("s_cmp_lg_u32 s3, 0")
    a("s_cbranch_scc1 L_fin3")
    p2read_addr(WSEL)
    for i in range(4):
        a(f"v_xor_b32 v{FRE+i}, s{RHO}, v{FRE+i}")
        a(f"v_xor_b32 v{FIM+i}, s{RHO}, v{FIM+i}")
    a(f"s_ashr_i32 s{T0}, s{RS}, 31")
    a(f"s_orn2_b32 s{T0}, 0x80000000, s{T0}")
    a(f"s_xor_b32 s{RS}, s{RS}, s{T0}")
    a("s_waitcnt vmcnt(2)")
    for k in range(4):
        a(f"v_dot2_f32_bf16 v32, v{XR+k}, v{GW+k}, {'v32' if k else 0}")
    rowsum(32)
    a("v_mov_b32 v33, v32")
    a("v_permlane32_swap_b32 v32, v33")
    a("v_add_f32 v32, v32, v33")
    a("v_mov_b32 v33, v32")
    a("v_permlane16_swap_b32 v32, v33")
    a("v_add_f32 v32, v32, v33")
    a(f"v_mov_b32 v33, s{RS}")
    weave(cap(sigmoid, 34, 32), cap(sigmoid, 35, 33), 1)
    for k in range(2):
        a(f"v_permlane16_swap_b32 v{XR+k}, v{XR+2+k}")
    a(f"s_bitcmp1_b32 s{XC}, 1")
    a("s_cbranch_scc0 L_fint")
    a(f"v_mov_b32 v{XR}, v{XR+2}")
    a(f"v_mov_b32 v{XR+1}, v{XR+3}")
    a.label("L_fint")
    a(f"v_sub_f32 v36, 1.0, v34")
    for k in range(2):
        a(f"v_lshlrev_b32 v{XG+2*k}, 16, v{XR+k}")
        a(f"v_and_b32 v{XG+2*k+1}, 0xffff0000, v{XR+k}")
        a(f"v_pk_mul_f32 {V(XG+2*k,2)}, {V(XG+2*k,2)}, v[36:37] op_sel_hi:[1,0]")
    a(f"v_mul_f32 v38, v35, v36")
    for k in range(8):
        a(f"v_pk_mul_f32 {V(TW+2*k,2)}, {V(TW+2*k,2)}, v[34:35] op_sel_hi:[1,0]")
    a.label("L_fin3")
    stamp(5)
    c1("L_fin")
    a("s_waitcnt lgkmcnt(0)")
    a("s_barrier")
    stamp(7)
    a("s_cmp_lg_u32 s3, 0")
    a("s_cbranch_scc1 L_pp")
    for h in range(2):
        a(f"ds_read_b128 {V(16+4*h,4)}, v62 offset:{h*1024}")
    for h in range(2):
        lg(1 - h)
        a(f"{MF} {V(D2+8*h,4)}, {V(16+4*h,4)}, {V(FRE,4)}, 0")
        a(f"{MF} {V(D2+8*h+4,4)}, {V(16+4*h,4)}, {V(FIM,4)}, 0")
    for h in range(2):
        twpk(D2 + 8 * h, TW + 8 * h, TW + 8 * h + 4, GF + 4 * h)
        a(f"{MF} {V(D3,4)}, {V(GF+4*h,4)}, {V(B3+4*h,4)}, {V(D3 if h else XG,4)}")
    a(f"v_lshlrev_b32 v4, 5, v{VN}")
    a(f"v_lshl_add_u32 v4, v{VQ}, 3, v4")
    a(f"s_bfe_u32 s{T1}, s{XC}, 0x10001")
    a(f"s_lshl_b32 s{T1}, s{T1}, 9")
    a(f"s_add_u32 s12, s12, s{T1}")
    a("s_branch L_fin5")
    a.label("L_pp")
    a(f"buffer_load_dwordx4 v[8:11], v107, {R4(R_WS)}, s7 offen sc1")
    a(f"buffer_load_dwordx4 v[12:15], v107, {R4(R_WS)}, s7 offen offset:1024 sc1")
    a("s_waitcnt vmcnt(0)")
    tagcheck(8, 8)
    for k in range(4):
        a(f"v_lshlrev_b32 v{16+2*k}, 16, v{8+k}")
        a(f"v_lshlrev_b32 v{24+2*k}, 16, v{12+k}")
        a(f"v_and_b32 v{17+2*k}, 0xffff0000, v{8+k}")
        a(f"v_and_b32 v{25+2*k}, 0xffff0000, v{12+k}")
    retry("L_pp")
    for k in range(4):
        a(f"v_pk_add_f32 {V(16+2*k,2)}, {V(16+2*k,2)}, {V(24+2*k,2)}")
    weave(cap(fold4, 16, 17, 18, 19), cap(fold4, 20, 21, 22, 23), 1)
    a("ds_write2_b32 v108, v16, v20 offset0:0 offset1:4")
    a("s_waitcnt lgkmcnt(0)")
    a.label("L_fin5")
    stamp(8)
    a("s_barrier")
    stamp(9)
    a("s_cmp_lg_u32 s3, 0")
    a("s_cbranch_scc1 L_fin7")
    for k in range(7):
        a(f"ds_read_b128 {V(64+4*k,4)}, v111 offset:{L_Y+512*k}")
    a(f"s_and_b32 s{T1}, s{XC}, 1")
    a(f"s_lshl_b32 s{T1}, s{T1}, 3")
    a("s_waitcnt lgkmcnt(0)")
    for k in (1, 3, 5):
        for p in range(2):
            a(f"v_pk_add_f32 {V(64+4*k+2*p,2)}, {V(64+4*k+2*p,2)}, {V(68+4*k+2*p,2)}")
    for p in range(2):
        a(f"v_pk_add_f32 {V(64+2*p,2)}, {V(64+2*p,2)}, {V(68+2*p,2)}")
        a(f"v_pk_add_f32 {V(76+2*p,2)}, {V(76+2*p,2)}, {V(84+2*p,2)}")
    for p in range(2):
        a(f"v_pk_add_f32 {V(64+2*p,2)}, {V(64+2*p,2)}, {V(76+2*p,2)}")
    for p in range(2):
        a(f"v_pk_fma_f32 {V(64+2*p,2)}, {V(64+2*p,2)}, v[38:39], {V(D3+2*p,2)} op_sel_hi:[1,0,1]")
    a("v_cvt_pk_bf16_f32 v16, v64, v65")
    a("v_cvt_pk_bf16_f32 v17, v66, v67")
    a(f"s_lshl_b32 exec_lo, 0x00ff00ff, s{T1}")
    a("s_mov_b32 exec_hi, exec_lo")
    a(f"buffer_store_dwordx2 v[16:17], v4, {R4(R_OUT)}, s12 offen sc1")
    a(f"s_cmp_lg_u32 s{XC}, 4")
    a("s_cbranch_scc1 L_fin7")
    a("s_mov_b64 exec, 1")
    a(f"v_mov_b32 v20, {WS_EPOCH}")
    a(f"v_mov_b32 v21, s{TAG}")
    a(f"buffer_store_dword v21, v20, {R4(R_WS)}, 0 offen sc1")
    a.label("L_fin7")
    fini(10)
    a.label("L_end")
    a("s_endpgm")


def emit_tables(a):
    T = tables()
    a.raw(".p2align 7")
    a.raw(".type L_tab,@object")
    a.label("L_tab")
    for k in range(0, len(T), 8):
        a.raw(".long " + ", ".join("0x%x" % v for v in T[k:k + 8]))
    a.label("L_tabend")
    a.raw(".size L_tab, L_tabend - L_tab")


if __name__ == "__main__":
    ap = argparse.ArgumentParser()
    ap.add_argument("-o", required=True)
    ap.add_argument("--stamps", type=int, default=0)
    ap.add_argument("--tlb", type=int, default=1)
    ap.add_argument("--cpf", type=int, default=1)
    ap.add_argument("--helper", type=int, default=1)
    ap.add_argument("--rot", type=int, default=1)
    ap.add_argument("--kr", type=int, default=64)
    ap.add_argument("--ksleep", type=int, default=1)
    ap.add_argument("--findelay", type=int, default=0)
    ap.add_argument("--dbg", type=int, default=0)
    ap.add_argument("--early", type=int, default=0)
    ap.add_argument("--b0v", type=int, default=1)
    ap.add_argument("--stouch", type=int, default=0)
    o = ap.parse_args()
    a = Asm()
    gen(a, o)
    a.lines = haz.fix_all(a.lines)
    emit_tables(a)
    finish(a, o.o, 256, 512, LDS_BYTES, 256, sgpr=100)
```

```python
import argparse, math, struct
from fw import *
import haz

WS_EPOCH = 0
WS_ACK = 0x1000
WS_FRDY = 0x2000
WS_PART = 0x10000
WS_KEY = 0x40000
WS_P = 0x200000
WS_STAMP = 8 << 20
R_X, R_WS, R_OUT, R_A, R_B, R_C = 32, 36, 40, 44, 48, 52
RS, SLOT, TABS = 8, 9, 10
XC, KK, PRM, TAG = 56, 57, 58, 59
T0, T1, T2, T3 = 60, 61, 62, 63
ST = 64
SPIN, TB0, TB1, ROWA, ROWB, REP, RHO, SEL, WSEL = 90, 91, 92, 93, 94, 95, 96, 97, 98
MF = "v_mfma_f32_16x16x32_bf16"
VN, VQ = 2, 3
L_X2 = 16384
L_TAB = 32768
L_KEY = L_TAB + 10240
L_CNT = L_KEY + 4
L_SEL = L_KEY + 8
L_G = L_KEY + 64
L_KB = L_KEY + 1024
L_Y = L_KEY + 256
LF_WD = 65536
LF_X = 98304
LF_E = LF_X + 1024
LF_K = LF_E + 1024
LDS_BYTES = LF_K + 1024
FC = 99
LOG2E_N = 0xbfb8aa3b
A1R, A1I, FRE, FIM, FRC, FIC, B3, TW, XG, D3 = 144, 148, 152, 156, 160, 164, 168, 184, 216, 232
GF, D1, D2, XR, TGV, PB = 112, 64, 64, 40, 104, 128
t = 96
KA = 247
XR2, GW2 = 232, 240


def f32(x):
    return struct.unpack("<I", struct.pack("<f", x))[0]


def fhex(x):
    return "0x%08x" % f32(x)


def bf(x):
    u = f32(x)
    return ((u + 0x7fff + ((u >> 16) & 1)) >> 16) & 0xffff


def cs(num, den):
    num %= den
    c, s = math.cos(2 * math.pi * num / den), math.sin(2 * math.pi * num / den)
    return (0.0 if abs(c) < 1e-12 else c), (0.0 if abs(s) < 1e-12 else s)


def tables():
    T = []
    def blk(fn):
        for l in range(64):
            for i in range(4):
                T.append(fn(l & 15, l >> 4, i))
    pk = lambda lo, hi: bf(lo) | (bf(hi) << 16)
    blk(lambda n, q, i: pk(*cs((4 * q + i) * n, 16)))
    blk(lambda n, q, i: pk(-cs((4 * q + i) * n, 16)[1], cs((4 * q + i) * n, 16)[0]))
    for h in range(2):
        for k in range(2):
            blk(lambda n, q, i: f32(cs((2 * (4 * q + i) + h) * n, 512)[k]))
    for h in range(2):
        for tau in range(2):
            blk(lambda n, q, i: pk(*cs((2 * (4 * q + i) + h) * (16 * tau + n), 32)))
    return T


def gen(a, o):
    WS_BYTES = (16 << 20) if o.stamps else (4 << 20)

    def NT(bit):
        return " nt" if o.nt & bit else ""

    def stamp(k):
        if o.stamps:
            a(f"{'s_memtime' if o.stamps == 2 else 's_memrealtime'} s[{ST+2*k}:{ST+2*k+1}]")

    def dstamp(k, early):
        if bool(o.dbg) == early:
            stamp(k)

    def lg(n):
        a(f"s_waitcnt lgkmcnt({0 if o.stamps else n})")

    def fini(n):
        if o.stamps:
            a("s_mov_b64 exec, -1")
            a("s_waitcnt vmcnt(0) lgkmcnt(0)")
            stamp(n)
            a("s_waitcnt lgkmcnt(0)")
            for k in range(n + 1):
                a(f"v_writelane_b32 v250, s{ST+2*k}, {k}")
            a(f"s_mov_b32 s{T0}, {0x5a5a0000 | (n + 1):#x}")
            a(f"v_writelane_b32 v250, s{T0}, 15")
            a(f"s_lshl3_add_u32 s{T0}, s2, s3")
            a(f"s_lshl_b32 s{T0}, s{T0}, 6")
            a(f"s_add_u32 s{T0}, s{T0}, {WS_STAMP:#x}")
            a("v_lshlrev_b32 v251, 2, v0")
            a("s_mov_b64 exec, 0xffff")
            a(f"buffer_store_dword v250, v251, {R4(R_WS)}, s{T0} offen")
        a("s_endpgm")

    def retry(label, sleep=1):
        a(f"s_cbranch_vccz {label}_ok")
        if sleep:
            a(f"s_sleep {sleep}")
        a(f"s_sub_u32 s{SPIN}, s{SPIN}, 1")
        a(f"s_cbranch_scc0 {label}")
        a(f"s_mov_b32 s{SPIN}, 0")
        a.label(f"{label}_ok")

    def srds(epoch=True):
        a("s_waitcnt lgkmcnt(0)")
        if o.stamps:
            for k in range(2, 13):
                a(f"s_mov_b32 s{ST+2*k}, s{ST}")
        stamp(1)
        if o.base:
            a(f"s_add_u32 s30, s30, {o.base:#x}")
            a("s_addc_u32 s31, s31, 0")
        if epoch:
            a(f"s_load_dword s{TAG}, s[30:31], {WS_EPOCH}")
        a.srd(R_X, 4, 2 << 20)
        a.srd(R_WS, 30, WS_BYTES)

    def tag_ready():
        a("s_waitcnt lgkmcnt(0)")
        a(f"s_add_u32 s{TAG}, s{TAG}, 0x9e3779b9")
        a(f"s_bitcmp1_b32 s{TAG}, 0")
        a(f"s_cselect_b32 s{TB0}, 1, 0x10000")
        a(f"s_xor_b32 s{TB1}, s{TB0}, 0x10001")

    def tagv(v):
        a(f"v_mov_b32 v{v}, s{TB0}")
        a(f"v_mov_b32 v{v+1}, s{TB1}")
        a(f"v_mov_b32 v{v+2}, 0x00010001")

    def touch(items):
        if not o.tlb:
            return 0
        for k, (srd, off) in enumerate(items):
            a(f"v_mov_b32 v{252+k}, {off:#x}")
            a(f"buffer_load_dword v{252+k}, v{252+k}, {R4(srd)}, 0 offen")
        return len(items)

    def mtouch(ptrs):
        if not o.tlb:
            return 0
        a(f"v_mov_b32 v252, s{ptrs[0][0]}")
        a(f"v_mov_b32 v253, s{ptrs[0][0]+1}")
        for k, (p, off) in enumerate(ptrs[1:], 1):
            if off:
                a(f"s_add_u32 s{T3}, s{p}, {off:#x}")
                a(f"v_writelane_b32 v252, s{T3}, {k}")
                a(f"s_addc_u32 s{T3}, s{p+1}, 0")
                a(f"v_writelane_b32 v253, s{T3}, {k}")
            else:
                a(f"v_writelane_b32 v252, s{p}, {k}")
                a(f"v_writelane_b32 v253, s{p+1}, {k}")
        a(f"s_mov_b64 exec, {(1 << len(ptrs)) - 1:#x}")
        a("global_load_dword v254, v[252:253], off")
        a("s_mov_b64 exec, -1")
        return 1

    def sigmoid(d, s):
        a(f"v_mul_f32 v{d}, {LOG2E_N:#x}, v{s}")
        a(f"v_exp_f32 v{d}, v{d}")
        a(f"v_add_f32 v{d}, 1.0, v{d}")
        a(f"v_rcp_f32 v{d}, v{d}")

    def keys_addr(b):
        a(f"s_and_b32 s15, s{REP}, {o.kr-1}")
        a(f"s_lshl_b32 s15, s15, 11")
        a(f"s_add_u32 s15, s15, {WS_KEY:#x}")
        a(f"v_lshlrev_b32 v{b+6}, 3, v0")
        a(f"v_lshlrev_b32 v{b+5}, 4, v0")

    def keys_issue(b):
        if o.kload & 1:
            a(f"buffer_load_dwordx4 {V(b,4)}, v{b+5}, {R4(R_WS)}, s15 offen sc1")
            return
        for r in range(4):
            a(f"v_mov_b32 v{b+r}, 0")
        a(f"buffer_atomic_or_x2 {V(b,2)}, v{b+6}, {R4(R_WS)}, s15 offen sc0 sc1")
        a(f"buffer_atomic_or_x2 {V(b+2,2)}, v{b+6}, {R4(R_WS)}, s15 offen offset:512 sc0 sc1")

    def keys_wait(b, issued=False):
        l = a.L("pk")
        if issued:
            a(f"s_branch {l}_w")
        a.label(l)
        keys_issue(b)
        a.label(f"{l}_w")
        a("s_waitcnt vmcnt(0)")
        a(f"v_xor_b32 v{b+1}, s{TAG}, v{b+1}")
        a(f"v_bitop3_b32 v{b+1}, v{b+3}, s{TAG}, v{b+1} bitop3:0xbe")
        a(f"v_cmp_ne_u32 vcc, 0, v{b+1}")
        a(f"v_max_u32 v{b}, v{b}, v{b+2}")
        retry(l, o.ksleep)
        for r in (8, 4, 2, 1):
            a(f"v_max_u32_dpp v{b}, v{b}, v{b} row_ror:{r} row_mask:0xf bank_mask:0xf")
        a(f"v_readlane_b32 s{SEL}, v{b}, 0")
        a(f"v_readlane_b32 s{T0}, v{b}, 16")
        a(f"v_readlane_b32 s{T1}, v{b}, 32")
        a(f"v_readlane_b32 s{T2}, v{b}, 48")
        a(f"s_max_u32 s{SEL}, s{SEL}, s{T0}")
        a(f"s_max_u32 s{T1}, s{T1}, s{T2}")
        a(f"s_max_u32 s{SEL}, s{SEL}, s{T1}")

    def keys_max(b):
        for r in (8, 4, 2, 1):
            a(f"v_max_u32_dpp v{b}, v{b}, v{b} row_ror:{r} row_mask:0xf bank_mask:0xf")
        a(f"v_readlane_b32 s{SEL}, v{b}, 0")
        a(f"v_readlane_b32 s{T0}, v{b}, 16")
        a(f"v_readlane_b32 s{T1}, v{b}, 32")
        a(f"v_readlane_b32 s{T2}, v{b}, 48")
        a(f"s_max_u32 s{SEL}, s{SEL}, s{T0}")
        a(f"s_max_u32 s{T1}, s{T1}, s{T2}")
        a(f"s_max_u32 s{SEL}, s{SEL}, s{T1}")

    def poll_pipe(name, K, issue, check, nv, done):
        for j in range(K):
            issue(j)
            if j < K - 1:
                a(f"s_sleep {o.psleep}")
        a.label(name)
        for j in range(K):
            a(f"s_waitcnt vmcnt({nv*(K-1)})")
            check(j)
            a(f"s_cbranch_vccz {name}_d{j}")
            issue(j)
        a(f"s_sub_u32 s{SPIN}, s{SPIN}, 1")
        a(f"s_cbranch_scc0 {name}")
        a("s_waitcnt vmcnt(0)")
        for j in range(K):
            a.label(f"{name}_d{j}")
            done(j)
            if j < K - 1:
                a(f"s_branch {name}_x")
        a.label(f"{name}_x")

    def keys_pipe(b, load):
        def issue(j):
            c = 80 + 4 * j
            if load:
                a(f"buffer_load_dwordx4 {V(c,4)}, v{b+5}, {R4(R_WS)}, s15 offen sc1")
                return
            for r in range(4):
                a(f"v_mov_b32 v{c+r}, 0")
            a(f"buffer_atomic_or_x2 {V(c,2)}, v{b+6}, {R4(R_WS)}, s15 offen sc0 sc1")
            a(f"buffer_atomic_or_x2 {V(c+2,2)}, v{b+6}, {R4(R_WS)}, s15 offen offset:512 sc0 sc1")
        def check(j):
            c = 80 + 4 * j
            a(f"v_xor_b32 v{b+1}, s{TAG}, v{c+1}")
            a(f"v_bitop3_b32 v{b+1}, v{c+3}, s{TAG}, v{b+1} bitop3:0xbe")
            a(f"v_cmp_ne_u32 vcc, 0, v{b+1}")
        def done(j):
            c = 80 + 4 * j
            a(f"v_max_u32 v{b}, v{c}, v{c+2}")
        poll_pipe(a.L("kp"), 1 if load else o.kp, issue, check, 1 if load else 2, done)
        for r in (8, 4, 2, 1):
            a(f"v_max_u32_dpp v{b}, v{b}, v{b} row_ror:{r} row_mask:0xf bank_mask:0xf")
        a(f"v_readlane_b32 s{SEL}, v{b}, 0")
        a(f"v_readlane_b32 s{T0}, v{b}, 16")
        a(f"v_readlane_b32 s{T1}, v{b}, 32")
        a(f"v_readlane_b32 s{T2}, v{b}, 48")
        a(f"s_max_u32 s{SEL}, s{SEL}, s{T0}")
        a(f"s_max_u32 s{T1}, s{T1}, s{T2}")
        a(f"s_max_u32 s{SEL}, s{SEL}, s{T1}")

    def fold4(x0, x1, x2, x3):
        a(f"v_permlane32_swap_b32 v{x0}, v{x1}")
        a(f"v_permlane32_swap_b32 v{x2}, v{x3}")
        a(f"v_add_f32 v{x0}, v{x0}, v{x1}")
        a(f"v_add_f32 v{x2}, v{x2}, v{x3}")
        a(f"v_permlane16_swap_b32 v{x0}, v{x2}")
        a(f"v_add_f32 v{x0}, v{x0}, v{x2}")

    def rowsum(x):
        for r in (8, 4, 2, 1):
            a(f"v_add_f32_dpp v{x}, v{x}, v{x} row_ror:{r} row_mask:0xf bank_mask:0xf")

    def cap(fn, *args):
        keep = a.lines
        a.lines = []
        fn(*args)
        out = [l.strip() for l in a.lines]
        a.lines = keep
        return out

    def weave(main, fill, every, first=0):
        fill = list(fill)
        for k, l in enumerate(main):
            if fill and k >= first and (k - first) % every == 0:
                a(fill.pop(0))
            a(l)
        for l in fill:
            a(l)

    def twpk(D, TC, TS, out):
        for p in range(2):
            a(f"v_pk_mul_f32 {V(t+2*p,2)}, {V(D+2*p,2)}, {V(TC+2*p,2)}")
            a(f"v_pk_mul_f32 {V(t+4+2*p,2)}, {V(D+4+2*p,2)}, {V(TC+2*p,2)}")
        for p in range(2):
            a(f"v_pk_fma_f32 {V(t+2*p,2)}, {V(D+4+2*p,2)}, {V(TS+2*p,2)}, {V(t+2*p,2)}")
            a(f"v_pk_fma_f32 {V(t+4+2*p,2)}, {V(D+2*p,2)}, {V(TS+2*p,2)}, {V(t+4+2*p,2)} neg_lo:[1,0,0] neg_hi:[1,0,0]")
        for i in range(4):
            a(f"v_cvt_pk_bf16_f32 v{out+i}, v{t+i}, v{t+4+i}")

    def tagcheck(first, n):
        a(f"v_xor_b32 v{t}, v{TGV}, v{first}")
        a(f"v_xor_b32 v{t+1}, v{TGV+1}, v{first+1}")
        for r in range(2, n):
            a(f"v_bitop3_b32 v{t+(r&1)}, v{first+r}, v{TGV+(r&1)}, v{t+(r&1)} bitop3:0xbe")
        a(f"v_bitop3_b32 v{t}, v{t}, v{t+1}, v{TGV+2} bitop3:0xa8")
        a(f"v_cmp_ne_u32 vcc, 0, v{t}")

    def dma_blocks(blks):
        a(f"s_lshl_b32 s{T0}, s{blks[0]}, 10")
        a(f"v_lshl_add_u32 v248, v0, 4, s{T0}")
        a(f"s_add_u32 m0, s{T0}, {L_TAB}")
        for k in blks[1]:
            a(f"global_load_lds_dwordx4 v248, s[{TABS}:{TABS+1}] offset:{k*1024}")

    def rotseq(base, step, outs):
        for i, (re, im) in enumerate(outs):
            a(f"v_cos_f32 v{t+6}, v{base}")
            a(f"v_sin_f32 v{t+7}, v{base}")
            if i < len(outs) - 1:
                a(f"v_add_f32 v{base}, v{base}, v{step}")
            a(f"v_cvt_pk_bf16_f32 v{re}, v{t+6}, v{t+7}")
            a(f"v_cvt_pk_bf16_f32 v{im}, -v{t+7}, v{t+6}")

    def a1consts(name):
        a(f"v_lshrrev_b32 v{t}, 1, v{VN}")
        a(f"v_lshlrev_b32 v{t}, 8, v{t}")
        a(f"v_add_u32 v{t}, s{PRM}, v{t}")
        a(f"v_and_b32 v{t+1}, 1, v{VN}")
        a(f"v_lshlrev_b32 v{t+2}, 1, v{VQ}")
        a(f"v_mul_u32_u24 v{t+2}, v{t+2}, v{t}")
        a(f"v_cmp_eq_u32 vcc, 0, v{t+1}")
        for i in range(2):
            a(f"v_and_b32 v{t+3}, 2047, v{t+2}")
            if i == 0:
                a(f"v_add_u32 v{t+2}, v{t+2}, v{t}")
            a(f"v_cvt_f32_u32 v{t+3}, v{t+3}")
            a(f"v_mul_f32 v{t+3}, {fhex(1/2048)}, v{t+3}")
            a(f"v_cos_f32 v{t+4}, v{t+3}")
            a(f"v_sin_f32 v{t+5}, v{t+3}")
            a(f"v_mul_f32 v{t+4}, 0.5, v{t+4}")
            a(f"v_mul_f32 v{t+5}, 0.5, v{t+5}")
            a(f"v_cndmask_b32_e64 v{t+6}, -v{t+5}, v{t+4}, vcc")
            a(f"v_cndmask_b32 v{t+7}, v{t+4}, v{t+5}, vcc")
            a(f"v_cvt_pk_bf16_f32 v{A1R+2*i}, v{t+6}, v{t+7}")
            a(f"v_cvt_pk_bf16_f32 v{A1I+2*i}, -v{t+7}, v{t+6}")
            a(f"v_cndmask_b32 v{t+6}, v{t+5}, v{t+4}, vcc")
            a(f"v_cndmask_b32_e64 v{t+7}, -v{t+4}, v{t+5}, vcc")
            a(f"v_cvt_pk_bf16_f32 v{A1R+2*i+1}, v{t+6}, -v{t+7}")
            a(f"v_cvt_pk_bf16_f32 v{A1I+2*i+1}, -v{t+7}, -v{t+6}")
            a(f"s_and_b32 s{T0}, s{PRM}, 127")
            a(f"s_cbranch_scc1 {name}_a1{i}")
            a(f"v_add_f32 v{t+4}, v{t+4}, v{t+4}")
            a(f"v_add_f32 v{t+5}, v{t+5}, v{t+5}")
            a(f"v_cndmask_b32 v{t+6}, 0, v{t+4}, vcc")
            a(f"v_sub_f32 v{t+7}, v{t+4}, v{t+6}")
            a(f"v_cvt_pk_bf16_f32 v{t+4}, v{t+6}, v{t+7}")
            a(f"v_cndmask_b32 v{t+6}, 0, v{t+5}, vcc")
            a(f"v_sub_f32 v{t+7}, v{t+5}, v{t+6}")
            a(f"v_cvt_pk_bf16_f32 v{t+5}, -v{t+6}, -v{t+7}")
            a(f"s_cmp_eq_u32 s{PRM}, 0")
            a(f"s_cselect_b32 s{T0}, -1, 0")
            a(f"s_cselect_b32 s{T1}, 0, -1")
            a(f"v_and_b32 v{A1R+2*i}, s{T0}, v{t+4}")
            a(f"v_and_b32 v{A1I+2*i}, s{T0}, v{t+5}")
            a(f"v_and_b32 v{A1R+2*i+1}, s{T1}, v{t+4}")
            a(f"v_and_b32 v{A1I+2*i+1}, s{T1}, v{t+5}")
            a.label(f"{name}_a1{i}")

    def p2addr():
        a(f"v_lshlrev_b32 v5, 12, v{VQ}")
        a(f"v_lshl_add_u32 v5, v{VN}, 4, v5")
        a(f"v_lshrrev_b32 v{t}, 2, v{VN}")
        a(f"v_xor_b32 v{t}, v{t}, v{VQ}")
        a(f"v_and_b32 v{t}, 1, v{t}")
        a(f"v_bfe_u32 v{t+1}, v{VN}, 1, 1")
        a(f"v_lshl_or_b32 v{t}, v{t}, 1, v{t+1}")
        a(f"s_lshr_b32 s{T0}, s3, 1")
        a(f"v_xor_b32 v{t}, s{T0}, v{t}")
        a(f"v_lshlrev_b32 v{t}, 4, v{t}")
        a(f"v_and_b32 v{t+2}, 7, v{VN}")
        a(f"v_lshl_add_u32 v{t}, v{t+2}, 6, v{t}")
        a(f"v_lshl_add_u32 v{t}, v{VQ}, 12, v{t}")
        a(f"v_lshrrev_b32 v{t+2}, 3, v{VN}")
        a(f"v_lshl_add_u32 v{t}, v{t+2}, 2, v{t}")
        a(f"s_and_b32 s{T0}, s3, 1")
        a(f"s_lshl_b32 s{T0}, s{T0}, 3")
        a(f"s_add_u32 s{T0}, s{T0}, {L_X2}")
        a(f"v_add_u32 v6, s{T0}, v{t}")
        a(f"v_xor_b32 v7, 48, v6")
        a(f"v_bfe_u32 v{t}, v{VN}, 2, 1")
        a(f"v_xor_b32 v{t}, v{t}, v{t+2}")
        a(f"v_lshl_or_b32 v{t}, v{t}, 1, v{t+2}")
        a(f"v_xor_b32 v{t}, v{t}, v{t+1}")
        a(f"v_xor_b32 v{t}, v{t}, v{VQ}")
        a(f"v_lshlrev_b32 v{t}, 4, v{t}")
        a(f"v_lshl_add_u32 v62, v{VN}, 6, v{t}")

    def p2read_addr(t0):
        a(f"s_lshl_b32 s{T0}, s{t0}, 4")
        a(f"s_and_b32 s{T0}, s{T0}, 32")
        a(f"v_xor_b32 v62, s{T0}, v62")
        a(f"s_lshl_b32 s{T0}, s{t0}, 11")
        a(f"s_add_u32 s{T0}, s{T0}, {L_X2}")
        a(f"v_add_u32 v62, s{T0}, v62")

    def rowoff():
        a(f"v_lshlrev_b32 v4, 5, v{VN}")
        a(f"v_and_b32 v{t}, 1, v{VQ}")
        a(f"v_lshl_add_u32 v4, v{t}, 9, v4")
        a(f"v_lshrrev_b32 v{t}, 1, v{VQ}")
        a(f"v_lshl_add_u32 v4, v{t}, 4, v4")

    def p_issue():
        for i in range(2):
            a(f"buffer_load_dwordx4 {V(8+4*i,4)}, v5, {R4(R_WS)}, s14 offen offset:{2048*i} sc1")

    def c1(name):
        a(f"s_branch {name}_pw")
        a.label(f"{name}_pl")
        p_issue()
        a.label(f"{name}_pw")
        a("s_waitcnt vmcnt(0)")
        a("v_swap_b32 v10, v12")
        a("v_swap_b32 v11, v13")
        mf = []
        for c in range(2):
            mf.append(f"{MF} {V(D1+8*c,4)}, {V(A1R,4)}, {V(8+4*c,4)}, 0")
            mf.append(f"{MF} {V(D1+8*c+4,4)}, {V(A1I,4)}, {V(8+4*c,4)}, 0")
        weave(cap(tagcheck, 8, 8), mf, 2, 2)
        retry(f"{name}_pl")
        stamp(6)
        for c in range(2):
            for i in range(4):
                a(f"v_cvt_pk_bf16_f32 v{16+4*c+i}, v{D1+8*c+i}, v{D1+8*c+4+i}")
                if i & 1:
                    a(f"ds_write2st64_b32 v{6+c}, v{16+4*c+i-1}, v{16+4*c+i} offset0:{4*(i-1)+2*c} offset1:{4*i+2*c}")

    a("s_cmp_ge_u32 s2, 256")
    a("s_cbranch_scc1 L_end")
    stamp(0)
    a(f"s_load_dwordx2 s[4:5], s[0:1], {KA_X}")
    a(f"s_load_dwordx16 s[16:31], s[0:1], {KA_WR}")
    a(f"s_getpc_b64 s[{TABS}:{TABS+1}]")
    a.label("L_pc")
    a("v_lshrrev_b32 v1, 6, v0")
    a(f"s_lshr_b32 s{KK}, s2, 3")
    if o.cpf:
        a(f"v_lshl_add_u32 v4, v0, 5, s{KK}")
        a("v_lshlrev_b32 v4, 7, v4")
        a(f"v_cmp_gt_u32 vcc, L_tabend - L_pc, v4")
        a("s_and_saveexec_b64 s[12:13], vcc")
        a("s_cbranch_execz L_nocpf")
        a(f"global_load_dword v249, v4, s[{TABS}:{TABS+1}]")
        a.label("L_nocpf")
        a("s_mov_b64 exec, s[12:13]")
    a("v_and_b32 v0, 63, v0")
    a("v_readfirstlane_b32 s3, v1")
    a(f"v_and_b32 v{VN}, 15, v0")
    a(f"v_lshrrev_b32 v{VQ}, 4, v0")
    a(f"v_lshlrev_b32 v{KA}, 4, v0")
    a(f"s_add_u32 s{TABS}, s{TABS}, L_tab - L_pc")
    a(f"s_addc_u32 s{TABS+1}, s{TABS+1}, 0")
    a(f"s_and_b32 s{XC}, s2, 7")
    a(f"s_mov_b32 s{SPIN}, 400000")
    a(f"s_cmp_lt_u32 s{KK}, 16")
    a("s_cbranch_scc1 L_low")

    A2, A2X, SF, DS, XY, OUT = 112, 128, 52, 64, 96, 80

    def s2consts(nm, special):
        a(f"s_xor_b32 s{WSEL}, s3, 4")
        a(f"v_lshl_add_u32 v{t}, v{VN}, 4, s{WSEL}")
        if special:
            a(f"s_cmp_eq_u32 s{WSEL}, 0")
            a(f"s_cselect_b32 s{T0}, 120, 0")
            a(f"v_subrev_u32 v{t+2}, s{T0}, v{t}")
            a(f"v_cmp_gt_u32 vcc, 8, v{VN}")
            a(f"v_cndmask_b32 v{t}, v{t+2}, v{t}, vcc")
        a(f"v_lshlrev_b32 v{t+2}, 2, v{VQ}")
        a(f"v_cvt_f32_u32 v{t+2}, v{t+2}")
        a(f"v_cvt_f32_u32 v{t}, v{t}")
        a(f"v_mul_f32 v{t}, {fhex(1/256)}, v{t}")
        a(f"v_mul_f32 v{t+3}, v{t+2}, v{t}")
        rotseq(t + 3, t, [(A2 + i, A2 + 4 + i) for i in range(4)])
        a(f"v_mov_b32 v{t}, 0x80000000")
        a(f"v_mov_b32 v{t+1}, 0x8000")
        for i in range(4):
            a(f"v_xor_b32 v{A2+8+i}, v{t}, v{A2+i}")
            a(f"v_xor_b32 v{A2+12+i}, v{t+1}, v{A2+4+i}")
        if special:
            a(f"s_cmp_lg_u32 s{WSEL}, 0")
            a(f"s_cbranch_scc1 {nm}_e")
            a("s_mov_b32 exec_lo, 0x10001")
            a("s_mov_b32 exec_hi, 0x10001")
            for i in (1, 3):
                a(f"v_mov_b32 v{A2+8+i}, 0xbf80")
                a(f"v_mov_b32 v{A2+12+i}, 0xbf800000")
            a("s_mov_b64 exec, -1")
            for k in range(8):
                a(f"v_cndmask_b32_e64 v{A2X+k}, v{A2+k}, 0, vcc")
                a(f"v_cndmask_b32 v{A2+k}, 0, v{A2+k}, vcc")
                a(f"v_cndmask_b32 v{A2X+8+k}, 0, v{A2+8+k}, vcc")
                a(f"v_cndmask_b32_e64 v{A2+8+k}, v{A2+8+k}, 0, vcc")
            a.label(f"{nm}_e")
        a(f"s_sub_u32 s{T0}, 16, s{WSEL}")
        a(f"s_cmp_eq_u32 s{WSEL}, 0")
        a(f"s_cselect_b32 s{T0}, 8, s{T0}")
        a(f"v_bfe_u32 v{t}, v{VN}, 2, 1")
        a(f"v_xor_b32 v{t}, v{t}, v{VN}")
        a(f"v_lshrrev_b32 v{t+1}, 3, v{VN}")
        a(f"v_mul_u32_u24 v{t+2}, 3, v{t+1}")
        a(f"v_xor_b32 v{t+2}, v{t+2}, v{VQ}")
        a(f"v_lshlrev_b32 v{t+2}, 4, v{t+2}")
        a(f"v_lshl_add_u32 v{t}, v{t}, 6, v{t+2}")
        for k, al in enumerate((WSEL, T0)):
            a(f"s_lshl_b32 s{T1}, s{al}, 3")
            a(f"s_and_b32 s{T1}, s{T1}, 32")
            a(f"s_lshl_b32 s{T2}, s{al}, 10")
            a(f"s_or_b32 s{T1}, s{T1}, s{T2}")
            a(f"v_xor_b32 v{60+k}, s{T1}, v{t}")
        a(f"v_lshlrev_b32 v63, 16, v{VQ}")
        a(f"v_lshl_add_u32 v63, v{t+1}, 14, v63")
        a(f"v_and_b32 v{t}, 7, v{VN}")
        a(f"v_lshl_add_u32 v63, v{t}, 4, v63")
        a(f"s_lshl_b32 s6, s{WSEL}, 18")
        a(f"s_lshl_b32 s{T1}, s{XC}, 11")
        a(f"s_add_u32 s6, s6, s{T1}")
        a(f"s_lshl_b32 s{T1}, s{KK}, 7")
        a(f"s_add_u32 s6, s6, s{T1}")
        a(f"s_add_u32 s6, s6, {WS_P:#x}")
        a(f"s_add_u32 s7, s6, 32768")
        rowoff()
        a(f"s_lshl_b32 s{T0}, s3, 8")
        a(f"s_add_u32 s{ROWA}, s{T0}, s{PRM}")
        a(f"s_sub_u32 s{ROWB}, 2048, s{ROWA}")
        a(f"s_and_b32 s{ROWB}, s{ROWB}, 2047")
        a.srd(R_B, 24, 1024)

    def own_rows():
        a(f"s_lshl_b32 s12, s{ROWA}, 10")
        a(f"s_lshl_b32 s13, s{ROWB}, 10")
        for rho in range(2):
            a(f"buffer_load_dwordx4 {V(XR2+4*rho,4)}, v4, {R4(R_X)}, s{12+rho} offen")
        a(f"buffer_load_dwordx4 {V(GW2,4)}, v4, {R4(R_B)}, 0 offen")

    def p2prep(nm, addr=True):
        a1consts(nm)
        if addr:
            p2addr()
            p2read_addr(3)
        a(f"s_lshl_b32 s14, s{SLOT}, 14")
        a(f"s_lshl_b32 s{T0}, s3, 8")
        a(f"s_add_u32 s14, s14, s{T0}")
        a(f"s_add_u32 s14, s14, {WS_P:#x}")
        a.srd(R_OUT, 26, 2 << 20)

    a(f"s_sub_u32 s{KK}, s{KK}, 16")
    a(f"s_lshl4_add_u32 s{SLOT}, s{XC}, s{KK}")
    a(f"s_lshl4_add_u32 s{PRM}, s{KK}, s{XC}")
    a(f"s_sub_u32 s{T2}, s{PRM}, 120")
    a(f"s_cmp_lt_u32 s{SLOT}, 8")
    a(f"s_cselect_b32 s{T2}, s{PRM}, s{T2}")
    a(f"s_cmp_lt_u32 s{SLOT}, 16")
    a(f"s_cselect_b32 s{PRM}, s{T2}, s{PRM}")
    a.label("L_a")
    a("s_cmp_ge_u32 s3, 4")
    a("s_cbranch_scc1 L_p1w")
    RW, WR, DT, RID = 8, 24, 32, 36
    a(f"s_lshl2_add_u32 s{T0}, s{KK}, s3")
    a(f"s_lshl_b32 s{T0}, s{T0}, 5")
    a(f"s_add_u32 s{T0}, s{T0}, s{XC}")
    a(f"s_lshl_b32 s12, s{T0}, 10")
    a(f"s_cmp_eq_u32 s{PRM}, 128")
    a(f"s_cselect_b32 s12, 0x40000000, s12")
    for k in range(1, 4):
        a(f"s_add_u32 s{12+k}, s12, {8192*k}")
    srds()
    for k in range(4):
        a(f"buffer_load_dwordx4 {V(RW+4*k,4)}, v{KA}, {R4(R_X)}, s{12+k} offen")
    a.srd(R_A, 16, 1024)
    a(f"buffer_load_dwordx4 {V(WR,4)}, v{KA}, {R4(R_A)}, 0 offen")
    a(f"v_and_b32 v{RID}, 1, v{VQ}")
    a(f"v_lshrrev_b32 v108, 1, v{VQ}")
    a(f"v_lshl_add_u32 v{RID}, v{RID}, 1, v108")
    a(f"v_lshl_add_u32 v{RID}, v{RID}, 3, s{T0}")
    a(f"v_mov_b32 v108, {L_KEY}")
    a("v_mov_b32 v109, 1")
    a(f"s_mov_b32 s{RS}, 0xfffff800")
    a(f"s_lshl3_add_u32 s15, s{KK}, s{XC}")
    a(f"s_lshl_b32 s15, s15, 3")
    a(f"s_add_u32 s15, s15, {WS_KEY:#x}")
    a("v_lshlrev_b32 v37, 11, v0")
    if o.rpre >= 1:
        p2prep("L_ar")
    if o.rpre >= 2:
        s2consts("L_sr", False)
    dstamp(9, True)
    a(f"s_waitcnt vmcnt(1)")
    stamp(2)
    a("s_barrier")
    a(f"s_waitcnt vmcnt(0)")
    stamp(3)
    for k in range(4):
        for r in range(4):
            a(f"v_dot2_f32_bf16 v{DT+r}, v{RW+4*r+k}, v{WR+k}, {('v%d' % (DT+r)) if k else 0}")
    tag_ready()
    fold4(DT, DT + 1, DT + 2, DT + 3)
    a(f"v_mov_b32 v39, s{TAG}")
    rowsum(DT)
    a(f"v_ashrrev_i32 v{DT+1}, 31, v{DT}")
    a(f"v_or_b32 v{DT+1}, 0x80000000, v{DT+1}")
    a(f"v_xor_b32 v{DT+1}, v{DT+1}, v{DT}")
    a(f"v_and_or_b32 v{DT+1}, v{DT+1}, s{RS}, v{RID}")
    a("s_mov_b32 exec_lo, 0x10001")
    a("s_mov_b32 exec_hi, 0x10001")
    a(f"ds_max_u32 v108, v{DT+1}")
    a("s_mov_b64 exec, 1")
    a(f"ds_add_rtn_u32 v{DT+2}, v108, v109 offset:4")
    a("s_mov_b64 exec, -1")
    a("ds_read_b32 v38, v108")
    a("s_waitcnt lgkmcnt(0)")
    a(f"v_readfirstlane_b32 s{T1}, v{DT+2}")
    a(f"s_cmp_lg_u32 s{T1}, 3")
    a("s_cbranch_scc1 L_b1a")
    a(f"s_cmp_eq_u32 s{PRM}, 128")
    a("s_cbranch_scc1 L_b1a")
    a(f"buffer_store_dwordx2 v[38:39], v37, {R4(R_WS)}, s15 offen sc1")
    a.label("L_b1a")
    dstamp(10, True)
    a(f"s_lshl_b32 s{T3}, s3, 1")
    dma_blocks((T3, (0, 1)))
    a(f"s_and_b32 s{T3}, s3, 1")
    a(f"s_add_u32 s{T3}, s{T3}, 8")
    dma_blocks((T3, (0,)))
    if o.rpre < 2:
        s2consts("L_sr", False)
    own_rows()
    if o.rpre < 1:
        p2prep("L_ar")
    tagv(TGV)
    a("s_branch L_b1")

    LD, FR, F0R, F0I, WA, D = 8, 24, 40, 44, 48, 64
    a.label("L_p1w")
    a(f"s_sub_u32 s{RHO}, s3, 4")
    if o.apf:
        a(f"s_lshl_b32 s{T0}, s{XC}, 2")
        a(f"s_mul_i32 s{T1}, s{XC}, 3")
        a(f"s_add_u32 s{T1}, s{T1}, 4")
        a(f"s_cmp_lt_u32 s{XC}, 4")
        a(f"s_cselect_b32 s{T0}, s{T0}, s{T1}")
        a(f"s_cselect_b32 s{T1}, 16, 12")
        a(f"s_cmp_ge_u32 s{KK}, s{T1}")
        a(f"s_cselect_b32 s{T3}, 8, s{RHO}")
        a(f"s_lshr_b32 s{T1}, s{KK}, 2")
        a(f"s_add_u32 s{T0}, s{T0}, s{T1}")
        a(f"s_lshl_b32 s6, s{T0}, 7")
        a(f"s_and_b32 s{T1}, s{KK}, 3")
        a(f"s_mul_i32 s{T1}, s{T1}, {o.apf}")
        a(f"s_add_u32 s{T1}, s{T1}, s{RHO}")
        a(f"s_lshl_b32 s{T1}, s{T1}, 5")
        a(f"s_add_u32 s{T1}, s{T1}, {512 - 128*o.apf}")
        a(f"v_lshrrev_b32 v{t+4}, 1, v0")
        a(f"v_add_u32 v{t+4}, s{T1}, v{t+4}")
        a(f"v_mul_u32_u24 v{t+4}, 3584, v{t+4}")
        a(f"v_and_b32 v{t+5}, 1, v0")
        a(f"v_lshl_add_u32 v{t+4}, v{t+5}, 6, v{t+4}")
        a("s_waitcnt lgkmcnt(0)")
        a.srd(R_C, 18, 512 * 3584)
        a(f"s_cmp_ge_u32 s{T3}, {o.apf}")
        a("s_cbranch_scc1 L_noapf")
        a(f"buffer_load_dword v255, v{t+4}, {R4(R_C)}, s6 offen")
        a.label("L_noapf")
    srds(False)
    if o.tlb & 1:
        a("s_cmp_lg_u32 s3, 7")
        a("s_cbranch_scc1 L_nomt")
        mtouch([(16, 0), (24, 0), (26, 0), (30, 0x3000), (30, WS_P + 0x3000)])
        a.label("L_nomt")
    a(f"v_lshlrev_b32 v107, 19, v{VQ}")
    a(f"v_bfe_u32 v108, v0, 2, 2")
    a(f"v_lshl_add_u32 v107, v108, 13, v107")
    a(f"v_and_b32 v109, 3, v0")
    a(f"v_lshl_add_u32 v107, v109, 4, v107")
    a(f"v_mov_b32 v{t}, {L_KEY}")
    a(f"v_mov_b32 v{t+2}, 0")
    a(f"v_mov_b32 v{t+3}, 0")
    a(f"ds_write_b64 v{t}, {V(t+2,2)}")
    a(f"v_lshlrev_b32 v{t}, 2, v{VQ}")
    a(f"v_cvt_f32_u32 v{t}, v{t}")
    a(f"v_cvt_f32_u32 v{t+1}, v{VN}")
    a(f"v_mul_f32 v{t+1}, {fhex(1/16)}, v{t+1}")
    a(f"v_mul_f32 v{t}, v{t}, v{t+1}")
    rotseq(t, t + 1, [(F0R + i, F0I + i) for i in range(4)])
    a(f"v_lshrrev_b32 v{t}, 1, v109")
    a(f"v_mul_u32_u24 v{t}, 3, v{t}")
    a(f"v_lshlrev_b32 v{t+1}, 1, v{VQ}")
    a(f"v_and_b32 v{t+1}, 2, v{t+1}")
    a(f"v_xor_b32 v{t}, v{t}, v{t+1}")
    a(f"v_xor_b32 v{t}, s{RHO}, v{t}")
    a(f"v_lshl_add_u32 v{t}, v{t}, 2, v108")
    a(f"v_lshlrev_b32 v{t}, 2, v{t}")
    a(f"v_lshl_add_u32 v{t}, v109, 8, v{t}")
    a(f"v_lshl_add_u32 v{t}, v{VQ}, 12, v{t}")
    a(f"v_and_b32 v{t+1}, 1, v109")
    a(f"v_lshl_add_u32 v{WA}, v{t+1}, 6, v{t}")
    a(f"v_xor_b32 v{WA+1}, 64, v{WA}")
    a(f"v_add_u32 v{WA+2}, 128, v{WA}")
    a(f"v_add_u32 v{WA+3}, 128, v{WA+1}")
    if o.ppre >= 1:
        p2addr()
        p2read_addr(3)
    if o.ppre >= 2:
        s2consts("L_sp", True)
    a(f"s_lshl_b32 s12, s{RHO}, 15")
    a(f"s_lshl_b32 s{T1}, s{XC}, 10")
    a(f"s_add_u32 s12, s12, s{T1}")
    a(f"s_lshl_b32 s{T1}, s{KK}, 6")
    a(f"s_add_u32 s12, s12, s{T1}")
    a(f"s_cmp_eq_u32 s{PRM}, 128")
    a(f"s_cselect_b32 s12, 0x40000000, s12")
    for i in range(1, 4):
        a(f"s_add_u32 s{12+i}, s12, {i*131072}")
    a("s_waitcnt lgkmcnt(0)")
    stamp(2)
    a("s_barrier")
    for i in range(4):
        a(f"buffer_load_dwordx4 {V(LD+4*i,4)}, v107, {R4(R_X)}, s{12+i} offen")
    a(f"s_load_dword s{TAG}, s[30:31], {WS_EPOCH}")
    if o.ppre < 2:
        s2consts("L_sp", True)
    own_rows()
    p2prep("L_ap", o.ppre < 1)
    a(f"s_lshr_b32 s15, s{SLOT}, 2")
    a(f"s_lshl_b32 s15, s15, 11")
    a(f"s_add_u32 s15, s15, {WS_KEY + 32*2048:#x}")
    tag_ready()
    tagv(TGV)
    a(f"s_not_b32 s{T3}, s{TAG}")
    for r in range(4):
        a(f"v_mov_b32 v{t+r}, s{T3}")
    a(f"ds_write_b128 v{KA}, {V(t,4)} offset:{L_KB}")
    dstamp(10, True)
    a(f"s_waitcnt vmcnt(3)")
    stamp(3)
    for c in range(4):
        for i in range(2):
            b = 2 * (c >> 1)
            a(f"v_pk_mov_b32 {V(FR+4*c+2*i,2)}, {V(LD+8*i+b,2)}, {V(LD+8*i+4+b,2)} op_sel:[{c&1},{c&1}]")
        if c:
            a(f"{MF} {V(D+8*(c-1),4)}, {V(F0R,4)}, {V(FR+4*(c-1),4)}, 0")
            a(f"{MF} {V(D+8*(c-1)+4,4)}, {V(F0I,4)}, {V(FR+4*(c-1),4)}, 0")

    def s1out(c):
        for i in range(4):
            a(f"v_cvt_pk_bf16_f32 v{LD+4*c+i}, v{D+8*c+i}, v{D+8*c+4+i}")
            if i & 1:
                a(f"ds_write2st64_b32 v{WA+c}, v{LD+4*c+i-1}, v{LD+4*c+i} offset0:{4*(i-1)} offset1:{4*i}")
    weave(cap(s1out, 0), [f"{MF} {V(D+24,4)}, {V(F0R,4)}, {V(FR+12,4)}, 0", f"{MF} {V(D+28,4)}, {V(F0I,4)}, {V(FR+12,4)}, 0"], 2)
    for c in range(1, 4):
        s1out(c)
    a(f"s_waitcnt lgkmcnt(0)")
    a.label("L_b1")
    stamp(4)
    a("s_barrier")
    def kpoll():
        l = a.L("kq")
        a("s_cmp_lg_u32 s3, 7")
        a(f"s_cbranch_scc1 {l}")
        a(f"buffer_load_dwordx4 v{KA}, {R4(R_WS)}, s15 offen sc1 lds")
        a.label(l)
    a(f"s_cmp_eq_u32 s{PRM}, 128")
    a("s_cbranch_scc1 L_ack128")
    for al in range(2):
        a(f"ds_read_b128 {V(SF+4*al,4)}, v{60+al}")
    a(f"s_mov_b32 m0, {L_KB}")
    if o.kb1:
        kpoll()
    a("s_mov_b32 vcc_lo, 0x00ff00ff")
    a("s_mov_b32 vcc_hi, 0x00ff00ff")
    for al in range(2):
        lg(1 - al)
        a(f"{MF} {V(DS+8*al,4)}, {V(A2+8*al,4)}, {V(SF+4*al,4)}, 0")
        a(f"{MF} {V(DS+8*al+4,4)}, {V(A2+8*al+4,4)}, {V(SF+4*al,4)}, 0")
    a(f"s_cmp_lg_u32 s{WSEL}, 0")
    a("s_cbranch_scc1 L_s2b")
    for al in range(2):
        a(f"{MF} {V(DS+8*al,4)}, {V(A2X+8*al,4)}, {V(SF+4*(1-al),4)}, {V(DS+8*al,4)}")
        a(f"{MF} {V(DS+8*al+4,4)}, {V(A2X+8*al+4,4)}, {V(SF+4*(1-al),4)}, {V(DS+8*al+4,4)}")
    a.label("L_s2b")
    for p in range(2):
        for al in range(2):
            for i in (2 * p, 2 * p + 1):
                a(f"v_cvt_pk_bf16_f32 v{XY+4*al+i}, v{DS+8*al+i}, v{DS+8*al+4+i}")
        for al in range(2):
            for i in (2 * p, 2 * p + 1):
                a(f"v_bitop3_b32 v{XY+4*al+i}, v{TGV+2}, v{TGV+al}, v{XY+4*al+i} bitop3:0xca")
        lo = [f"v_cndmask_b32_dpp v{OUT+4*p+al}, v{XY+4*al+2*p+1}, v{XY+4*al+2*p}, vcc row_ror:8 row_mask:0xf bank_mask:0xf" for al in range(2)]
        hi = [f"v_cndmask_b32_dpp v{OUT+4*p+2+al}, v{XY+4*al+2*p}, v{XY+4*al+2*p+1}, vcc row_ror:8 row_mask:0xf bank_mask:0xf" for al in range(2)]
        for l in (lo if p == 0 else hi):
            a(l)
        a("s_not_b64 vcc, vcc")
        for l in (hi if p == 0 else lo):
            a(l)
        a(f"buffer_store_dwordx4 {V(OUT+4*p,4)}, v63, {R4(R_WS)}, s{6+p} offen sc1")
    a.label("L_nos2")
    stamp(5)
    a(f"v_mov_b32 v109, {L_SEL}")
    a("s_cmp_lg_u32 s3, 7")
    a("s_cbranch_scc1 L_a5")
    a.label("L_kd")
    a(f"ds_read_b128 {V(PB,4)}, v{KA} offset:{L_KB}")
    a(f"buffer_load_dwordx4 v{KA}, {R4(R_WS)}, s15 offen sc1 lds")
    a("s_waitcnt lgkmcnt(0)")
    a(f"v_xor_b32 v{PB+1}, s{TAG}, v{PB+1}")
    a(f"v_bitop3_b32 v{PB+1}, v{PB+3}, s{TAG}, v{PB+1} bitop3:0xbe")
    a(f"v_cmp_ne_u32 vcc, 0, v{PB+1}")
    a(f"v_max_u32 v{PB}, v{PB}, v{PB+2}")
    retry("L_kd", o.kdma)
    keys_max(PB)
    a(f"s_and_b32 s{SEL}, s{SEL}, 2047")
    a(f"v_mov_b32 v110, s{SEL}")
    a("ds_write_b32 v109, v110")
    a("s_waitcnt lgkmcnt(0)")
    a.label("L_a5")
    a("s_cmp_ge_u32 s3, 4")
    a("s_cbranch_scc1 L_a6")
    a("s_waitcnt vmcnt(5)")
    a(f"s_cmp_lg_u32 s{PRM}, 128")
    a("s_cbranch_scc1 L_a6")
    a("s_waitcnt vmcnt(0)")
    a.label("L_a6")
    dstamp(10, False)
    a("s_barrier")
    dstamp(11, False)
    p_issue()
    a("ds_read_b32 v109, v109")
    for k in range(4):
        a(f"ds_read_b128 {V(TW+16+4*k,4)}, v{KA} offset:{L_TAB+2048+1024*k}")
    a(f"ds_read_b128 {V(FRE,4)}, v{KA} offset:{L_TAB}")
    a(f"ds_read_b128 {V(FIM,4)}, v{KA} offset:{L_TAB+1024}")
    for k in range(4):
        a(f"ds_read_b128 {V(B3+4*k,4)}, v{KA} offset:{L_TAB+6144+1024*k}")
    a("s_waitcnt vmcnt(4)")
    a(f"s_cmp_lg_u32 s{PRM}, 128")
    a("s_cbranch_scc1 L_a7")
    a("s_waitcnt vmcnt(2)")
    a.label("L_a7")
    for k in range(4):
        for rho in range(2):
            a(f"v_dot2_f32_bf16 v{110+rho}, v{XR2+4*rho+k}, v{GW2+k}, {('v%d' % (110+rho)) if k else 0}")
    for rho in range(2):
        for k in range(2):
            a(f"v_permlane16_swap_b32 v{XR2+4*rho+k}, v{XR2+4*rho+2+k}")
    a("v_permlane32_swap_b32 v110, v111")
    a("v_add_f32 v110, v110, v111")
    a("v_mov_b32 v111, v110")
    a("v_permlane16_swap_b32 v110, v111")
    a("v_add_f32 v110, v110, v111")
    xg = []
    for rho in range(2):
        for k in range(4):
            x = XR2 + 4 * rho + k
            d = XG + 8 * rho + 2 * k
            xg.append(f"v_lshlrev_b32 v{d}, 16, v{x}")
            xg.append(f"v_and_b32 v{d+1}, 0xffff0000, v{x}")
    for l in cap(rowsum, 110) + cap(sigmoid, 110, 110):
        a(l)
        a(xg.pop(0))
        a(xg.pop(0))
    a("v_mov_b32 v111, v110")
    a("v_permlane32_swap_b32 v110, v111")
    a("s_waitcnt lgkmcnt(0)")
    a(f"v_readfirstlane_b32 s{SEL}, v109")
    a(f"v_sub_f32 v{t}, 1.0, v110")
    a(f"v_sub_f32 v{t+1}, 1.0, v111")
    for k in range(8):
        a(f"v_pk_mul_f32 {V(TW+2*k,2)}, {V(TW+16+2*k,2)}, v[110:111] op_sel:[0,0] op_sel_hi:[1,0]")
    for k in range(8):
        a(f"v_pk_mul_f32 {V(TW+16+2*k,2)}, {V(TW+16+2*k,2)}, v[110:111] op_sel:[0,1] op_sel_hi:[1,1]")
    for rho in range(2):
        for k in range(4):
            d = XG + 8 * rho + 2 * k
            a(f"v_pk_mul_f32 {V(d,2)}, {V(d,2)}, {V(t,2)} op_sel:[0,{rho}] op_sel_hi:[1,{rho}]")
    a(f"v_mov_b32 v{t}, 0x80000000")
    for i in range(4):
        a(f"v_xor_b32 v{FRC+i}, v{t}, v{FRE+i}")
        a(f"v_xor_b32 v{FIC+i}, v{t}, v{FIM+i}")
    dstamp(9, False)
    c1("L_a")
    a("s_waitcnt lgkmcnt(0)")
    a("s_barrier")
    stamp(7)
    for h in range(2):
        a(f"ds_read_b128 {V(16+4*h,4)}, v62 offset:{h*1024}")

    def c2(rho, h):
        k = 2 * rho + h
        return [f"{MF} {V(D2+8*k,4)}, {V(16+4*h,4)}, {V(FRC if rho else FRE,4)}, 0",
                f"{MF} {V(D2+8*k+4,4)}, {V(16+4*h,4)}, {V(FIC if rho else FIM,4)}, 0"]

    def tw(rho, h):
        k = 2 * rho + h
        return cap(twpk, D2 + 8 * k, TW + 8 * k, TW + 8 * k + 4, GF + 4 * k)

    def c3(rho, h):
        r = []
        for tau in range(2):
            acc = V(D3 + 8 * rho + 4 * tau, 4)
            cin = acc if h else V(XG + 8 * rho + 4 * tau, 4)
            r.append(f"{MF} {acc}, {V(GF+4*(2*rho+h),4)}, {V(B3+8*h+4*tau,4)}, {cin}")
        return r

    def outcv(rho):
        for k in range(4):
            a(f"v_cvt_pk_bf16_f32 v{8+4*rho+k}, v{D3+8*rho+2*k}, v{D3+8*rho+2*k+1}")
        for k in range(2):
            a(f"v_permlane16_swap_b32 v{8+4*rho+k}, v{8+4*rho+2+k}")

    def outst(rho):
        l = a.L("sk")
        a(f"s_cmp_eq_u32 s{ROWA+rho}, s{SEL}")
        a(f"s_cbranch_scc1 {l}")
        if rho:
            a(f"s_and_b32 s{T0}, s{PRM}, 127")
            a(f"s_cbranch_scc0 {l}")
        a(f"buffer_store_dwordx4 {V(8+4*rho,4)}, v4, {R4(R_OUT)}, s{12+rho} offen sc1")
        a.label(l)

    lg(1)
    for l in c2(0, 0):
        a(l)
    lg(0)
    for l in c2(0, 1) + c2(1, 0)[:1]:
        a(l)
    weave(tw(0, 0), c2(1, 0)[1:] + c2(1, 1), 4, 2)
    weave(tw(0, 1), c3(0, 0), 4, 2)
    weave(tw(1, 0), c3(0, 1), 4, 2)
    weave(tw(1, 1), c3(1, 0), 4, 2)
    weave(cap(outcv, 0), c3(1, 1), 2, 2)
    outst(0)
    outcv(1)
    outst(1)
    stamp(8)
    fini(12)

    a.label("L_ack128")
    a(f"s_mov_b32 m0, {L_KB}")
    a("s_mov_b64 exec, 1")
    a(f"v_mov_b32 v{t}, {WS_ACK:#x}")
    a(f"v_mov_b32 v{t+1}, s{TAG}")
    a(f"buffer_store_dword v{t+1}, v{t}, {R4(R_WS)}, 0 offen sc1")
    a("s_mov_b64 exec, -1")
    a("s_branch L_nos2")

    a.label("L_low")
    a(f"s_lshl_b32 s{T0}, s{XC}, 3")
    a(f"s_mul_i32 s{T2}, s{XC}, 6")
    a(f"s_add_u32 s{T2}, s{T2}, 8")
    a(f"s_cmp_lt_u32 s{XC}, 4")
    a(f"s_cselect_b32 s{T0}, s{T0}, s{T2}")
    a(f"s_cselect_b32 s{T1}, 8, 6")
    a(f"s_and_b32 s{T2}, s{KK}, 7")
    a(f"s_add_u32 s{PRM}, s{T0}, s{T2}")
    a(f"s_cmp_ge_u32 s{T2}, s{T1}")
    a("s_cbranch_scc1 L_misc")
    a(f"s_cmp_lt_u32 s{KK}, 8")
    a("s_cbranch_scc1 L_f")

    a("v_lshrrev_b32 v4, 1, v0")
    a("v_and_b32 v5, 1, v0")
    a("v_lshlrev_b32 v5, 6, v5")
    a(f"s_lshl_b32 s{T1}, s3, 5")
    a(f"v_add_u32 v4, s{T1}, v4")
    a("v_mul_u32_u24 v4, 3584, v4")
    a("v_add_u32 v4, v4, v5")
    a(f"s_lshr_b32 s{T0}, s{PRM}, 1")
    a(f"s_lshl_b32 s{T0}, s{T0}, 7")
    a(f"s_bitcmp1_b32 s{PRM}, 0")
    a(f"s_cselect_b32 s{T1}, {256*3584}, 0")
    a(f"s_cselect_b32 s{T2}, {(4 - o.apf) * 64 * 3584}, 0")
    a(f"s_add_u32 s{T1}, s{T1}, s{T0}")
    a(f"s_add_u32 s{T2}, s{T2}, s{T0}")
    a("s_waitcnt lgkmcnt(0)")
    a.srd(R_A, 18, 512 * 3584)
    a.srd(R_B, 20, 512 * 3584)
    if o.hnat == 1:
        mtouch([(20, 0), (18, 0)])
        a("s_waitcnt vmcnt(0)")
    elif o.hnat:
        for k in range(o.hnat - 1):
            a(f"s_load_dword s{TAG}, s[{18 + 2*(k&1)}:{19 + 2*(k&1)}], 0")
            a("s_waitcnt lgkmcnt(0)")
    if o.hdelay:
        a(f"s_sleep {o.hdelay}")
    a(f"buffer_load_dword v8, v4, {R4(R_B)}, s{T1} offen")
    a("s_barrier")
    a(f"s_cmp_ge_u32 s3, {2 * (4 - o.apf)}")
    a("s_cbranch_scc1 L_end")
    a(f"buffer_load_dword v10, v4, {R4(R_A)}, s{T2} offen")
    a("s_endpgm")

    a.label("L_misc")
    a(f"s_cmp_eq_u32 s{KK}, 7")
    a("s_cbranch_scc1 L_fin")
    a(f"s_cmp_eq_u32 s{KK}, 14")
    a("s_cbranch_scc1 L_fin")
    a(f"s_cmp_eq_u32 s{KK}, 15")
    a("s_cbranch_scc1 L_w")
    a(f"s_cmp_lg_u32 s{XC}, 4")
    a("s_cbranch_scc1 L_end")
    a(f"s_mov_b32 s{PRM}, 128")
    a(f"s_mov_b32 s{SLOT}, 0")
    a(f"s_mov_b32 s{KK}, 15")
    a("s_branch L_a")

    a.label("L_w")
    a(f"s_and_b32 s{T0}, s{XC}, 3")
    a(f"s_lshl3_add_u32 s{T0}, s{T0}, s3")
    a(f"s_lshl_b32 s{T1}, s{T0}, 12")
    a(f"s_add_u32 s{T1}, s{T1}, {WS_KEY:#x}")
    a(f"v_lshlrev_b32 v4, 6, v{VN}")
    a(f"v_lshl_add_u32 v4, v{VQ}, 11, v4")
    a("v_lshlrev_b32 v6, 6, v0")
    a("v_mov_b32 v5, 0")
    a("s_waitcnt lgkmcnt(0)")
    a.srd(R_WS, 30, WS_BYTES)
    a("s_mov_b32 exec_hi, 0")
    a(f"buffer_atomic_or v5, v4, {R4(R_WS)}, s{T1} offen sc1")
    a(f"s_cmp_lg_u32 s{T0}, 0")
    a("s_cbranch_scc1 L_end")
    a(f"s_movk_i32 s{T1}, {WS_FRDY:#x}")
    a(f"buffer_atomic_or v5, v6, {R4(R_WS)}, s{T1} offen sc1")
    a("s_endpgm")

    a.label("L_f")
    WGF, WDF, XF, DG, DD = 16, 48, 64, 80, 88
    a(f"s_lshr_b32 s{REP}, s{PRM}, 1")
    a(f"s_xor_b32 s{WSEL}, s3, 7")
    a("v_lshrrev_b32 v8, 3, v0")
    a("v_and_b32 v9, 2, v8")
    a("v_and_b32 v10, 7, v0")
    a("v_xor_b32 v9, v9, v10")
    a("v_lshlrev_b32 v9, 4, v9")
    a("v_lshl_add_u32 v5, v8, 10, v9")
    a("v_xor_b32 v6, 64, v5")
    a(f"s_lshl_b32 s13, s{PRM}, 15")
    a(f"s_lshl_b32 s{T1}, s3, 7")
    a(f"s_add_u32 s13, s13, s{T1}")
    a(f"s_lshl_b32 s6, s3, 12")
    a(f"s_add_u32 s6, s6, {LF_WD}")
    srds()
    a.srd(R_C, 22, 1792 * 1024)
    if o.fnat:
        tag_ready()
    if o.fdelay:
        a(f"s_sleep {o.fdelay}")

    def gu_dma():
        for n in range(8):
            if n in (0, 4):
                l = a.L("fq")
                a("s_cmp_lg_u32 s3, 0")
                a(f"s_cbranch_scc1 {l}")
                a(f"s_mov_b32 m0, {LF_K}")
                a(f"buffer_load_dwordx4 v{KA}, {R4(R_WS)}, s15 offen sc1 lds")
                a.label(l)
            a(f"s_add_u32 m0, s14, {n*1024}")
            a(f"buffer_load_dwordx4 v4, {R4(R_A)}, s12 offen lds")
            if n < 7:
                a(f"s_add_u32 s12, s12, {16*3584}")

    def wd_dma():
        for n in range(4):
            a(f"s_add_u32 m0, s6, {n*1024}")
            a(f"buffer_load_dwordx4 v{5+(n&1)}, {R4(R_C)}, s13 offen lds")
            if n < 3:
                a(f"s_add_u32 s13, s13, 8192")

    def trs(extra):
        for sg in range(4):
            a(f"s_waitcnt vmcnt({6 - 2*sg + extra})")
            for tt in range(2):
                for hh in range(2):
                    a(f"ds_read_b64_tr_b16 {V(WGF+8*sg+4*tt+2*hh,2)}, v{12 if tt else 7} offset:{sg*2048+hh*256}")

    wd_dma()
    if o.tlb & 2:
        a("s_cmp_lg_u32 s3, 0")
        a("s_cbranch_scc1 L_nomf")
        mtouch([(18, 0), (20, 0), (4, 0), (30, 0x3000)])
        a.label("L_nomf")
    a(f"s_cmp_lt_u32 s{WSEL}, 4")
    a(f"s_cselect_b32 s{R_A}, s18, s20")
    a(f"s_cselect_b32 s{R_A+1}, s19, s21")
    a(f"s_mov_b32 s{R_A+2}, {512*3584:#x}")
    a(f"s_mov_b32 s{R_A+3}, 0x20000")
    a("v_lshrrev_b32 v8, 2, v0")
    a("v_mul_u32_u24 v4, 3584, v8")
    a("v_lshrrev_b32 v8, 2, v8")
    a("v_and_b32 v8, 2, v8")
    a("v_and_b32 v9, 3, v0")
    a("v_xor_b32 v8, v8, v9")
    a("v_lshl_add_u32 v4, v8, 4, v4")
    a(f"s_and_b32 s{T0}, s{WSEL}, 3")
    a(f"s_mul_i32 s12, s{T0}, {128*3584}")
    a(f"s_lshl_b32 s{T1}, s{PRM}, 6")
    a(f"s_add_u32 s12, s12, s{T1}")
    a(f"s_lshl_b32 s14, s3, 13")
    a(f"v_lshrrev_b32 v8, 2, v{VN}")
    a(f"v_lshl_add_u32 v9, v{VQ}, 3, v8")
    a("v_and_b32 v10, 3, v0")
    a("v_lshlrev_b32 v10, 3, v10")
    a(f"v_and_b32 v11, 1, v{VQ}")
    a("v_lshl_add_u32 v7, v9, 6, v10")
    a("v_lshl_add_u32 v7, v11, 5, v7")
    a("v_add_u32 v7, s14, v7")
    a("v_xor_b32 v12, 32, v7")
    a("v_lshrrev_b32 v8, 1, v8")
    a("v_lshl_add_u32 v8, v11, 1, v8")
    a("v_lshl_add_u32 v112, v9, 7, v10")
    a("v_lshl_add_u32 v112, v8, 5, v112")
    a("v_add_u32 v112, s6, v112")
    for u in range(1, 4):
        a(f"v_xor_b32 v{112+u}, {32*u}, v112")
    a(f"s_and_b32 s{T0}, s{WSEL}, 3")
    a(f"s_lshl_b32 s{T0}, s{T0}, 8")
    a(f"s_add_u32 s{T0}, s{T0}, {LF_X}")
    a(f"v_lshlrev_b32 v14, 4, v{VQ}")
    a(f"v_add_u32 v15, s{T0}, v14")
    a(f"s_lshl_b32 s{T0}, s{WSEL}, 7")
    a(f"s_add_u32 s{T0}, s{T0}, {LF_E}")
    a(f"v_add_u32 v107, s{T0}, v14")
    a(f"v_lshl_add_u32 v111, v{VQ}, 5, v10")
    a(f"v_add_u32 v111, {LF_E}, v111")
    a(f"v_lshlrev_b32 v108, 3, v{VQ}")
    a(f"v_lshl_add_u32 v108, v{VN}, 5, v108")
    a(f"s_mul_i32 s8, s3, {56*128}")
    a(f"s_lshl_b32 s{T1}, s{PRM}, 7")
    a(f"s_add_u32 s8, s8, s{T1}")
    a(f"s_add_u32 s8, s8, {WS_PART:#x}")
    keys_addr(PB)
    if not o.fnat:
        tag_ready()
    tagv(TGV)
    a(f"s_lshl_b32 s7, s{PRM}, 2")
    a(f"s_add_u32 s7, s7, {WS_FRDY:#x}")
    a("v_lshlrev_b32 v122, 8, v0")
    a(f"v_mov_b32 v123, s{TAG}")
    a(f"v_add_u32 v110, 65536, v{KA}")
    a(f"s_not_b32 s{T3}, s{TAG}")
    for r in range(4):
        a(f"v_mov_b32 v{PB+r}, s{T3}")
    a(f"ds_write_b128 v110, {V(PB,4)} offset:{LF_K - 65536}")
    a("s_waitcnt vmcnt(0) lgkmcnt(0)")
    a("s_barrier")
    stamp(7)
    gu_dma()
    for u in range(4):
        for hh in range(2):
            a(f"ds_read_b64_tr_b16 {V(WDF+4*u+2*hh,2)}, v{112+u} offset:{hh*512}")
    a("s_cmp_lg_u32 s3, 0")
    a("s_cbranch_scc1 L_fk1")
    a(f"s_mov_b32 m0, {LF_K}")
    a.label("L_fk")
    a(f"buffer_load_dwordx4 v{KA}, {R4(R_WS)}, s15 offen sc1 lds")
    a(f"ds_read_b128 {V(PB,4)}, v110 offset:{LF_K - 65536}")
    a("s_waitcnt lgkmcnt(0)")
    a(f"v_xor_b32 v{PB+1}, s{TAG}, v{PB+1}")
    a(f"v_bitop3_b32 v{PB+1}, v{PB+3}, s{TAG}, v{PB+1} bitop3:0xbe")
    a(f"v_cmp_ne_u32 vcc, 0, v{PB+1}")
    a(f"v_max_u32 v{PB}, v{PB}, v{PB+2}")
    retry("L_fk", 2)
    keys_max(PB)
    stamp(3)
    a(f"s_and_b32 s{SEL}, s{SEL}, 2047")
    a(f"s_lshl_b32 s{T0}, s{SEL}, 10")
    a(f"s_mov_b32 m0, {LF_X}")
    a(f"buffer_load_dwordx4 v{KA}, {R4(R_X)}, s{T0} offen lds")
    a("s_waitcnt vmcnt(1)")
    trs(8)
    a("s_waitcnt vmcnt(0)")
    a("s_branch L_f2")
    a.label("L_fk1")
    trs(0)
    a.label("L_f2")
    stamp(2)
    a("s_waitcnt lgkmcnt(0)")
    stamp(4)
    a("s_barrier")
    stamp(5)
    for sg in range(4):
        a(f"ds_read_b128 {V(XF+4*sg,4)}, v15 offset:{sg*64}")

    def frdy():
        l = a.L("fr")
        a("s_cmp_lg_u32 s3, 7")
        a(f"s_cbranch_scc1 {l}")
        a("s_mov_b64 exec, 0xff")
        a(f"buffer_store_dword v123, v122, {R4(R_WS)}, s7 offen sc1")
        a("s_mov_b64 exec, -1")
        a.label(l)
    if o.frdy == 1:
        frdy()
    for sg in range(4):
        lg(3 - sg)
        for tt in range(2):
            a(f"{MF} {V(DG+4*tt,4)}, {V(WGF+8*sg+4*tt,4)}, {V(XF+4*sg,4)}, {V(DG+4*tt,4) if sg else 0}")
    a("s_mov_b32 exec_lo, 0x10001")
    a("s_mov_b32 exec_hi, 0x10001")
    for tt in range(2):
        a(f"ds_write_b128 v107, {V(DG+4*tt,4)} offset:{tt*64}")
    a("s_mov_b64 exec, -1")
    a("s_waitcnt lgkmcnt(0)")
    a("s_barrier")
    for k in range(8):
        a(f"ds_read_b64 {V(XF+2*k,2)}, v111 offset:{128*k}")
    if o.frdy == 2:
        frdy()
    for m in range(2):
        lg(4 - 4 * m)
        b = XF + 8 * m
        a(f"v_pk_add_f32 {V(b,2)}, {V(b,2)}, {V(b+2,2)}")
        a(f"v_pk_add_f32 {V(b+4,2)}, {V(b+4,2)}, {V(b+6,2)}")
        a(f"v_pk_add_f32 {V(b,2)}, {V(b,2)}, {V(b+4,2)}")
        if m == 0:
            weave(cap(sigmoid, XF + 2, XF), cap(sigmoid, XF + 3, XF + 1), 1)
            a(f"v_pk_mul_f32 {V(XF,2)}, {V(XF,2)}, {V(XF+2,2)}")
    a(f"v_pk_mul_f32 {V(XF,2)}, {V(XF,2)}, {V(XF+8,2)}")
    a(f"v_cvt_pk_bf16_f32 v{XF}, v{XF}, v{XF+1}")
    for k in range(4):
        a(f"v_mov_b32_dpp v{XF+8+k}, v{XF} quad_perm:[{k},{k},{k},{k}] row_mask:0xf bank_mask:0xf")
    for u in range(4):
        a(f"{MF} {V(DD+4*u,4)}, {V(WDF+4*u,4)}, {V(XF+8,4)}, 0")
    for u in range(4):
        a(f"s_mov_b32 exec_lo, {0x00010001 << u:#x}")
        a(f"s_mov_b32 exec_hi, {0x00010001 << u:#x}")
        a(f"v_cvt_pk_bf16_f32 v120, v{DD+4*u}, v{DD+4*u+1}")
        a(f"v_cvt_pk_bf16_f32 v121, v{DD+4*u+2}, v{DD+4*u+3}")
    a("s_mov_b32 exec_lo, 0x000f000f")
    a("s_mov_b32 exec_hi, 0x000f000f")
    a(f"v_bitop3_b32 v120, v{TGV+2}, v{TGV}, v120 bitop3:0xca")
    a(f"v_bitop3_b32 v121, v{TGV+2}, v{TGV+1}, v121 bitop3:0xca")
    a(f"buffer_store_dwordx2 v[120:121], v108, {R4(R_WS)}, s8 offen sc1")
    a("s_mov_b64 exec, -1")
    stamp(6)
    fini(8)

    GW = 28
    a.label("L_fin")
    rowoff()
    a(f"s_add_u32 s{REP}, s{XC}, 24")
    a(f"s_lshr_b32 s{FC}, s{KK}, 1")
    a(f"s_and_b32 s{FC}, s{FC}, 4")
    a(f"s_add_u32 s{FC}, s{FC}, s{XC}")
    a(f"s_sub_u32 s{FC}, s{FC}, 4")
    srds()
    a.srd(R_B, 24, 1024)
    a(f"buffer_load_dwordx4 {V(GW,4)}, v4, {R4(R_B)}, 0 offen")
    dma_blocks((3, (0,)))
    a(f"s_and_b32 s{T3}, s3, 1")
    a(f"s_add_u32 s{T3}, s{T3}, 8")
    dma_blocks((T3, (0,)))
    a.srd(R_OUT, 26, 2 << 20)
    mtouch([(4, 0), (26, 0), (30, 0x3000), (30, WS_P + 0x3000)])
    p2addr()
    keys_addr(PB)
    a(f"s_mul_i32 s7, s{FC}, {56*128}")
    a(f"s_lshl_b32 s{T1}, s3, 10")
    a(f"s_add_u32 s7, s7, s{T1}")
    a(f"s_add_u32 s7, s7, {WS_PART - 1024:#x}")
    a(f"v_and_b32 v108, 1, v{VQ}")
    a(f"v_lshrrev_b32 v111, 1, v{VQ}")
    a("v_lshl_add_u32 v108, v108, 1, v111")
    a(f"v_and_b32 v107, 7, v{VN}")
    a(f"v_lshl_add_u32 v108, v107, 3, v108")
    a(f"s_lshl_b32 s{T0}, s3, 8")
    a(f"s_add_u32 s{T0}, s{T0}, {L_Y - 256}")
    a(f"v_lshl_add_u32 v108, v108, 2, s{T0}")
    a(f"v_and_b32 v111, 3, v{VN}")
    a(f"v_lshlrev_b32 v111, 6, v111")
    a(f"v_lshl_add_u32 v111, v{VQ}, 4, v111")
    a(f"v_mov_b32 v109, {L_SEL}")
    tag_ready()
    a("s_cmp_lg_u32 s3, 0")
    a("s_cbranch_scc1 L_fin0")
    a(f"s_cmp_eq_u32 s{FC}, 0")
    a("s_cbranch_scc1 L_fin0")
    a(f"s_lshl_b32 s{T0}, s{FC}, 7")
    a(f"v_mov_b32 v{t}, {WS_ACK:#x}")
    a(f"v_mov_b32 v{t+1}, s{TAG}")
    a("s_mov_b64 exec, 1")
    a(f"buffer_store_dword v{t+1}, v{t}, {R4(R_WS)}, s{T0} offen sc1")
    a("s_mov_b64 exec, -1")
    a.label("L_fin0")
    tagv(TGV)
    a("s_waitcnt vmcnt(0)")
    a("s_barrier")
    a(f"s_lshr_b32 s{T0}, s{FC}, 2")
    a(f"s_lshl_b32 s{T0}, s{T0}, 10")
    a(f"v_add_u32 v110, s{T0}, v{KA}")
    a(f"ds_read_b128 {V(FRE,4)}, v{KA} offset:{L_TAB}")
    a(f"ds_read_b128 {V(FIM,4)}, v{KA} offset:{L_TAB+1024}")
    for k in range(4):
        a(f"ds_read_b128 {V(TW+4*k,4)}, v{KA} offset:{L_TAB+2048+1024*k}")
    for h in range(2):
        a(f"ds_read_b128 {V(B3+4*h,4)}, v110 offset:{L_TAB+6144+2048*h}")
    stamp(2)
    a("s_cmp_lg_u32 s3, 0")
    a("s_cbranch_scc1 L_fin1a")
    keys_pipe(PB, False)
    a(f"v_mov_b32 v110, s{SEL}")
    a("ds_write_b32 v109, v110")
    a(f"s_and_b32 s{T0}, s{SEL}, 2047")
    a(f"s_lshl_b32 s12, s{T0}, 10")
    a(f"buffer_load_dwordx4 {V(XR,4)}, v4, {R4(R_X)}, s12 offen")
    a("s_branch L_fin1")
    a.label("L_fin1a")
    a(f"s_lshl3_add_u32 s{T0}, s{FC}, s3")
    a(f"s_cmp_lg_u32 s{T0}, 2")
    a("s_cbranch_scc1 L_fin1")
    a(f"v_lshlrev_b32 v{PB}, 7, v0")
    a("s_mov_b64 exec, 0xff")
    a(f"s_movk_i32 s{T0}, {WS_ACK:#x}")
    a.label("L_ack")
    a(f"buffer_load_dword v{PB+1}, v{PB}, {R4(R_WS)}, s{T0} offen sc1")
    a("s_waitcnt vmcnt(0)")
    a(f"v_cmp_ne_u32 vcc, s{TAG}, v{PB+1}")
    retry("L_ack")
    a("s_mov_b64 exec, -1")
    a.label("L_fin1")
    a("s_waitcnt lgkmcnt(0)")
    a("s_barrier")
    stamp(3)
    a("ds_read_b32 v110, v109")
    a("s_waitcnt lgkmcnt(0)")
    a(f"v_readfirstlane_b32 s{RS}, v110")
    a(f"s_and_b32 s{SEL}, s{RS}, 2047")
    a(f"s_and_b32 s{T0}, s{SEL}, 255")
    a(f"s_and_b32 s{T1}, s{SEL}, 15")
    a(f"s_and_b32 s{T2}, s{SEL}, 7")
    a(f"s_cselect_b32 s{T0}, s{T1}, s{T0}")
    a(f"s_cselect_b32 s{T1}, 8, 128")
    a(f"s_cmp_gt_u32 s{T0}, s{T1}")
    a(f"s_cselect_b32 s{RHO}, 0x80000000, 0")
    a(f"s_sub_u32 s{T1}, 2048, s{SEL}")
    a(f"s_cmp_lg_u32 s{RHO}, 0")
    a(f"s_cselect_b32 s{T0}, s{T1}, s{SEL}")
    a(f"s_and_b32 s{PRM}, s{T0}, 255")
    a(f"s_lshr_b32 s{WSEL}, s{T0}, 8")
    a(f"s_lshr_b32 s{T0}, s{PRM}, 4")
    a(f"s_and_b32 s{T1}, s{PRM}, 15")
    a(f"s_lshl4_add_u32 s{SLOT}, s{T1}, s{T0}")
    a(f"s_add_u32 s{T2}, s{T0}, s{T1}")
    a(f"s_cmp_eq_u32 s{T1}, 8")
    a(f"s_cselect_b32 s{SLOT}, s{T2}, s{SLOT}")
    a(f"s_cmp_eq_u32 s{PRM}, 128")
    a(f"s_cselect_b32 s{SLOT}, 0, s{SLOT}")
    a(f"s_lshl_b32 s14, s{SLOT}, 14")
    a(f"s_lshl_b32 s{T0}, s3, 8")
    a(f"s_add_u32 s14, s14, s{T0}")
    a(f"s_add_u32 s14, s14, {WS_P:#x}")
    a1consts("L_fin")
    a("s_cmp_lg_u32 s3, 0")
    a("s_cbranch_scc1 L_fin3")
    p2read_addr(WSEL)
    for i in range(4):
        a(f"v_xor_b32 v{FRE+i}, s{RHO}, v{FRE+i}")
        a(f"v_xor_b32 v{FIM+i}, s{RHO}, v{FIM+i}")
    a(f"s_ashr_i32 s{T0}, s{RS}, 31")
    a(f"s_orn2_b32 s{T0}, 0x80000000, s{T0}")
    a(f"s_xor_b32 s{RS}, s{RS}, s{T0}")
    a("s_waitcnt vmcnt(0)")
    for k in range(4):
        a(f"v_dot2_f32_bf16 v32, v{XR+k}, v{GW+k}, {'v32' if k else 0}")
    rowsum(32)
    a("v_mov_b32 v33, v32")
    a("v_permlane32_swap_b32 v32, v33")
    a("v_add_f32 v32, v32, v33")
    a("v_mov_b32 v33, v32")
    a("v_permlane16_swap_b32 v32, v33")
    a("v_add_f32 v32, v32, v33")
    a(f"v_mov_b32 v33, s{RS}")
    weave(cap(sigmoid, 34, 32), cap(sigmoid, 35, 33), 1)
    for k in range(2):
        a(f"v_permlane16_swap_b32 v{XR+k}, v{XR+2+k}")
    a(f"s_bitcmp1_b32 s{FC}, 2")
    a("s_cbranch_scc0 L_fint")
    a(f"v_mov_b32 v{XR}, v{XR+2}")
    a(f"v_mov_b32 v{XR+1}, v{XR+3}")
    a.label("L_fint")
    a(f"v_sub_f32 v36, 1.0, v34")
    for k in range(2):
        a(f"v_lshlrev_b32 v{XG+2*k}, 16, v{XR+k}")
        a(f"v_and_b32 v{XG+2*k+1}, 0xffff0000, v{XR+k}")
        a(f"v_pk_mul_f32 {V(XG+2*k,2)}, {V(XG+2*k,2)}, v[36:37] op_sel_hi:[1,0]")
    a(f"v_mul_f32 v38, v35, v36")
    for k in range(8):
        a(f"v_pk_mul_f32 {V(TW+2*k,2)}, {V(TW+2*k,2)}, v[34:35] op_sel_hi:[1,0]")
    a.label("L_fin3")
    if o.finb:
        a("s_barrier")
    stamp(5)
    p_issue()
    c1("L_fin")
    a("s_waitcnt lgkmcnt(0)")
    a("s_barrier")
    stamp(7)
    a("s_cmp_lg_u32 s3, 0")
    a("s_cbranch_scc1 L_pp0")
    for h in range(2):
        a(f"ds_read_b128 {V(16+4*h,4)}, v62 offset:{h*1024}")
    for h in range(2):
        lg(1 - h)
        a(f"{MF} {V(D2+8*h,4)}, {V(16+4*h,4)}, {V(FRE,4)}, 0")
        a(f"{MF} {V(D2+8*h+4,4)}, {V(16+4*h,4)}, {V(FIM,4)}, 0")
    for h in range(2):
        twpk(D2 + 8 * h, TW + 8 * h, TW + 8 * h + 4, GF + 4 * h)
        a(f"{MF} {V(D3,4)}, {V(GF+4*h,4)}, {V(B3+4*h,4)}, {V(D3 if h else XG,4)}")
    a(f"v_lshlrev_b32 v4, 5, v{VN}")
    a(f"v_lshl_add_u32 v4, v{VQ}, 3, v4")
    a(f"s_lshr_b32 s{T1}, s{FC}, 2")
    a(f"s_lshl_b32 s{T1}, s{T1}, 9")
    a(f"s_add_u32 s12, s12, s{T1}")
    if o.frdy:
        a("s_barrier")
    a("s_branch L_fin5")
    a.label("L_pp0")
    if o.frdy:
        a("s_cmp_lg_u32 s3, 1")
        a("s_cbranch_scc1 L_pp1")
        a(f"s_lshl_b32 s{T0}, s{FC}, 8")
        a(f"s_add_u32 s{T0}, s{T0}, {WS_FRDY:#x}")
        a(f"v_lshlrev_b32 v{PB}, 2, v0")
        a("s_mov_b32 exec_hi, 0x00ffffff")
        def issue(j):
            a(f"v_mov_b32 v{PB+1+j}, 0")
            a(f"buffer_atomic_or v{PB+1+j}, v{PB}, {R4(R_WS)}, s{T0} offen sc0 sc1")
        poll_pipe("L_fr", 3, issue, lambda j: a(f"v_cmp_ne_u32 vcc, s{TAG}, v{PB+1+j}"), 1, lambda j: None)
        a("s_mov_b64 exec, -1")
        a.label("L_pp1")
        stamp(4)
        a("s_barrier")
    a.label("L_pp")
    a(f"buffer_load_dwordx4 v[8:11], v{KA}, {R4(R_WS)}, s7 offen sc1")
    a("s_waitcnt vmcnt(0)")
    tagcheck(8, 4)
    for k in range(4):
        a(f"v_lshlrev_b32 v{16+2*k}, 16, v{8+k}")
        a(f"v_and_b32 v{17+2*k}, 0xffff0000, v{8+k}")
    retry("L_pp")
    weave(cap(fold4, 16, 17, 18, 19), cap(fold4, 20, 21, 22, 23), 1)
    a("v_add_f32_dpp v16, v16, v16 row_ror:8 row_mask:0xf bank_mask:0xf")
    a("v_add_f32_dpp v20, v20, v20 row_ror:8 row_mask:0xf bank_mask:0xf")
    a("ds_write2_b32 v108, v16, v20 offset0:0 offset1:4")
    a("s_waitcnt lgkmcnt(0)")
    a.label("L_fin5")
    stamp(8)
    a("s_barrier")
    stamp(9)
    a("s_cmp_lg_u32 s3, 0")
    a("s_cbranch_scc1 L_fin7")
    for k in range(7):
        a(f"ds_read_b128 {V(64+4*k,4)}, v111 offset:{L_Y+256*k}")
    a(f"s_and_b32 s{T1}, s{FC}, 3")
    a(f"s_lshl_b32 s{T1}, s{T1}, 2")
    a("s_waitcnt lgkmcnt(0)")
    for k in (1, 3, 5):
        for p in range(2):
            a(f"v_pk_add_f32 {V(64+4*k+2*p,2)}, {V(64+4*k+2*p,2)}, {V(68+4*k+2*p,2)}")
    for p in range(2):
        a(f"v_pk_add_f32 {V(64+2*p,2)}, {V(64+2*p,2)}, {V(68+2*p,2)}")
        a(f"v_pk_add_f32 {V(76+2*p,2)}, {V(76+2*p,2)}, {V(84+2*p,2)}")
    for p in range(2):
        a(f"v_pk_add_f32 {V(64+2*p,2)}, {V(64+2*p,2)}, {V(76+2*p,2)}")
    for p in range(2):
        a(f"v_pk_fma_f32 {V(64+2*p,2)}, {V(64+2*p,2)}, v[38:39], {V(D3+2*p,2)} op_sel_hi:[1,0,1]")
    a("v_cvt_pk_bf16_f32 v16, v64, v65")
    a("v_cvt_pk_bf16_f32 v17, v66, v67")
    a(f"s_lshl_b32 exec_lo, 0x000f000f, s{T1}")
    a("s_mov_b32 exec_hi, exec_lo")
    a(f"buffer_store_dwordx2 v[16:17], v4, {R4(R_OUT)}, s12 offen sc1")
    a(f"s_cmp_lg_u32 s{FC}, 0")
    a("s_cbranch_scc1 L_fin7")
    a("s_mov_b64 exec, 1")
    a(f"v_mov_b32 v20, {WS_EPOCH}")
    a(f"v_mov_b32 v21, s{TAG}")
    a(f"buffer_store_dword v21, v20, {R4(R_WS)}, 0 offen sc1")
    a.label("L_fin7")
    fini(10)
    a.label("L_end")
    a("s_endpgm")


def emit_tables(a):
    T = tables()
    a.raw(".p2align 7")
    a.raw(".type L_tab,@object")
    a.label("L_tab")
    for k in range(0, len(T), 8):
        a.raw(".long " + ", ".join("0x%x" % v for v in T[k:k + 8]))
    a.label("L_tabend")
    a.raw(".size L_tab, L_tabend - L_tab")


if __name__ == "__main__":
    ap = argparse.ArgumentParser()
    ap.add_argument("-o", required=True)
    for k, v in dict(stamps=0, tlb=7, cpf=1, kr=64, ksleep=1, dbg=0, kp=3, psleep=4, frdy=2, hdelay=0, fdelay=0, kload=1, kdma=2,
                     apf=2, nt=0, base=0, dw=2, hw=0, wdp=1, kb1=1, rpre=2, hnat=0, finb=1, ppre=1, fnat=1).items():
        ap.add_argument("--" + k, type=int, default=v)
    o = ap.parse_args()
    a = Asm()
    gen(a, o)
    a.lines = haz.fix_all(a.lines)
    emit_tables(a)
    finish(a, o.o, 256, 512, LDS_BYTES, 256, sgpr=102)
```

```python
import argparse, math, struct
from fw import *
import haz

WS_EPOCH = 0
WS_ACK = 0x1000
WS_FRDY = 0x2000
WS_PART = 0x10000
WS_KEY = 0x40000
WS_P = 0x200000
WS_STAMP = 8 << 20
R_X, R_WS, R_OUT, R_A, R_B, R_C = 32, 36, 40, 44, 48, 52
RS, SLOT, TABS = 8, 9, 10
XC, KK, PRM, TAG = 56, 57, 58, 59
T0, T1, T2, T3 = 60, 61, 62, 63
ST = 64
SPIN, TB0, TB1, ROWA, ROWB, REP, RHO, SEL, WSEL = 90, 91, 92, 93, 94, 95, 96, 97, 98
MF = "v_mfma_f32_16x16x32_bf16"
VN, VQ = 2, 3
L_X2 = 16384
L_TAB = 32768
L_KEY = L_TAB + 10240
L_CNT = L_KEY + 4
L_SEL = L_KEY + 8
L_G = L_KEY + 64
L_KB = L_KEY + 1024
L_Y = L_KEY + 256
LF_WD = 65536
LF_X = 98304
LF_E = LF_X + 1024
LDS_BYTES = LF_E + 1024
FC = 99
LOG2E_N = 0xbfb8aa3b
A1R, A1I, FRE, FIM, FRC, FIC, B3, TW, XG, D3 = 144, 148, 152, 156, 160, 164, 168, 184, 216, 232
GF, D1, D2, XR, TGV, PB = 112, 64, 64, 40, 104, 128
t = 96
KA = 247
XR2, GW2 = 232, 240


def f32(x):
    return struct.unpack("<I", struct.pack("<f", x))[0]


def fhex(x):
    return "0x%08x" % f32(x)


def bf(x):
    u = f32(x)
    return ((u + 0x7fff + ((u >> 16) & 1)) >> 16) & 0xffff


def cs(num, den):
    num %= den
    c, s = math.cos(2 * math.pi * num / den), math.sin(2 * math.pi * num / den)
    return (0.0 if abs(c) < 1e-12 else c), (0.0 if abs(s) < 1e-12 else s)


def tables():
    T = []
    def blk(fn):
        for l in range(64):
            for i in range(4):
                T.append(fn(l & 15, l >> 4, i))
    pk = lambda lo, hi: bf(lo) | (bf(hi) << 16)
    blk(lambda n, q, i: pk(*cs((4 * q + i) * n, 16)))
    blk(lambda n, q, i: pk(-cs((4 * q + i) * n, 16)[1], cs((4 * q + i) * n, 16)[0]))
    for h in range(2):
        for k in range(2):
            blk(lambda n, q, i: f32(cs((2 * (4 * q + i) + h) * n, 512)[k]))
    for h in range(2):
        for tau in range(2):
            blk(lambda n, q, i: pk(*cs((2 * (4 * q + i) + h) * (16 * tau + n), 32)))
    return T


def gen(a, o):
    WS_BYTES = (16 << 20) if o.stamps else (4 << 20)

    def NT(bit):
        return " nt" if o.nt & bit else ""

    def stamp(k, end=False):
        if o.stamps and (not o.only or k == 0 or end or (o.only >> k) & 1):
            a(f"{'s_memtime' if o.stamps == 2 else 's_memrealtime'} s[{ST+2*k}:{ST+2*k+1}]")

    def dstamp(k, early):
        if bool(o.dbg) == early:
            stamp(k)

    def lg(n):
        a(f"s_waitcnt lgkmcnt({0 if o.stamps and o.only != 1 else n})")

    def fini(n):
        if o.stamps:
            a("s_mov_b64 exec, -1")
            a("s_waitcnt vmcnt(0) lgkmcnt(0)")
            stamp(n, True)
            a("s_waitcnt lgkmcnt(0)")
            for k in range(n + 1):
                a(f"v_writelane_b32 v250, s{ST+2*k}, {k}")
            a(f"s_mov_b32 s{T0}, {0x5a5a0000 | (n + 1):#x}")
            a(f"v_writelane_b32 v250, s{T0}, 15")
            a(f"s_lshl3_add_u32 s{T0}, s2, s3")
            a(f"s_lshl_b32 s{T0}, s{T0}, 6")
            a(f"s_add_u32 s{T0}, s{T0}, {WS_STAMP:#x}")
            a("v_lshlrev_b32 v251, 2, v0")
            a("s_mov_b64 exec, 0xffff")
            a(f"buffer_store_dword v250, v251, {R4(R_WS)}, s{T0} offen")
        a("s_endpgm")

    def retry(label, sleep=1):
        a(f"s_cbranch_vccz {label}_ok")
        if sleep:
            a(f"s_sleep {sleep}")
        a(f"s_sub_u32 s{SPIN}, s{SPIN}, 1")
        a(f"s_cbranch_scc0 {label}")
        a(f"s_mov_b32 s{SPIN}, 0")
        a.label(f"{label}_ok")

    def srds(epoch=True):
        a("s_waitcnt lgkmcnt(0)")
        if o.stamps:
            for k in range(2, 13):
                a(f"s_mov_b32 s{ST+2*k}, s{ST}")
        stamp(1)
        if o.base:
            a(f"s_add_u32 s30, s30, {o.base:#x}")
            a("s_addc_u32 s31, s31, 0")
        if epoch:
            a(f"s_load_dword s{TAG}, s[30:31], {WS_EPOCH}")
        a.srd(R_X, 4, 2 << 20)
        a.srd(R_WS, 30, WS_BYTES)

    def tag_ready():
        a("s_waitcnt lgkmcnt(0)")
        a(f"s_add_u32 s{TAG}, s{TAG}, 0x9e3779b9")
        a(f"s_bitcmp1_b32 s{TAG}, 0")
        a(f"s_cselect_b32 s{TB0}, 1, 0x10000")
        a(f"s_xor_b32 s{TB1}, s{TB0}, 0x10001")

    def tagv(v):
        a(f"v_mov_b32 v{v}, s{TB0}")
        a(f"v_mov_b32 v{v+1}, s{TB1}")
        a(f"v_mov_b32 v{v+2}, 0x00010001")

    def touch(items):
        if not o.tlb:
            return 0
        for k, (srd, off) in enumerate(items):
            a(f"v_mov_b32 v{252+k}, {off:#x}")
            a(f"buffer_load_dword v{252+k}, v{252+k}, {R4(srd)}, 0 offen")
        return len(items)

    def mtouch(ptrs):
        if not o.tlb:
            return 0
        a(f"v_mov_b32 v252, s{ptrs[0][0]}")
        a(f"v_mov_b32 v253, s{ptrs[0][0]+1}")
        for k, (p, off) in enumerate(ptrs[1:], 1):
            if off:
                a(f"s_add_u32 s{T3}, s{p}, {off:#x}")
                a(f"v_writelane_b32 v252, s{T3}, {k}")
                a(f"s_addc_u32 s{T3}, s{p+1}, 0")
                a(f"v_writelane_b32 v253, s{T3}, {k}")
            else:
                a(f"v_writelane_b32 v252, s{p}, {k}")
                a(f"v_writelane_b32 v253, s{p+1}, {k}")
        a(f"s_mov_b64 exec, {(1 << len(ptrs)) - 1:#x}")
        a("global_load_dword v254, v[252:253], off")
        a("s_mov_b64 exec, -1")
        return 1

    def sigmoid(d, s):
        a(f"v_mul_f32 v{d}, {LOG2E_N:#x}, v{s}")
        a(f"v_exp_f32 v{d}, v{d}")
        a(f"v_add_f32 v{d}, 1.0, v{d}")
        a(f"v_rcp_f32 v{d}, v{d}")

    def keys_addr(b):
        a(f"s_and_b32 s15, s{REP}, {o.kr-1}")
        a(f"s_lshl_b32 s15, s15, 11")
        a(f"s_add_u32 s15, s15, {WS_KEY:#x}")
        a(f"v_lshlrev_b32 v{b+6}, 3, v0")
        a(f"v_lshlrev_b32 v{b+5}, 4, v0")

    def keys_issue(b):
        if o.kload & 1:
            a(f"buffer_load_dwordx4 {V(b,4)}, v{b+5}, {R4(R_WS)}, s15 offen sc1")
            return
        for r in range(4):
            a(f"v_mov_b32 v{b+r}, 0")
        a(f"buffer_atomic_or_x2 {V(b,2)}, v{b+6}, {R4(R_WS)}, s15 offen sc0 sc1")
        a(f"buffer_atomic_or_x2 {V(b+2,2)}, v{b+6}, {R4(R_WS)}, s15 offen offset:512 sc0 sc1")

    def keys_wait(b, issued=False):
        l = a.L("pk")
        if issued:
            a(f"s_branch {l}_w")
        a.label(l)
        keys_issue(b)
        a.label(f"{l}_w")
        a("s_waitcnt vmcnt(0)")
        a(f"v_xor_b32 v{b+1}, s{TAG}, v{b+1}")
        a(f"v_bitop3_b32 v{b+1}, v{b+3}, s{TAG}, v{b+1} bitop3:0xbe")
        a(f"v_cmp_ne_u32 vcc, 0, v{b+1}")
        a(f"v_max_u32 v{b}, v{b}, v{b+2}")
        retry(l, o.ksleep)
        for r in (8, 4, 2, 1):
            a(f"v_max_u32_dpp v{b}, v{b}, v{b} row_ror:{r} row_mask:0xf bank_mask:0xf")
        a(f"v_readlane_b32 s{SEL}, v{b}, 0")
        a(f"v_readlane_b32 s{T0}, v{b}, 16")
        a(f"v_readlane_b32 s{T1}, v{b}, 32")
        a(f"v_readlane_b32 s{T2}, v{b}, 48")
        a(f"s_max_u32 s{SEL}, s{SEL}, s{T0}")
        a(f"s_max_u32 s{T1}, s{T1}, s{T2}")
        a(f"s_max_u32 s{SEL}, s{SEL}, s{T1}")

    def keys_max(b):
        for r in (8, 4, 2, 1):
            a(f"v_max_u32_dpp v{b}, v{b}, v{b} row_ror:{r} row_mask:0xf bank_mask:0xf")
        a(f"v_readlane_b32 s{SEL}, v{b}, 0")
        a(f"v_readlane_b32 s{T0}, v{b}, 16")
        a(f"v_readlane_b32 s{T1}, v{b}, 32")
        a(f"v_readlane_b32 s{T2}, v{b}, 48")
        a(f"s_max_u32 s{SEL}, s{SEL}, s{T0}")
        a(f"s_max_u32 s{T1}, s{T1}, s{T2}")
        a(f"s_max_u32 s{SEL}, s{SEL}, s{T1}")

    def poll_pipe(name, K, issue, check, nv, done):
        for j in range(K):
            issue(j)
            if j < K - 1:
                a(f"s_sleep {o.psleep}")
        a.label(name)
        for j in range(K):
            a(f"s_waitcnt vmcnt({nv*(K-1)})")
            check(j)
            a(f"s_cbranch_vccz {name}_d{j}")
            issue(j)
        a(f"s_sub_u32 s{SPIN}, s{SPIN}, 1")
        a(f"s_cbranch_scc0 {name}")
        a("s_waitcnt vmcnt(0)")
        for j in range(K):
            a.label(f"{name}_d{j}")
            done(j)
            if j < K - 1:
                a(f"s_branch {name}_x")
        a.label(f"{name}_x")

    def keys_pipe(b, load):
        def issue(j):
            c = 80 + 4 * j
            if load:
                a(f"buffer_load_dwordx4 {V(c,4)}, v{b+5}, {R4(R_WS)}, s15 offen sc1")
                return
            for r in range(4):
                a(f"v_mov_b32 v{c+r}, 0")
            a(f"buffer_atomic_or_x2 {V(c,2)}, v{b+6}, {R4(R_WS)}, s15 offen sc0 sc1")
            a(f"buffer_atomic_or_x2 {V(c+2,2)}, v{b+6}, {R4(R_WS)}, s15 offen offset:512 sc0 sc1")
        def check(j):
            c = 80 + 4 * j
            a(f"v_xor_b32 v{b+1}, s{TAG}, v{c+1}")
            a(f"v_bitop3_b32 v{b+1}, v{c+3}, s{TAG}, v{b+1} bitop3:0xbe")
            a(f"v_cmp_ne_u32 vcc, 0, v{b+1}")
        def done(j):
            c = 80 + 4 * j
            a(f"v_max_u32 v{b}, v{c}, v{c+2}")
        poll_pipe(a.L("kp"), 1 if load else o.kp, issue, check, 1 if load else 2, done)
        for r in (8, 4, 2, 1):
            a(f"v_max_u32_dpp v{b}, v{b}, v{b} row_ror:{r} row_mask:0xf bank_mask:0xf")
        a(f"v_readlane_b32 s{SEL}, v{b}, 0")
        a(f"v_readlane_b32 s{T0}, v{b}, 16")
        a(f"v_readlane_b32 s{T1}, v{b}, 32")
        a(f"v_readlane_b32 s{T2}, v{b}, 48")
        a(f"s_max_u32 s{SEL}, s{SEL}, s{T0}")
        a(f"s_max_u32 s{T1}, s{T1}, s{T2}")
        a(f"s_max_u32 s{SEL}, s{SEL}, s{T1}")

    def fold4(x0, x1, x2, x3):
        a(f"v_permlane32_swap_b32 v{x0}, v{x1}")
        a(f"v_permlane32_swap_b32 v{x2}, v{x3}")
        a(f"v_add_f32 v{x0}, v{x0}, v{x1}")
        a(f"v_add_f32 v{x2}, v{x2}, v{x3}")
        a(f"v_permlane16_swap_b32 v{x0}, v{x2}")
        a(f"v_add_f32 v{x0}, v{x0}, v{x2}")

    def rowsum(x):
        for r in (8, 4, 2, 1):
            a(f"v_add_f32_dpp v{x}, v{x}, v{x} row_ror:{r} row_mask:0xf bank_mask:0xf")

    def cap(fn, *args):
        keep = a.lines
        a.lines = []
        fn(*args)
        out = [l.strip() for l in a.lines]
        a.lines = keep
        return out

    def weave(main, fill, every, first=0):
        fill = list(fill)
        for k, l in enumerate(main):
            if fill and k >= first and (k - first) % every == 0:
                a(fill.pop(0))
            a(l)
        for l in fill:
            a(l)

    def twpk(D, TC, TS, out):
        for p in range(2):
            a(f"v_pk_mul_f32 {V(t+2*p,2)}, {V(D+2*p,2)}, {V(TC+2*p,2)}")
            a(f"v_pk_mul_f32 {V(t+4+2*p,2)}, {V(D+4+2*p,2)}, {V(TC+2*p,2)}")
        for p in range(2):
            a(f"v_pk_fma_f32 {V(t+2*p,2)}, {V(D+4+2*p,2)}, {V(TS+2*p,2)}, {V(t+2*p,2)}")
            a(f"v_pk_fma_f32 {V(t+4+2*p,2)}, {V(D+2*p,2)}, {V(TS+2*p,2)}, {V(t+4+2*p,2)} neg_lo:[1,0,0] neg_hi:[1,0,0]")
        for i in range(4):
            a(f"v_cvt_pk_bf16_f32 v{out+i}, v{t+i}, v{t+4+i}")

    def tagcheck(first, n):
        a(f"v_xor_b32 v{t}, v{TGV}, v{first}")
        a(f"v_xor_b32 v{t+1}, v{TGV+1}, v{first+1}")
        for r in range(2, n):
            a(f"v_bitop3_b32 v{t+(r&1)}, v{first+r}, v{TGV+(r&1)}, v{t+(r&1)} bitop3:0xbe")
        a(f"v_bitop3_b32 v{t}, v{t}, v{t+1}, v{TGV+2} bitop3:0xa8")
        a(f"v_cmp_ne_u32 vcc, 0, v{t}")

    def dma_blocks(blks):
        a(f"s_lshl_b32 s{T0}, s{blks[0]}, 10")
        a(f"v_lshl_add_u32 v248, v0, 4, s{T0}")
        a(f"s_add_u32 m0, s{T0}, {L_TAB}")
        for k in blks[1]:
            a(f"global_load_lds_dwordx4 v248, s[{TABS}:{TABS+1}] offset:{k*1024}")

    def rotseq(base, step, outs):
        for i, (re, im) in enumerate(outs):
            a(f"v_cos_f32 v{t+6}, v{base}")
            a(f"v_sin_f32 v{t+7}, v{base}")
            if i < len(outs) - 1:
                a(f"v_add_f32 v{base}, v{base}, v{step}")
            a(f"v_cvt_pk_bf16_f32 v{re}, v{t+6}, v{t+7}")
            a(f"v_cvt_pk_bf16_f32 v{im}, -v{t+7}, v{t+6}")

    def a1consts(name):
        a(f"v_lshrrev_b32 v{t}, 1, v{VN}")
        a(f"v_lshlrev_b32 v{t}, 8, v{t}")
        a(f"v_add_u32 v{t}, s{PRM}, v{t}")
        a(f"v_and_b32 v{t+1}, 1, v{VN}")
        a(f"v_lshlrev_b32 v{t+2}, 1, v{VQ}")
        a(f"v_mul_u32_u24 v{t+2}, v{t+2}, v{t}")
        a(f"v_cmp_eq_u32 vcc, 0, v{t+1}")
        for i in range(2):
            a(f"v_and_b32 v{t+3}, 2047, v{t+2}")
            if i == 0:
                a(f"v_add_u32 v{t+2}, v{t+2}, v{t}")
            a(f"v_cvt_f32_u32 v{t+3}, v{t+3}")
            a(f"v_mul_f32 v{t+3}, {fhex(1/2048)}, v{t+3}")
            a(f"v_cos_f32 v{t+4}, v{t+3}")
            a(f"v_sin_f32 v{t+5}, v{t+3}")
            a(f"v_mul_f32 v{t+4}, 0.5, v{t+4}")
            a(f"v_mul_f32 v{t+5}, 0.5, v{t+5}")
            a(f"v_cndmask_b32_e64 v{t+6}, -v{t+5}, v{t+4}, vcc")
            a(f"v_cndmask_b32 v{t+7}, v{t+4}, v{t+5}, vcc")
            a(f"v_cvt_pk_bf16_f32 v{A1R+2*i}, v{t+6}, v{t+7}")
            a(f"v_cvt_pk_bf16_f32 v{A1I+2*i}, -v{t+7}, v{t+6}")
            a(f"v_cndmask_b32 v{t+6}, v{t+5}, v{t+4}, vcc")
            a(f"v_cndmask_b32_e64 v{t+7}, -v{t+4}, v{t+5}, vcc")
            a(f"v_cvt_pk_bf16_f32 v{A1R+2*i+1}, v{t+6}, -v{t+7}")
            a(f"v_cvt_pk_bf16_f32 v{A1I+2*i+1}, -v{t+7}, -v{t+6}")
            a(f"s_and_b32 s{T0}, s{PRM}, 127")
            a(f"s_cbranch_scc1 {name}_a1{i}")
            a(f"v_add_f32 v{t+4}, v{t+4}, v{t+4}")
            a(f"v_add_f32 v{t+5}, v{t+5}, v{t+5}")
            a(f"v_cndmask_b32 v{t+6}, 0, v{t+4}, vcc")
            a(f"v_sub_f32 v{t+7}, v{t+4}, v{t+6}")
            a(f"v_cvt_pk_bf16_f32 v{t+4}, v{t+6}, v{t+7}")
            a(f"v_cndmask_b32 v{t+6}, 0, v{t+5}, vcc")
            a(f"v_sub_f32 v{t+7}, v{t+5}, v{t+6}")
            a(f"v_cvt_pk_bf16_f32 v{t+5}, -v{t+6}, -v{t+7}")
            a(f"s_cmp_eq_u32 s{PRM}, 0")
            a(f"s_cselect_b32 s{T0}, -1, 0")
            a(f"s_cselect_b32 s{T1}, 0, -1")
            a(f"v_and_b32 v{A1R+2*i}, s{T0}, v{t+4}")
            a(f"v_and_b32 v{A1I+2*i}, s{T0}, v{t+5}")
            a(f"v_and_b32 v{A1R+2*i+1}, s{T1}, v{t+4}")
            a(f"v_and_b32 v{A1I+2*i+1}, s{T1}, v{t+5}")
            a.label(f"{name}_a1{i}")

    def p2addr():
        a(f"v_lshlrev_b32 v5, 12, v{VQ}")
        a(f"v_lshl_add_u32 v5, v{VN}, 4, v5")
        a(f"v_lshrrev_b32 v{t}, 2, v{VN}")
        a(f"v_xor_b32 v{t}, v{t}, v{VQ}")
        a(f"v_and_b32 v{t}, 1, v{t}")
        a(f"v_bfe_u32 v{t+1}, v{VN}, 1, 1")
        a(f"v_lshl_or_b32 v{t}, v{t}, 1, v{t+1}")
        a(f"s_lshr_b32 s{T0}, s3, 1")
        a(f"v_xor_b32 v{t}, s{T0}, v{t}")
        a(f"v_lshlrev_b32 v{t}, 4, v{t}")
        a(f"v_and_b32 v{t+2}, 7, v{VN}")
        a(f"v_lshl_add_u32 v{t}, v{t+2}, 6, v{t}")
        a(f"v_lshl_add_u32 v{t}, v{VQ}, 12, v{t}")
        a(f"v_lshrrev_b32 v{t+2}, 3, v{VN}")
        a(f"v_lshl_add_u32 v{t}, v{t+2}, 2, v{t}")
        a(f"s_and_b32 s{T0}, s3, 1")
        a(f"s_lshl_b32 s{T0}, s{T0}, 3")
        a(f"s_add_u32 s{T0}, s{T0}, {L_X2}")
        a(f"v_add_u32 v6, s{T0}, v{t}")
        a(f"v_xor_b32 v7, 48, v6")
        a(f"v_bfe_u32 v{t}, v{VN}, 2, 1")
        a(f"v_xor_b32 v{t}, v{t}, v{t+2}")
        a(f"v_lshl_or_b32 v{t}, v{t}, 1, v{t+2}")
        a(f"v_xor_b32 v{t}, v{t}, v{t+1}")
        a(f"v_xor_b32 v{t}, v{t}, v{VQ}")
        a(f"v_lshlrev_b32 v{t}, 4, v{t}")
        a(f"v_lshl_add_u32 v62, v{VN}, 6, v{t}")

    def p2read_addr(t0):
        a(f"s_lshl_b32 s{T0}, s{t0}, 4")
        a(f"s_and_b32 s{T0}, s{T0}, 32")
        a(f"v_xor_b32 v62, s{T0}, v62")
        a(f"s_lshl_b32 s{T0}, s{t0}, 11")
        a(f"s_add_u32 s{T0}, s{T0}, {L_X2}")
        a(f"v_add_u32 v62, s{T0}, v62")

    def rowoff():
        a(f"v_lshlrev_b32 v4, 5, v{VN}")
        a(f"v_and_b32 v{t}, 1, v{VQ}")
        a(f"v_lshl_add_u32 v4, v{t}, 9, v4")
        a(f"v_lshrrev_b32 v{t}, 1, v{VQ}")
        a(f"v_lshl_add_u32 v4, v{t}, 4, v4")

    def p_issue():
        for i in range(2):
            a(f"buffer_load_dwordx4 {V(8+4*i,4)}, v5, {R4(R_WS)}, s14 offen offset:{2048*i} sc1")

    def c1(name):
        a(f"s_branch {name}_pw")
        a.label(f"{name}_pl")
        p_issue()
        a.label(f"{name}_pw")
        a("s_waitcnt vmcnt(0)")
        a("v_swap_b32 v10, v12")
        a("v_swap_b32 v11, v13")
        mf = []
        for c in range(2):
            mf.append(f"{MF} {V(D1+8*c,4)}, {V(A1R,4)}, {V(8+4*c,4)}, 0")
            mf.append(f"{MF} {V(D1+8*c+4,4)}, {V(A1I,4)}, {V(8+4*c,4)}, 0")
        weave(cap(tagcheck, 8, 8), mf, 2, 2)
        retry(f"{name}_pl")
        stamp(6)
        for c in range(2):
            for i in range(4):
                a(f"v_cvt_pk_bf16_f32 v{16+4*c+i}, v{D1+8*c+i}, v{D1+8*c+4+i}")
                if i & 1:
                    a(f"ds_write2st64_b32 v{6+c}, v{16+4*c+i-1}, v{16+4*c+i} offset0:{4*(i-1)+2*c} offset1:{4*i+2*c}")

    a("s_cmp_ge_u32 s2, 256")
    a("s_cbranch_scc1 L_end")
    stamp(0)
    a(f"s_load_dwordx2 s[4:5], s[0:1], {KA_X}")
    a(f"s_load_dwordx16 s[16:31], s[0:1], {KA_WR}")
    a(f"s_getpc_b64 s[{TABS}:{TABS+1}]")
    a.label("L_pc")
    a("v_lshrrev_b32 v1, 6, v0")
    a(f"s_lshr_b32 s{KK}, s2, 3")
    if o.cpf:
        a(f"v_lshl_add_u32 v4, v0, 5, s{KK}")
        a("v_lshlrev_b32 v4, 7, v4")
        a(f"v_cmp_gt_u32 vcc, L_tabend - L_pc, v4")
        a("s_and_saveexec_b64 s[12:13], vcc")
        a("s_cbranch_execz L_nocpf")
        a(f"global_load_dword v249, v4, s[{TABS}:{TABS+1}]")
        a.label("L_nocpf")
        a("s_mov_b64 exec, s[12:13]")
    a("v_and_b32 v0, 63, v0")
    a("v_readfirstlane_b32 s3, v1")
    a(f"v_and_b32 v{VN}, 15, v0")
    a(f"v_lshrrev_b32 v{VQ}, 4, v0")
    a(f"v_lshlrev_b32 v{KA}, 4, v0")
    a(f"v_lshlrev_b32 v246, 3, v0")
    a(f"s_add_u32 s{TABS}, s{TABS}, L_tab - L_pc")
    a(f"s_addc_u32 s{TABS+1}, s{TABS+1}, 0")
    a(f"s_and_b32 s{XC}, s2, 7")
    a(f"s_mov_b32 s{SPIN}, 400000")
    a(f"s_cmp_lt_u32 s{KK}, 16")
    a("s_cbranch_scc1 L_low")

    A2, A2X, SF, DS, XY, OUT = 112, 128, 52, 64, 96, 80

    def s2consts(nm, special):
        a(f"s_xor_b32 s{WSEL}, s3, 4")
        a(f"v_lshl_add_u32 v{t}, v{VN}, 4, s{WSEL}")
        if special:
            a(f"s_cmp_eq_u32 s{WSEL}, 0")
            a(f"s_cselect_b32 s{T0}, 120, 0")
            a(f"v_subrev_u32 v{t+2}, s{T0}, v{t}")
            a(f"v_cmp_gt_u32 vcc, 8, v{VN}")
            a(f"v_cndmask_b32 v{t}, v{t+2}, v{t}, vcc")
        a(f"v_lshlrev_b32 v{t+2}, 2, v{VQ}")
        a(f"v_cvt_f32_u32 v{t+2}, v{t+2}")
        a(f"v_cvt_f32_u32 v{t}, v{t}")
        a(f"v_mul_f32 v{t}, {fhex(1/256)}, v{t}")
        a(f"v_mul_f32 v{t+3}, v{t+2}, v{t}")
        rotseq(t + 3, t, [(A2 + i, A2 + 4 + i) for i in range(4)])
        a(f"v_mov_b32 v{t}, 0x80000000")
        a(f"v_mov_b32 v{t+1}, 0x8000")
        for i in range(4):
            a(f"v_xor_b32 v{A2+8+i}, v{t}, v{A2+i}")
            a(f"v_xor_b32 v{A2+12+i}, v{t+1}, v{A2+4+i}")
        if special:
            a(f"s_cmp_lg_u32 s{WSEL}, 0")
            a(f"s_cbranch_scc1 {nm}_e")
            a("s_mov_b32 exec_lo, 0x10001")
            a("s_mov_b32 exec_hi, 0x10001")
            for i in (1, 3):
                a(f"v_mov_b32 v{A2+8+i}, 0xbf80")
                a(f"v_mov_b32 v{A2+12+i}, 0xbf800000")
            a("s_mov_b64 exec, -1")
            for k in range(8):
                a(f"v_cndmask_b32_e64 v{A2X+k}, v{A2+k}, 0, vcc")
                a(f"v_cndmask_b32 v{A2+k}, 0, v{A2+k}, vcc")
                a(f"v_cndmask_b32 v{A2X+8+k}, 0, v{A2+8+k}, vcc")
                a(f"v_cndmask_b32_e64 v{A2+8+k}, v{A2+8+k}, 0, vcc")
            a.label(f"{nm}_e")
        a(f"s_sub_u32 s{T0}, 16, s{WSEL}")
        a(f"s_cmp_eq_u32 s{WSEL}, 0")
        a(f"s_cselect_b32 s{T0}, 8, s{T0}")
        a(f"v_bfe_u32 v{t}, v{VN}, 2, 1")
        a(f"v_xor_b32 v{t}, v{t}, v{VN}")
        a(f"v_lshrrev_b32 v{t+1}, 3, v{VN}")
        a(f"v_mul_u32_u24 v{t+2}, 3, v{t+1}")
        a(f"v_xor_b32 v{t+2}, v{t+2}, v{VQ}")
        a(f"v_lshlrev_b32 v{t+2}, 4, v{t+2}")
        a(f"v_lshl_add_u32 v{t}, v{t}, 6, v{t+2}")
        for k, al in enumerate((WSEL, T0)):
            a(f"s_lshl_b32 s{T1}, s{al}, 3")
            a(f"s_and_b32 s{T1}, s{T1}, 32")
            a(f"s_lshl_b32 s{T2}, s{al}, 10")
            a(f"s_or_b32 s{T1}, s{T1}, s{T2}")
            a(f"v_xor_b32 v{60+k}, s{T1}, v{t}")
        a(f"v_lshlrev_b32 v63, 16, v{VQ}")
        a(f"v_lshl_add_u32 v63, v{t+1}, 14, v63")
        a(f"v_and_b32 v{t}, 7, v{VN}")
        a(f"v_lshl_add_u32 v63, v{t}, 4, v63")
        a(f"s_lshl_b32 s6, s{WSEL}, 18")
        a(f"s_lshl_b32 s{T1}, s{XC}, 11")
        a(f"s_add_u32 s6, s6, s{T1}")
        a(f"s_lshl_b32 s{T1}, s{KK}, 7")
        a(f"s_add_u32 s6, s6, s{T1}")
        a(f"s_add_u32 s6, s6, {WS_P:#x}")
        a(f"s_add_u32 s7, s6, 32768")
        rowoff()
        a(f"s_lshl_b32 s{T0}, s3, 8")
        a(f"s_add_u32 s{ROWA}, s{T0}, s{PRM}")
        a(f"s_sub_u32 s{ROWB}, 2048, s{ROWA}")
        a(f"s_and_b32 s{ROWB}, s{ROWB}, 2047")
        a.srd(R_B, 24, 1024)

    def own_rows():
        a(f"s_lshl_b32 s12, s{ROWA}, 10")
        a(f"s_lshl_b32 s13, s{ROWB}, 10")
        for rho in range(2):
            a(f"buffer_load_dwordx4 {V(XR2+4*rho,4)}, v4, {R4(R_X)}, s{12+rho} offen")
        a(f"buffer_load_dwordx4 {V(GW2,4)}, v4, {R4(R_B)}, 0 offen")

    def p2prep(nm, addr=True):
        a1consts(nm)
        if addr:
            p2addr()
            p2read_addr(3)
        a(f"s_lshl_b32 s14, s{SLOT}, 14")
        a(f"s_lshl_b32 s{T0}, s3, 8")
        a(f"s_add_u32 s14, s14, s{T0}")
        a(f"s_add_u32 s14, s14, {WS_P:#x}")
        a.srd(R_OUT, 26, 2 << 20)

    a(f"s_sub_u32 s{KK}, s{KK}, 16")
    a(f"s_lshl4_add_u32 s{SLOT}, s{XC}, s{KK}")
    a(f"s_lshl4_add_u32 s{PRM}, s{KK}, s{XC}")
    a(f"s_sub_u32 s{T2}, s{PRM}, 120")
    a(f"s_cmp_lt_u32 s{SLOT}, 8")
    a(f"s_cselect_b32 s{T2}, s{PRM}, s{T2}")
    a(f"s_cmp_lt_u32 s{SLOT}, 16")
    a(f"s_cselect_b32 s{PRM}, s{T2}, s{PRM}")
    a.label("L_a")
    a("s_cmp_ge_u32 s3, 4")
    a("s_cbranch_scc1 L_p1w")
    RW, WR, DT, RID = 8, 24, 32, 36
    a(f"s_lshl2_add_u32 s{T0}, s{KK}, s3")
    a(f"s_lshl_b32 s{T0}, s{T0}, 5")
    a(f"s_add_u32 s{T0}, s{T0}, s{XC}")
    a(f"s_lshl_b32 s12, s{T0}, 10")
    a(f"s_cmp_eq_u32 s{PRM}, 128")
    a(f"s_cselect_b32 s12, 0x40000000, s12")
    for k in range(1, 4):
        a(f"s_add_u32 s{12+k}, s12, {8192*k}")
    srds()
    for k in range(4):
        a(f"buffer_load_dwordx4 {V(RW+4*k,4)}, v{KA}, {R4(R_X)}, s{12+k} offen")
    a.srd(R_A, 16, 1024)
    a(f"buffer_load_dwordx4 {V(WR,4)}, v{KA}, {R4(R_A)}, 0 offen")
    a(f"v_and_b32 v{RID}, 1, v{VQ}")
    a(f"v_lshrrev_b32 v108, 1, v{VQ}")
    a(f"v_lshl_add_u32 v{RID}, v{RID}, 1, v108")
    a(f"v_lshl_add_u32 v{RID}, v{RID}, 3, s{T0}")
    a(f"v_mov_b32 v108, {L_KEY}")
    a("v_mov_b32 v109, 1")
    a(f"s_mov_b32 s{RS}, 0xfffff800")
    a(f"s_lshl3_add_u32 s15, s{KK}, s{XC}")
    a(f"s_lshl_b32 s15, s15, 3")
    a(f"s_add_u32 s15, s15, {WS_KEY:#x}")
    a("v_lshlrev_b32 v37, 11, v0")
    if o.nob0:
        a("s_barrier")
    if o.rpre >= 1:
        p2prep("L_ar")
    if o.rpre >= 2:
        s2consts("L_sr", False)
    dstamp(9, True)
    a(f"s_waitcnt vmcnt(1)")
    stamp(2)
    if o.nob0:
        a("s_mov_b64 exec, 1")
        a("ds_add_u32 v108, v109 offset:12")
        a("s_mov_b64 exec, -1")
    else:
        a("s_barrier")
    a(f"s_waitcnt vmcnt(0)")
    stamp(3)
    for k in range(4):
        for r in range(4):
            a(f"v_dot2_f32_bf16 v{DT+r}, v{RW+4*r+k}, v{WR+k}, {('v%d' % (DT+r)) if k else 0}")
    tag_ready()
    fold4(DT, DT + 1, DT + 2, DT + 3)
    a(f"v_mov_b32 v39, s{TAG}")
    rowsum(DT)
    a(f"v_ashrrev_i32 v{DT+1}, 31, v{DT}")
    a(f"v_or_b32 v{DT+1}, 0x80000000, v{DT+1}")
    a(f"v_xor_b32 v{DT+1}, v{DT+1}, v{DT}")
    a(f"v_and_or_b32 v{DT+1}, v{DT+1}, s{RS}, v{RID}")
    a("s_mov_b32 exec_lo, 0x10001")
    a("s_mov_b32 exec_hi, 0x10001")
    a(f"ds_max_u32 v108, v{DT+1}")
    a("s_mov_b64 exec, 1")
    a(f"ds_add_rtn_u32 v{DT+2}, v108, v109 offset:4")
    a("s_mov_b64 exec, -1")
    a("ds_read_b32 v38, v108")
    a("s_waitcnt lgkmcnt(0)")
    a(f"v_readfirstlane_b32 s{T1}, v{DT+2}")
    a(f"s_cmp_lg_u32 s{T1}, 3")
    a("s_cbranch_scc1 L_b1a")
    a(f"s_cmp_eq_u32 s{PRM}, 128")
    a("s_cbranch_scc1 L_b1a")
    if o.kr < 64:
        a(f"s_mov_b64 exec, {(1 << o.kr) - 1:#x}")
    a(f"buffer_store_dwordx2 v[38:39], v37, {R4(R_WS)}, s15 offen sc1")
    a("s_mov_b64 exec, -1")
    a.label("L_b1a")
    dstamp(10, True)
    a(f"s_lshl_b32 s{T3}, s3, 1")
    dma_blocks((T3, (0, 1)))
    a(f"s_and_b32 s{T3}, s3, 1")
    a(f"s_add_u32 s{T3}, s{T3}, 8")
    dma_blocks((T3, (0,)))
    if o.rpre < 2:
        s2consts("L_sr", False)
    own_rows()
    if o.rpre < 1:
        p2prep("L_ar")
    tagv(TGV)
    a("s_branch L_b1")

    LD, FR, F0R, F0I, WA, D = 8, 24, 40, 44, 48, 64
    a.label("L_p1w")
    if o.prio & 1:
        a("s_setprio 2")
    a(f"s_sub_u32 s{RHO}, s3, 4")
    if o.nob0:
        a(f"v_mov_b32 v110, {L_KEY}")
        for r in range(4):
            a(f"v_mov_b32 v{t+r}, 0")
        a(f"ds_write_b128 v110, {V(t,4)}")
    if o.apf:
        a(f"s_lshl_b32 s{T0}, s{XC}, 2")
        a(f"s_mul_i32 s{T1}, s{XC}, 3")
        a(f"s_add_u32 s{T1}, s{T1}, 4")
        a(f"s_cmp_lt_u32 s{XC}, 4")
        a(f"s_cselect_b32 s{T0}, s{T0}, s{T1}")
        a(f"s_cselect_b32 s{T1}, 16, 12")
        a(f"s_cmp_ge_u32 s{KK}, s{T1}")
        a(f"s_cselect_b32 s{T3}, 8, s{RHO}")
        a(f"s_lshr_b32 s{T1}, s{KK}, 2")
        a(f"s_add_u32 s{T0}, s{T0}, s{T1}")
        a(f"s_lshl_b32 s6, s{T0}, 7")
        a(f"s_and_b32 s{T1}, s{KK}, 3")
        a(f"s_mul_i32 s{T1}, s{T1}, {o.apf}")
        a(f"s_add_u32 s{T1}, s{T1}, s{RHO}")
        a(f"s_lshl_b32 s{T1}, s{T1}, 5")
        a(f"s_add_u32 s{T1}, s{T1}, {512 - 128*o.apf}")
        a(f"v_lshrrev_b32 v{t+4}, 1, v0")
        a(f"v_add_u32 v{t+4}, s{T1}, v{t+4}")
        a(f"v_mul_u32_u24 v{t+4}, 3584, v{t+4}")
        a(f"v_and_b32 v{t+5}, 1, v0")
        a(f"v_lshl_add_u32 v{t+4}, v{t+5}, 6, v{t+4}")
        a("s_waitcnt lgkmcnt(0)")
        a.srd(R_C, 18, 512 * 3584)
        a(f"s_cmp_ge_u32 s{T3}, {o.apf}")
        a("s_cbranch_scc1 L_noapf")
        a(f"buffer_load_dword v255, v{t+4}, {R4(R_C)}, s6 offen")
        a.label("L_noapf")
    srds(False)
    if o.nob0:
        a("s_barrier")
    if o.tlb & 1:
        a("s_cmp_lg_u32 s3, 7")
        a("s_cbranch_scc1 L_nomt")
        mtouch([(16, 0), (24, 0), (26, 0), (30, 0x3000), (30, WS_P + 0x3000)])
        a.label("L_nomt")
    a(f"v_lshlrev_b32 v107, 19, v{VQ}")
    a(f"v_bfe_u32 v108, v0, 2, 2")
    a(f"v_lshl_add_u32 v107, v108, 13, v107")
    a(f"v_and_b32 v109, 3, v0")
    a(f"v_lshl_add_u32 v107, v109, 4, v107")
    if not o.nob0:
        a(f"v_mov_b32 v{t}, {L_KEY}")
        a(f"v_mov_b32 v{t+2}, 0")
        a(f"v_mov_b32 v{t+3}, 0")
        a(f"ds_write_b64 v{t}, {V(t+2,2)}")
    a(f"v_lshlrev_b32 v{t}, 2, v{VQ}")
    a(f"v_cvt_f32_u32 v{t}, v{t}")
    a(f"v_cvt_f32_u32 v{t+1}, v{VN}")
    a(f"v_mul_f32 v{t+1}, {fhex(1/16)}, v{t+1}")
    a(f"v_mul_f32 v{t}, v{t}, v{t+1}")
    rotseq(t, t + 1, [(F0R + i, F0I + i) for i in range(4)])
    a(f"v_lshrrev_b32 v{t}, 1, v109")
    a(f"v_mul_u32_u24 v{t}, 3, v{t}")
    a(f"v_lshlrev_b32 v{t+1}, 1, v{VQ}")
    a(f"v_and_b32 v{t+1}, 2, v{t+1}")
    a(f"v_xor_b32 v{t}, v{t}, v{t+1}")
    a(f"v_xor_b32 v{t}, s{RHO}, v{t}")
    a(f"v_lshl_add_u32 v{t}, v{t}, 2, v108")
    a(f"v_lshlrev_b32 v{t}, 2, v{t}")
    a(f"v_lshl_add_u32 v{t}, v109, 8, v{t}")
    a(f"v_lshl_add_u32 v{t}, v{VQ}, 12, v{t}")
    a(f"v_and_b32 v{t+1}, 1, v109")
    a(f"v_lshl_add_u32 v{WA}, v{t+1}, 6, v{t}")
    a(f"v_xor_b32 v{WA+1}, 64, v{WA}")
    a(f"v_add_u32 v{WA+2}, 128, v{WA}")
    a(f"v_add_u32 v{WA+3}, 128, v{WA+1}")
    if o.ppre >= 1:
        p2addr()
        p2read_addr(3)
    if o.ppre >= 2:
        s2consts("L_sp", True)
    a(f"s_lshl_b32 s12, s{RHO}, 15")
    a(f"s_lshl_b32 s{T1}, s{XC}, 10")
    a(f"s_add_u32 s12, s12, s{T1}")
    a(f"s_lshl_b32 s{T1}, s{KK}, 6")
    a(f"s_add_u32 s12, s12, s{T1}")
    a(f"s_cmp_eq_u32 s{PRM}, 128")
    a(f"s_cselect_b32 s12, 0x40000000, s12")
    for i in range(1, 4):
        a(f"s_add_u32 s{12+i}, s12, {i*131072}")
    a("s_waitcnt lgkmcnt(0)")
    stamp(2)
    if o.prio & 1:
        a("s_setprio 0")
    if o.nob0:
        a.label("L_tw")
        a("ds_read_b32 v111, v110 offset:12")
        a("s_waitcnt lgkmcnt(0)")
        a(f"v_cmp_gt_u32 vcc, 4, v111")
        retry("L_tw", 1)
    else:
        a("s_barrier")
    for i in range(4):
        a(f"buffer_load_dwordx4 {V(LD+4*i,4)}, v107, {R4(R_X)}, s{12+i} offen")
    a(f"s_load_dword s{TAG}, s[30:31], {WS_EPOCH}")
    if o.ppre < 2:
        s2consts("L_sp", True)
    own_rows()
    p2prep("L_ap", o.ppre < 1)
    a(f"s_lshr_b32 s15, s{SLOT}, 2")
    a(f"s_add_u32 s15, s15, 32")
    a(f"s_and_b32 s15, s15, {o.kr - 1}")
    a(f"s_lshl_b32 s15, s15, 11")
    a(f"s_add_u32 s15, s15, {WS_KEY:#x}")
    tag_ready()
    tagv(TGV)
    for r in range(4):
        a(f"v_mov_b32 v{184+r}, 0")
    dstamp(10, True)
    if o.prio & 2:
        a("s_setprio 2")
    a(f"s_waitcnt vmcnt(3)")
    stamp(3)
    for c in range(4):
        for i in range(2):
            b = 2 * (c >> 1)
            a(f"v_pk_mov_b32 {V(FR+4*c+2*i,2)}, {V(LD+8*i+b,2)}, {V(LD+8*i+4+b,2)} op_sel:[{c&1},{c&1}]")
        if c:
            a(f"{MF} {V(D+8*(c-1),4)}, {V(F0R,4)}, {V(FR+4*(c-1),4)}, 0")
            a(f"{MF} {V(D+8*(c-1)+4,4)}, {V(F0I,4)}, {V(FR+4*(c-1),4)}, 0")

    def s1out(c):
        for i in range(4):
            a(f"v_cvt_pk_bf16_f32 v{LD+4*c+i}, v{D+8*c+i}, v{D+8*c+4+i}")
            if i & 1:
                a(f"ds_write2st64_b32 v{WA+c}, v{LD+4*c+i-1}, v{LD+4*c+i} offset0:{4*(i-1)} offset1:{4*i}")
    weave(cap(s1out, 0), [f"{MF} {V(D+24,4)}, {V(F0R,4)}, {V(FR+12,4)}, 0", f"{MF} {V(D+28,4)}, {V(F0I,4)}, {V(FR+12,4)}, 0"], 2)
    for c in range(1, 4):
        s1out(c)
    a(f"s_waitcnt lgkmcnt(0)")
    a.label("L_b1")
    stamp(4)
    a("s_barrier")
    def kpoll():
        l = a.L("kq")
        a("s_cmp_lg_u32 s3, 7")
        a(f"s_cbranch_scc1 {l}")
        a(f"buffer_load_dwordx4 v{KA}, {R4(R_WS)}, s15 offen sc1 lds")
        a.label(l)
    a(f"s_cmp_eq_u32 s{PRM}, 128")
    a("s_cbranch_scc1 L_ack128")
    for al in range(2):
        a(f"ds_read_b128 {V(SF+4*al,4)}, v{60+al}")
    KB = 184
    if o.kat:
        a("s_cmp_lg_u32 s3, 7")
        a("s_cbranch_scc1 L_ka")
        a(f"buffer_atomic_or_x2 {V(KB,2)}, v246, {R4(R_WS)}, s15 offen sc0 sc1")
        a(f"buffer_atomic_or_x2 {V(KB+2,2)}, v246, {R4(R_WS)}, s15 offen offset:512 sc0 sc1")
        a.label("L_ka")
    a("s_mov_b32 vcc_lo, 0x00ff00ff")
    a("s_mov_b32 vcc_hi, 0x00ff00ff")
    for al in range(2):
        lg(1 - al)
        a(f"{MF} {V(DS+8*al,4)}, {V(A2+8*al,4)}, {V(SF+4*al,4)}, 0")
        a(f"{MF} {V(DS+8*al+4,4)}, {V(A2+8*al+4,4)}, {V(SF+4*al,4)}, 0")
    a(f"s_cmp_lg_u32 s{WSEL}, 0")
    a("s_cbranch_scc1 L_s2b")
    for al in range(2):
        a(f"{MF} {V(DS+8*al,4)}, {V(A2X+8*al,4)}, {V(SF+4*(1-al),4)}, {V(DS+8*al,4)}")
        a(f"{MF} {V(DS+8*al+4,4)}, {V(A2X+8*al+4,4)}, {V(SF+4*(1-al),4)}, {V(DS+8*al+4,4)}")
    a.label("L_s2b")
    for p in range(2):
        for al in range(2):
            for i in (2 * p, 2 * p + 1):
                a(f"v_cvt_pk_bf16_f32 v{XY+4*al+i}, v{DS+8*al+i}, v{DS+8*al+4+i}")
        for al in range(2):
            for i in (2 * p, 2 * p + 1):
                a(f"v_bitop3_b32 v{XY+4*al+i}, v{TGV+2}, v{TGV+al}, v{XY+4*al+i} bitop3:0xca")
        lo = [f"v_cndmask_b32_dpp v{OUT+4*p+al}, v{XY+4*al+2*p+1}, v{XY+4*al+2*p}, vcc row_ror:8 row_mask:0xf bank_mask:0xf" for al in range(2)]
        hi = [f"v_cndmask_b32_dpp v{OUT+4*p+2+al}, v{XY+4*al+2*p}, v{XY+4*al+2*p+1}, vcc row_ror:8 row_mask:0xf bank_mask:0xf" for al in range(2)]
        for l in (lo if p == 0 else hi):
            a(l)
        a("s_not_b64 vcc, vcc")
        for l in (hi if p == 0 else lo):
            a(l)
        a(f"buffer_store_dwordx4 {V(OUT+4*p,4)}, v63, {R4(R_WS)}, s{6+p} offen sc1")
    a.label("L_nos2")
    stamp(5)
    a(f"v_mov_b32 v109, {L_SEL}")
    a("s_cmp_lg_u32 s3, 7")
    a("s_cbranch_scc1 L_a5")
    if o.kat:
        a(f"s_cmp_eq_u32 s{PRM}, 128")
        a("s_cbranch_scc1 L_kd0")
        a("s_waitcnt vmcnt(2)")
        a(f"v_xor_b32 v{PB+1}, s{TAG}, v{KB+1}")
        a(f"v_bitop3_b32 v{PB+1}, v{KB+3}, s{TAG}, v{PB+1} bitop3:0xbe")
        a(f"v_cmp_ne_u32 vcc, 0, v{PB+1}")
        a(f"v_max_u32 v{PB}, v{KB}, v{KB+2}")
        a("s_cbranch_vccz L_kd_ok")
        a.label("L_kd0")
    if o.kack:
        a(f"s_waitcnt vmcnt({o.kack - 1})")
    a.label("L_kd")
    a(f"buffer_load_dwordx4 {V(PB,4)}, v{KA}, {R4(R_WS)}, s15 offen sc1")
    a("s_waitcnt vmcnt(0)")
    a(f"v_xor_b32 v{PB+1}, s{TAG}, v{PB+1}")
    a(f"v_bitop3_b32 v{PB+1}, v{PB+3}, s{TAG}, v{PB+1} bitop3:0xbe")
    a(f"v_cmp_ne_u32 vcc, 0, v{PB+1}")
    a(f"v_max_u32 v{PB}, v{PB}, v{PB+2}")
    retry("L_kd", o.kdma)
    keys_max(PB)
    a(f"s_and_b32 s{SEL}, s{SEL}, 2047")
    a(f"v_mov_b32 v110, s{SEL}")
    a("ds_write_b32 v109, v110")
    a("s_waitcnt lgkmcnt(0)")
    a.label("L_a5")
    a("s_cmp_ge_u32 s3, 4")
    a("s_cbranch_scc1 L_a6")
    a("s_waitcnt vmcnt(5)")
    a(f"s_cmp_lg_u32 s{PRM}, 128")
    a("s_cbranch_scc1 L_a6")
    a("s_waitcnt vmcnt(0)")
    a.label("L_a6")
    dstamp(10, False)
    a("s_barrier")
    dstamp(11, False)
    p_issue()
    a("ds_read_b32 v109, v109")
    for k in range(4):
        a(f"ds_read_b128 {V(TW+16+4*k,4)}, v{KA} offset:{L_TAB+2048+1024*k}")
    a(f"ds_read_b128 {V(FRE,4)}, v{KA} offset:{L_TAB}")
    a(f"ds_read_b128 {V(FIM,4)}, v{KA} offset:{L_TAB+1024}")
    for k in range(4):
        a(f"ds_read_b128 {V(B3+4*k,4)}, v{KA} offset:{L_TAB+6144+1024*k}")
    a("s_waitcnt vmcnt(4)")
    a(f"s_cmp_lg_u32 s{PRM}, 128")
    a("s_cbranch_scc1 L_a7")
    a("s_waitcnt vmcnt(2)")
    a.label("L_a7")
    for k in range(4):
        for rho in range(2):
            a(f"v_dot2_f32_bf16 v{110+rho}, v{XR2+4*rho+k}, v{GW2+k}, {('v%d' % (110+rho)) if k else 0}")
    for rho in range(2):
        for k in range(2):
            a(f"v_permlane16_swap_b32 v{XR2+4*rho+k}, v{XR2+4*rho+2+k}")
    a("v_permlane32_swap_b32 v110, v111")
    a("v_add_f32 v110, v110, v111")
    a("v_mov_b32 v111, v110")
    a("v_permlane16_swap_b32 v110, v111")
    a("v_add_f32 v110, v110, v111")
    xg = []
    for rho in range(2):
        for k in range(4):
            x = XR2 + 4 * rho + k
            d = XG + 8 * rho + 2 * k
            xg.append(f"v_lshlrev_b32 v{d}, 16, v{x}")
            xg.append(f"v_and_b32 v{d+1}, 0xffff0000, v{x}")
    for l in cap(rowsum, 110) + cap(sigmoid, 110, 110):
        a(l)
        a(xg.pop(0))
        a(xg.pop(0))
    a("v_mov_b32 v111, v110")
    a("v_permlane32_swap_b32 v110, v111")
    a("s_waitcnt lgkmcnt(0)")
    a(f"v_readfirstlane_b32 s{SEL}, v109")
    a(f"v_sub_f32 v{t}, 1.0, v110")
    a(f"v_sub_f32 v{t+1}, 1.0, v111")
    for k in range(8):
        a(f"v_pk_mul_f32 {V(TW+2*k,2)}, {V(TW+16+2*k,2)}, v[110:111] op_sel:[0,0] op_sel_hi:[1,0]")
    for k in range(8):
        a(f"v_pk_mul_f32 {V(TW+16+2*k,2)}, {V(TW+16+2*k,2)}, v[110:111] op_sel:[0,1] op_sel_hi:[1,1]")
    for rho in range(2):
        for k in range(4):
            d = XG + 8 * rho + 2 * k
            a(f"v_pk_mul_f32 {V(d,2)}, {V(d,2)}, {V(t,2)} op_sel:[0,{rho}] op_sel_hi:[1,{rho}]")
    a(f"v_mov_b32 v{t}, 0x80000000")
    for i in range(4):
        a(f"v_xor_b32 v{FRC+i}, v{t}, v{FRE+i}")
        a(f"v_xor_b32 v{FIC+i}, v{t}, v{FIM+i}")
    dstamp(9, False)
    c1("L_a")
    a("s_waitcnt lgkmcnt(0)")
    a("s_barrier")
    stamp(7)
    for h in range(2):
        a(f"ds_read_b128 {V(16+4*h,4)}, v62 offset:{h*1024}")

    def c2(rho, h):
        k = 2 * rho + h
        return [f"{MF} {V(D2+8*k,4)}, {V(16+4*h,4)}, {V(FRC if rho else FRE,4)}, 0",
                f"{MF} {V(D2+8*k+4,4)}, {V(16+4*h,4)}, {V(FIC if rho else FIM,4)}, 0"]

    def tw(rho, h):
        k = 2 * rho + h
        return cap(twpk, D2 + 8 * k, TW + 8 * k, TW + 8 * k + 4, GF + 4 * k)

    def c3(rho, h):
        r = []
        for tau in range(2):
            acc = V(D3 + 8 * rho + 4 * tau, 4)
            cin = acc if h else V(XG + 8 * rho + 4 * tau, 4)
            r.append(f"{MF} {acc}, {V(GF+4*(2*rho+h),4)}, {V(B3+8*h+4*tau,4)}, {cin}")
        return r

    def outcv(rho):
        for k in range(4):
            a(f"v_cvt_pk_bf16_f32 v{8+4*rho+k}, v{D3+8*rho+2*k}, v{D3+8*rho+2*k+1}")
        for k in range(2):
            a(f"v_permlane16_swap_b32 v{8+4*rho+k}, v{8+4*rho+2+k}")

    def outst(rho):
        l = a.L("sk")
        a(f"s_cmp_eq_u32 s{ROWA+rho}, s{SEL}")
        a(f"s_cbranch_scc1 {l}")
        if rho:
            a(f"s_and_b32 s{T0}, s{PRM}, 127")
            a(f"s_cbranch_scc0 {l}")
        a(f"buffer_store_dwordx4 {V(8+4*rho,4)}, v4, {R4(R_OUT)}, s{12+rho} offen sc1")
        a.label(l)

    lg(1)
    for l in c2(0, 0):
        a(l)
    lg(0)
    for l in c2(0, 1) + c2(1, 0)[:1]:
        a(l)
    weave(tw(0, 0), c2(1, 0)[1:] + c2(1, 1), 4, 2)
    weave(tw(0, 1), c3(0, 0), 4, 2)
    weave(tw(1, 0), c3(0, 1), 4, 2)
    weave(tw(1, 1), c3(1, 0), 4, 2)
    weave(cap(outcv, 0), c3(1, 1), 2, 2)
    outst(0)
    outcv(1)
    outst(1)
    stamp(8)
    fini(12)

    a.label("L_ack128")
    a("s_mov_b64 exec, 1")
    a(f"v_mov_b32 v{t}, {WS_ACK:#x}")
    a(f"v_mov_b32 v{t+1}, s{TAG}")
    a(f"buffer_store_dword v{t+1}, v{t}, {R4(R_WS)}, 0 offen sc1")
    a("s_mov_b64 exec, -1")
    a("s_branch L_nos2")

    a.label("L_low")
    a(f"s_lshl_b32 s{T0}, s{XC}, 3")
    a(f"s_mul_i32 s{T2}, s{XC}, 6")
    a(f"s_add_u32 s{T2}, s{T2}, 8")
    a(f"s_cmp_lt_u32 s{XC}, 4")
    a(f"s_cselect_b32 s{T0}, s{T0}, s{T2}")
    a(f"s_cselect_b32 s{T1}, 8, 6")
    a(f"s_and_b32 s{T2}, s{KK}, 7")
    a(f"s_add_u32 s{PRM}, s{T0}, s{T2}")
    a(f"s_cmp_ge_u32 s{T2}, s{T1}")
    a("s_cbranch_scc1 L_misc")
    a(f"s_cmp_lt_u32 s{KK}, 8")
    a("s_cbranch_scc1 L_f")

    a("v_lshrrev_b32 v4, 1, v0")
    a("v_and_b32 v5, 1, v0")
    a("v_lshlrev_b32 v5, 6, v5")
    a(f"s_lshl_b32 s{T1}, s3, 5")
    a(f"v_add_u32 v4, s{T1}, v4")
    a("v_mul_u32_u24 v4, 3584, v4")
    a("v_add_u32 v4, v4, v5")
    a(f"s_lshr_b32 s{T0}, s{PRM}, 1")
    a(f"s_lshl_b32 s{T0}, s{T0}, 7")
    a(f"s_bitcmp1_b32 s{PRM}, 0")
    a(f"s_cselect_b32 s{T1}, {256*3584}, 0")
    a(f"s_cselect_b32 s{T2}, {(4 - o.apf) * 64 * 3584}, 0")
    a(f"s_add_u32 s{T1}, s{T1}, s{T0}")
    a(f"s_add_u32 s{T2}, s{T2}, s{T0}")
    a("s_waitcnt lgkmcnt(0)")
    a.srd(R_A, 18, 512 * 3584)
    a.srd(R_B, 20, 512 * 3584)
    if o.hnat == 1:
        mtouch([(20, 0), (18, 0)])
        a("s_waitcnt vmcnt(0)")
    elif o.hnat:
        for k in range(o.hnat - 1):
            a(f"s_load_dword s{TAG}, s[{18 + 2*(k&1)}:{19 + 2*(k&1)}], 0")
            a("s_waitcnt lgkmcnt(0)")
    if o.hdelay:
        a(f"s_sleep {o.hdelay}")
    a(f"buffer_load_dword v8, v4, {R4(R_B)}, s{T1} offen")
    a("s_barrier")
    a(f"s_cmp_ge_u32 s3, {2 * (4 - o.apf)}")
    a("s_cbranch_scc1 L_end")
    a(f"buffer_load_dword v10, v4, {R4(R_A)}, s{T2} offen")
    a("s_endpgm")

    a.label("L_misc")
    a(f"s_cmp_eq_u32 s{KK}, 7")
    a("s_cbranch_scc1 L_fin")
    a(f"s_cmp_eq_u32 s{KK}, 14")
    a("s_cbranch_scc1 L_fin")
    a(f"s_cmp_eq_u32 s{KK}, 15")
    a("s_cbranch_scc1 L_w")
    a(f"s_cmp_lg_u32 s{XC}, 4")
    a("s_cbranch_scc1 L_end")
    a(f"s_mov_b32 s{PRM}, 128")
    a(f"s_mov_b32 s{SLOT}, 0")
    a(f"s_mov_b32 s{KK}, 15")
    a("s_branch L_a")

    a.label("L_w")
    a(f"s_and_b32 s{T0}, s{XC}, 3")
    a(f"s_lshl3_add_u32 s{T0}, s{T0}, s3")
    a(f"s_lshl_b32 s{T1}, s{T0}, 12")
    a(f"s_add_u32 s{T1}, s{T1}, {WS_KEY:#x}")
    a(f"v_lshlrev_b32 v4, 6, v{VN}")
    a(f"v_lshl_add_u32 v4, v{VQ}, 11, v4")
    a("v_lshlrev_b32 v6, 6, v0")
    a("v_mov_b32 v5, 0")
    a("s_waitcnt lgkmcnt(0)")
    a.srd(R_WS, 30, WS_BYTES)
    a("s_mov_b32 exec_hi, 0")
    a(f"buffer_atomic_or v5, v4, {R4(R_WS)}, s{T1} offen sc1")
    a(f"s_cmp_lg_u32 s{T0}, 0")
    a("s_cbranch_scc1 L_end")
    a(f"s_movk_i32 s{T1}, {WS_FRDY:#x}")
    a(f"buffer_atomic_or v5, v6, {R4(R_WS)}, s{T1} offen sc1")
    a("s_endpgm")

    a.label("L_f")
    WGF, WDF, XF, DG, DD = 16, 48, 64, 80, 88
    a(f"s_lshr_b32 s{REP}, s{PRM}, 1")
    a(f"s_xor_b32 s{WSEL}, s3, 7")
    a("v_lshrrev_b32 v8, 3, v0")
    a("v_and_b32 v9, 2, v8")
    a("v_and_b32 v10, 7, v0")
    a("v_xor_b32 v9, v9, v10")
    a("v_lshlrev_b32 v9, 4, v9")
    a("v_lshl_add_u32 v5, v8, 10, v9")
    a("v_xor_b32 v6, 64, v5")
    a(f"s_lshl_b32 s13, s{PRM}, 15")
    a(f"s_lshl_b32 s{T1}, s3, 7")
    a(f"s_add_u32 s13, s13, s{T1}")
    a(f"s_lshl_b32 s6, s3, 12")
    a(f"s_add_u32 s6, s6, {LF_WD}")
    srds()
    a.srd(R_C, 22, 1792 * 1024)
    if o.fnat == 2:
        mtouch([(22, 0), (18, 0), (20, 0), (4, 0), (30, 0x3000)])
        a("s_waitcnt vmcnt(0)")
    if o.fnat:
        tag_ready()
    if o.fdelay:
        a(f"s_sleep {o.fdelay}")

    def gu_dma(poll=0):
        for n in range(8):
            if poll and n == poll:
                a(f"buffer_load_dwordx4 {V(PB,4)}, v{KA}, {R4(R_WS)}, s15 offen sc1")
            a(f"s_add_u32 m0, s14, {n*1024}")
            a(f"buffer_load_dwordx4 v4, {R4(R_A)}, s12 offen lds")
            if n < 7:
                a(f"s_add_u32 s12, s12, {16*3584}")
        if poll == 8:
            a(f"buffer_load_dwordx4 {V(PB,4)}, v{KA}, {R4(R_WS)}, s15 offen sc1")

    def wd_dma():
        for n in range(4):
            a(f"s_add_u32 m0, s6, {n*1024}")
            a(f"buffer_load_dwordx4 v{5+(n&1)}, {R4(R_C)}, s13 offen lds")
            if n < 3:
                a(f"s_add_u32 s13, s13, 8192")

    def trs(extra):
        for sg in range(4):
            a(f"s_waitcnt vmcnt({6 - 2*sg + extra})")
            for tt in range(2):
                for hh in range(2):
                    a(f"ds_read_b64_tr_b16 {V(WGF+8*sg+4*tt+2*hh,2)}, v{12 if tt else 7} offset:{sg*2048+hh*256}")

    wd_dma()
    if o.tlb & 2 and o.fnat != 2:
        a("s_cmp_lg_u32 s3, 0")
        a("s_cbranch_scc1 L_nomf")
        mtouch([(18, 0), (20, 0), (4, 0), (30, 0x3000)])
        a.label("L_nomf")
    a(f"s_cmp_lt_u32 s{WSEL}, 4")
    a(f"s_cselect_b32 s{R_A}, s18, s20")
    a(f"s_cselect_b32 s{R_A+1}, s19, s21")
    a(f"s_mov_b32 s{R_A+2}, {512*3584:#x}")
    a(f"s_mov_b32 s{R_A+3}, 0x20000")
    a("v_lshrrev_b32 v8, 2, v0")
    a("v_mul_u32_u24 v4, 3584, v8")
    a("v_lshrrev_b32 v8, 2, v8")
    a("v_and_b32 v8, 2, v8")
    a("v_and_b32 v9, 3, v0")
    a("v_xor_b32 v8, v8, v9")
    a("v_lshl_add_u32 v4, v8, 4, v4")
    a(f"s_and_b32 s{T0}, s{WSEL}, 3")
    a(f"s_mul_i32 s12, s{T0}, {128*3584}")
    a(f"s_lshl_b32 s{T1}, s{PRM}, 6")
    a(f"s_add_u32 s12, s12, s{T1}")
    a(f"s_lshl_b32 s14, s3, 13")
    a(f"v_lshrrev_b32 v8, 2, v{VN}")
    a(f"v_lshl_add_u32 v9, v{VQ}, 3, v8")
    a("v_and_b32 v10, 3, v0")
    a("v_lshlrev_b32 v10, 3, v10")
    a(f"v_and_b32 v11, 1, v{VQ}")
    a("v_lshl_add_u32 v7, v9, 6, v10")
    a("v_lshl_add_u32 v7, v11, 5, v7")
    a("v_add_u32 v7, s14, v7")
    a("v_xor_b32 v12, 32, v7")
    a("v_lshrrev_b32 v8, 1, v8")
    a("v_lshl_add_u32 v8, v11, 1, v8")
    a("v_lshl_add_u32 v112, v9, 7, v10")
    a("v_lshl_add_u32 v112, v8, 5, v112")
    a("v_add_u32 v112, s6, v112")
    for u in range(1, 4):
        a(f"v_xor_b32 v{112+u}, {32*u}, v112")
    a(f"s_and_b32 s{T0}, s{WSEL}, 3")
    a(f"s_lshl_b32 s{T0}, s{T0}, 8")
    a(f"s_add_u32 s{T0}, s{T0}, {LF_X}")
    a(f"v_lshlrev_b32 v14, 4, v{VQ}")
    a(f"v_add_u32 v15, s{T0}, v14")
    a(f"s_lshl_b32 s{T0}, s{WSEL}, 7")
    a(f"s_add_u32 s{T0}, s{T0}, {LF_E}")
    a(f"v_add_u32 v107, s{T0}, v14")
    a(f"v_lshl_add_u32 v111, v{VQ}, 5, v10")
    a(f"v_add_u32 v111, {LF_E}, v111")
    a(f"v_lshlrev_b32 v108, 3, v{VQ}")
    a(f"v_lshl_add_u32 v108, v{VN}, 5, v108")
    a(f"s_mul_i32 s8, s3, {56*128}")
    a(f"s_lshl_b32 s{T1}, s{PRM}, 7")
    a(f"s_add_u32 s8, s8, s{T1}")
    a(f"s_add_u32 s8, s8, {WS_PART:#x}")
    keys_addr(PB)
    if not o.fnat:
        tag_ready()
    tagv(TGV)
    a(f"s_lshl_b32 s7, s{PRM}, 2")
    a(f"s_add_u32 s7, s7, {WS_FRDY:#x}")
    a("v_lshlrev_b32 v122, 8, v0")
    a(f"v_mov_b32 v123, s{TAG}")

    def kcheck():
        a(f"v_xor_b32 v{PB+1}, s{TAG}, v{PB+1}")
        a(f"v_bitop3_b32 v{PB+1}, v{PB+3}, s{TAG}, v{PB+1} bitop3:0xbe")
        a(f"v_cmp_ne_u32 vcc, 0, v{PB+1}")
        a(f"v_max_u32 v{PB}, v{PB}, v{PB+2}")

    def xsel():
        a(f"s_and_b32 s{SEL}, s{SEL}, 2047")
        a(f"s_lshl_b32 s{T0}, s{SEL}, 10")
        a(f"s_mov_b32 m0, {LF_X}")
        a(f"buffer_load_dwordx4 v{KA}, {R4(R_X)}, s{T0} offen lds")
    a("s_waitcnt vmcnt(0)")
    a(f"s_cmp_lg_u32 s3, {o.fpw}")
    a("s_cbranch_scc1 L_f1")
    if o.fpp == 0:
        a(f"buffer_load_dwordx4 {V(PB,4)}, v{KA}, {R4(R_WS)}, s15 offen sc1")
    a("s_barrier")
    stamp(7)
    gu_dma(o.fpp)
    for u in range(4):
        for hh in range(2):
            a(f"ds_read_b64_tr_b16 {V(WDF+4*u+2*hh,2)}, v{112+u} offset:{hh*512}")
    a(f"s_waitcnt vmcnt({8 - o.fpp})")
    kcheck()
    a("s_cbranch_vccnz L_f1b")
    keys_max(PB)
    stamp(3)
    xsel()
    a("s_waitcnt vmcnt(1)")
    trs(8)
    a("s_waitcnt vmcnt(0)")
    a("s_branch L_f2")
    a.label("L_f1b")
    keys_wait(PB)
    stamp(3)
    xsel()
    a("s_waitcnt vmcnt(1)")
    trs(8)
    a("s_waitcnt vmcnt(0)")
    a("s_branch L_f2")
    a.label("L_f1")
    a("s_barrier")
    stamp(7)
    gu_dma()
    for u in range(4):
        for hh in range(2):
            a(f"ds_read_b64_tr_b16 {V(WDF+4*u+2*hh,2)}, v{112+u} offset:{hh*512}")
    trs(0)
    a.label("L_f2")
    stamp(2)
    a("s_waitcnt lgkmcnt(0)")
    stamp(4)
    a("s_barrier")
    stamp(5)
    for sg in range(4):
        a(f"ds_read_b128 {V(XF+4*sg,4)}, v15 offset:{sg*64}")

    def frdy():
        l = a.L("fr")
        a("s_cmp_lg_u32 s3, 7")
        a(f"s_cbranch_scc1 {l}")
        a("s_mov_b64 exec, 0xff")
        a(f"buffer_store_dword v123, v122, {R4(R_WS)}, s7 offen sc1")
        a("s_mov_b64 exec, -1")
        a.label(l)
    if o.frdy == 1:
        frdy()
    for sg in range(4):
        lg(3 - sg)
        for tt in range(2):
            a(f"{MF} {V(DG+4*tt,4)}, {V(WGF+8*sg+4*tt,4)}, {V(XF+4*sg,4)}, {V(DG+4*tt,4) if sg else 0}")
    a("s_mov_b32 exec_lo, 0x10001")
    a("s_mov_b32 exec_hi, 0x10001")
    for tt in range(2):
        a(f"ds_write_b128 v107, {V(DG+4*tt,4)} offset:{tt*64}")
    a("s_mov_b64 exec, -1")
    if o.frdy == 3:
        frdy()
    a("s_waitcnt lgkmcnt(0)")
    a("s_barrier")
    for k in range(8):
        a(f"ds_read_b64 {V(XF+2*k,2)}, v111 offset:{128*k}")
    if o.frdy == 2:
        frdy()
    for m in range(2):
        lg(4 - 4 * m)
        b = XF + 8 * m
        a(f"v_pk_add_f32 {V(b,2)}, {V(b,2)}, {V(b+2,2)}")
        a(f"v_pk_add_f32 {V(b+4,2)}, {V(b+4,2)}, {V(b+6,2)}")
        a(f"v_pk_add_f32 {V(b,2)}, {V(b,2)}, {V(b+4,2)}")
        if m == 0:
            weave(cap(sigmoid, XF + 2, XF), cap(sigmoid, XF + 3, XF + 1), 1)
            a(f"v_pk_mul_f32 {V(XF,2)}, {V(XF,2)}, {V(XF+2,2)}")
    a(f"v_pk_mul_f32 {V(XF,2)}, {V(XF,2)}, {V(XF+8,2)}")
    a(f"v_cvt_pk_bf16_f32 v{XF}, v{XF}, v{XF+1}")
    for k in range(4):
        a(f"v_mov_b32_dpp v{XF+8+k}, v{XF} quad_perm:[{k},{k},{k},{k}] row_mask:0xf bank_mask:0xf")
    for u in range(4):
        a(f"{MF} {V(DD+4*u,4)}, {V(WDF+4*u,4)}, {V(XF+8,4)}, 0")
    for u in range(4):
        a(f"s_mov_b32 exec_lo, {0x00010001 << u:#x}")
        a(f"s_mov_b32 exec_hi, {0x00010001 << u:#x}")
        a(f"v_cvt_pk_bf16_f32 v120, v{DD+4*u}, v{DD+4*u+1}")
        a(f"v_cvt_pk_bf16_f32 v121, v{DD+4*u+2}, v{DD+4*u+3}")
    a("s_mov_b32 exec_lo, 0x000f000f")
    a("s_mov_b32 exec_hi, 0x000f000f")
    a(f"v_bitop3_b32 v120, v{TGV+2}, v{TGV}, v120 bitop3:0xca")
    a(f"v_bitop3_b32 v121, v{TGV+2}, v{TGV+1}, v121 bitop3:0xca")
    a(f"buffer_store_dwordx2 v[120:121], v108, {R4(R_WS)}, s8 offen sc1")
    a("s_mov_b64 exec, -1")
    stamp(8)
    fini(9)

    GW = 28
    a.label("L_fin")
    rowoff()
    a(f"s_add_u32 s{REP}, s{XC}, 24")
    a(f"s_lshr_b32 s{FC}, s{KK}, 1")
    a(f"s_and_b32 s{FC}, s{FC}, 4")
    a(f"s_add_u32 s{FC}, s{FC}, s{XC}")
    a(f"s_sub_u32 s{FC}, s{FC}, 4")
    srds()
    a.srd(R_B, 24, 1024)
    a(f"buffer_load_dwordx4 {V(GW,4)}, v4, {R4(R_B)}, 0 offen")
    dma_blocks((3, (0,)))
    a(f"s_and_b32 s{T3}, s3, 1")
    a(f"s_add_u32 s{T3}, s{T3}, 8")
    dma_blocks((T3, (0,)))
    a.srd(R_OUT, 26, 2 << 20)
    mtouch([(4, 0), (26, 0), (30, 0x3000), (30, WS_P + 0x3000)])
    p2addr()
    keys_addr(PB)
    a(f"s_mul_i32 s7, s{FC}, {56*128}")
    a(f"s_lshl_b32 s{T1}, s3, 10")
    a(f"s_add_u32 s7, s7, s{T1}")
    a(f"s_add_u32 s7, s7, {WS_PART - 1024:#x}")
    a(f"v_and_b32 v108, 1, v{VQ}")
    a(f"v_lshrrev_b32 v111, 1, v{VQ}")
    a("v_lshl_add_u32 v108, v108, 1, v111")
    a(f"v_and_b32 v107, 7, v{VN}")
    if o.pat:
        a(f"v_lshl_add_u32 v108, v{VN}, 2, v108")
    else:
        a(f"v_lshl_add_u32 v108, v107, 3, v108")
    a(f"s_lshl_b32 s{T0}, s3, 8")
    a(f"s_add_u32 s{T0}, s{T0}, {L_Y - 256}")
    a(f"v_lshl_add_u32 v108, v108, 2, s{T0}")
    a(f"v_and_b32 v111, 3, v{VN}")
    a(f"v_lshlrev_b32 v111, 6, v111")
    a(f"v_lshl_add_u32 v111, v{VQ}, 4, v111")
    a(f"v_mov_b32 v109, {L_SEL}")
    tag_ready()
    a("s_cmp_lg_u32 s3, 0")
    a("s_cbranch_scc1 L_fin0")
    a(f"s_cmp_eq_u32 s{FC}, 0")
    a("s_cbranch_scc1 L_fin0")
    a(f"s_lshl_b32 s{T0}, s{FC}, 7")
    a(f"v_mov_b32 v{t}, {WS_ACK:#x}")
    a(f"v_mov_b32 v{t+1}, s{TAG}")
    a("s_mov_b64 exec, 1")
    a(f"buffer_store_dword v{t+1}, v{t}, {R4(R_WS)}, s{T0} offen sc1")
    a("s_mov_b64 exec, -1")
    a.label("L_fin0")
    tagv(TGV)
    a("s_waitcnt vmcnt(0)")
    a("s_barrier")
    a(f"s_lshr_b32 s{T0}, s{FC}, 2")
    a(f"s_lshl_b32 s{T0}, s{T0}, 10")
    a(f"v_add_u32 v110, s{T0}, v{KA}")
    a(f"ds_read_b128 {V(FRE,4)}, v{KA} offset:{L_TAB}")
    a(f"ds_read_b128 {V(FIM,4)}, v{KA} offset:{L_TAB+1024}")
    for k in range(4):
        a(f"ds_read_b128 {V(TW+4*k,4)}, v{KA} offset:{L_TAB+2048+1024*k}")
    for h in range(2):
        a(f"ds_read_b128 {V(B3+4*h,4)}, v110 offset:{L_TAB+6144+2048*h}")
    stamp(2)
    a("s_cmp_lg_u32 s3, 0")
    a("s_cbranch_scc1 L_fin1a")
    keys_pipe(PB, False)
    a(f"v_mov_b32 v110, s{SEL}")
    a("ds_write_b32 v109, v110")
    a(f"s_and_b32 s{T0}, s{SEL}, 2047")
    a(f"s_lshl_b32 s12, s{T0}, 10")
    a(f"buffer_load_dwordx4 {V(XR,4)}, v4, {R4(R_X)}, s12 offen")
    a("s_branch L_fin1")
    a.label("L_fin1a")
    a(f"s_lshl3_add_u32 s{T0}, s{FC}, s3")
    a(f"s_cmp_lg_u32 s{T0}, 2")
    a("s_cbranch_scc1 L_fin1")
    a(f"v_lshlrev_b32 v{PB}, 7, v0")
    a("s_mov_b64 exec, 0xff")
    a(f"s_movk_i32 s{T0}, {WS_ACK:#x}")
    a.label("L_ack")
    a(f"buffer_load_dword v{PB+1}, v{PB}, {R4(R_WS)}, s{T0} offen sc1")
    a("s_waitcnt vmcnt(0)")
    a(f"v_cmp_ne_u32 vcc, s{TAG}, v{PB+1}")
    retry("L_ack")
    a("s_mov_b64 exec, -1")
    a.label("L_fin1")
    a("s_waitcnt lgkmcnt(0)")
    a("s_barrier")
    stamp(3)
    a("ds_read_b32 v110, v109")
    a("s_waitcnt lgkmcnt(0)")
    a(f"v_readfirstlane_b32 s{RS}, v110")
    a(f"s_and_b32 s{SEL}, s{RS}, 2047")
    a(f"s_and_b32 s{T0}, s{SEL}, 255")
    a(f"s_and_b32 s{T1}, s{SEL}, 15")
    a(f"s_and_b32 s{T2}, s{SEL}, 7")
    a(f"s_cselect_b32 s{T0}, s{T1}, s{T0}")
    a(f"s_cselect_b32 s{T1}, 8, 128")
    a(f"s_cmp_gt_u32 s{T0}, s{T1}")
    a(f"s_cselect_b32 s{RHO}, 0x80000000, 0")
    a(f"s_sub_u32 s{T1}, 2048, s{SEL}")
    a(f"s_cmp_lg_u32 s{RHO}, 0")
    a(f"s_cselect_b32 s{T0}, s{T1}, s{SEL}")
    a(f"s_and_b32 s{PRM}, s{T0}, 255")
    a(f"s_lshr_b32 s{WSEL}, s{T0}, 8")
    a(f"s_lshr_b32 s{T0}, s{PRM}, 4")
    a(f"s_and_b32 s{T1}, s{PRM}, 15")
    a(f"s_lshl4_add_u32 s{SLOT}, s{T1}, s{T0}")
    a(f"s_add_u32 s{T2}, s{T0}, s{T1}")
    a(f"s_cmp_eq_u32 s{T1}, 8")
    a(f"s_cselect_b32 s{SLOT}, s{T2}, s{SLOT}")
    a(f"s_cmp_eq_u32 s{PRM}, 128")
    a(f"s_cselect_b32 s{SLOT}, 0, s{SLOT}")
    a(f"s_lshl_b32 s14, s{SLOT}, 14")
    a(f"s_lshl_b32 s{T0}, s3, 8")
    a(f"s_add_u32 s14, s14, s{T0}")
    a(f"s_add_u32 s14, s14, {WS_P:#x}")
    a1consts("L_fin")
    a("s_cmp_lg_u32 s3, 0")
    a("s_cbranch_scc1 L_fin3")
    p2read_addr(WSEL)
    for i in range(4):
        a(f"v_xor_b32 v{FRE+i}, s{RHO}, v{FRE+i}")
        a(f"v_xor_b32 v{FIM+i}, s{RHO}, v{FIM+i}")
    a(f"s_ashr_i32 s{T0}, s{RS}, 31")
    a(f"s_orn2_b32 s{T0}, 0x80000000, s{T0}")
    a(f"s_xor_b32 s{RS}, s{RS}, s{T0}")
    a("s_waitcnt vmcnt(0)")
    for k in range(4):
        a(f"v_dot2_f32_bf16 v32, v{XR+k}, v{GW+k}, {'v32' if k else 0}")
    rowsum(32)
    a("v_mov_b32 v33, v32")
    a("v_permlane32_swap_b32 v32, v33")
    a("v_add_f32 v32, v32, v33")
    a("v_mov_b32 v33, v32")
    a("v_permlane16_swap_b32 v32, v33")
    a("v_add_f32 v32, v32, v33")
    a(f"v_mov_b32 v33, s{RS}")
    weave(cap(sigmoid, 34, 32), cap(sigmoid, 35, 33), 1)
    for k in range(2):
        a(f"v_permlane16_swap_b32 v{XR+k}, v{XR+2+k}")
    a(f"s_bitcmp1_b32 s{FC}, 2")
    a("s_cbranch_scc0 L_fint")
    a(f"v_mov_b32 v{XR}, v{XR+2}")
    a(f"v_mov_b32 v{XR+1}, v{XR+3}")
    a.label("L_fint")
    a(f"v_sub_f32 v36, 1.0, v34")
    for k in range(2):
        a(f"v_lshlrev_b32 v{XG+2*k}, 16, v{XR+k}")
        a(f"v_and_b32 v{XG+2*k+1}, 0xffff0000, v{XR+k}")
        a(f"v_pk_mul_f32 {V(XG+2*k,2)}, {V(XG+2*k,2)}, v[36:37] op_sel_hi:[1,0]")
    a(f"v_mul_f32 v38, v35, v36")
    for k in range(8):
        a(f"v_pk_mul_f32 {V(TW+2*k,2)}, {V(TW+2*k,2)}, v[34:35] op_sel_hi:[1,0]")
    a.label("L_fin3")
    if o.finb:
        a("s_barrier")
    stamp(5)
    p_issue()
    c1("L_fin")
    a("s_waitcnt lgkmcnt(0)")
    a("s_barrier")
    stamp(7)
    a("s_cmp_lg_u32 s3, 0")
    a("s_cbranch_scc1 L_pp0")
    for h in range(2):
        a(f"ds_read_b128 {V(16+4*h,4)}, v62 offset:{h*1024}")
    for h in range(2):
        lg(1 - h)
        a(f"{MF} {V(D2+8*h,4)}, {V(16+4*h,4)}, {V(FRE,4)}, 0")
        a(f"{MF} {V(D2+8*h+4,4)}, {V(16+4*h,4)}, {V(FIM,4)}, 0")
    for h in range(2):
        twpk(D2 + 8 * h, TW + 8 * h, TW + 8 * h + 4, GF + 4 * h)
        a(f"{MF} {V(D3,4)}, {V(GF+4*h,4)}, {V(B3+4*h,4)}, {V(D3 if h else XG,4)}")
    a(f"v_lshlrev_b32 v4, 5, v{VN}")
    a(f"v_lshl_add_u32 v4, v{VQ}, 3, v4")
    a(f"s_lshr_b32 s{T1}, s{FC}, 2")
    a(f"s_lshl_b32 s{T1}, s{T1}, 9")
    a(f"s_add_u32 s12, s12, s{T1}")
    if o.frdy:
        a("s_barrier")
    a("s_branch L_fin5")
    a.label("L_pp0")
    if o.frdy:
        a("s_cmp_lg_u32 s3, 1")
        a("s_cbranch_scc1 L_pp1")
        a(f"s_lshl_b32 s{T0}, s{FC}, 8")
        a(f"s_add_u32 s{T0}, s{T0}, {WS_FRDY:#x}")
        a(f"v_lshlrev_b32 v{PB}, 2, v0")
        a("s_mov_b32 exec_hi, 0x00ffffff")
        def issue(j):
            a(f"v_mov_b32 v{PB+1+j}, 0")
            a(f"buffer_atomic_or v{PB+1+j}, v{PB}, {R4(R_WS)}, s{T0} offen sc0 sc1")
        poll_pipe("L_fr", 3, issue, lambda j: a(f"v_cmp_ne_u32 vcc, s{TAG}, v{PB+1+j}"), 1, lambda j: None)
        a("s_mov_b64 exec, -1")
        a.label("L_pp1")
        stamp(4)
        a("s_barrier")
    if o.pat:
        def issue(j):
            for r in range(4):
                a(f"v_mov_b32 v{8+4*j+r}, 0")
            for k in range(2):
                a(f"buffer_atomic_or_x2 {V(8+4*j+2*k,2)}, v246, {R4(R_WS)}, s7 offen offset:{512*k} sc0 sc1")
        def done(j):
            for k in range(4):
                a(f"v_lshlrev_b32 v{32+2*k}, 16, v{8+4*j+k}")
                a(f"v_and_b32 v{33+2*k}, 0xffff0000, v{8+4*j+k}")
        poll_pipe("L_pa", o.pat, issue, lambda j: tagcheck(8 + 4 * j, 4), 2, done)
        a("v_pk_add_f32 v[32:33], v[32:33], v[36:37]")
        a("v_pk_add_f32 v[34:35], v[34:35], v[38:39]")
        fold4(32, 33, 34, 35)
        a("ds_write_b32 v108, v32")
        a("s_waitcnt lgkmcnt(0)")
    else:
        a.label("L_pp")
        a(f"buffer_load_dwordx4 v[8:11], v{KA}, {R4(R_WS)}, s7 offen sc1")
        a("s_waitcnt vmcnt(0)")
        tagcheck(8, 4)
        for k in range(4):
            a(f"v_lshlrev_b32 v{16+2*k}, 16, v{8+k}")
            a(f"v_and_b32 v{17+2*k}, 0xffff0000, v{8+k}")
        retry("L_pp")
        weave(cap(fold4, 16, 17, 18, 19), cap(fold4, 20, 21, 22, 23), 1)
        a("v_add_f32_dpp v16, v16, v16 row_ror:8 row_mask:0xf bank_mask:0xf")
        a("v_add_f32_dpp v20, v20, v20 row_ror:8 row_mask:0xf bank_mask:0xf")
        a("ds_write2_b32 v108, v16, v20 offset0:0 offset1:4")
        a("s_waitcnt lgkmcnt(0)")
    a.label("L_fin5")
    stamp(8)
    a("s_barrier")
    stamp(9)
    a("s_cmp_lg_u32 s3, 0")
    a("s_cbranch_scc1 L_fin7")
    for k in range(7):
        a(f"ds_read_b128 {V(64+4*k,4)}, v111 offset:{L_Y+256*k}")
    a(f"s_and_b32 s{T1}, s{FC}, 3")
    a(f"s_lshl_b32 s{T1}, s{T1}, 2")
    a("s_waitcnt lgkmcnt(0)")
    for k in (1, 3, 5):
        for p in range(2):
            a(f"v_pk_add_f32 {V(64+4*k+2*p,2)}, {V(64+4*k+2*p,2)}, {V(68+4*k+2*p,2)}")
    for p in range(2):
        a(f"v_pk_add_f32 {V(64+2*p,2)}, {V(64+2*p,2)}, {V(68+2*p,2)}")
        a(f"v_pk_add_f32 {V(76+2*p,2)}, {V(76+2*p,2)}, {V(84+2*p,2)}")
    for p in range(2):
        a(f"v_pk_add_f32 {V(64+2*p,2)}, {V(64+2*p,2)}, {V(76+2*p,2)}")
    for p in range(2):
        a(f"v_pk_fma_f32 {V(64+2*p,2)}, {V(64+2*p,2)}, v[38:39], {V(D3+2*p,2)} op_sel_hi:[1,0,1]")
    a("v_cvt_pk_bf16_f32 v16, v64, v65")
    a("v_cvt_pk_bf16_f32 v17, v66, v67")
    a(f"s_lshl_b32 exec_lo, 0x000f000f, s{T1}")
    a("s_mov_b32 exec_hi, exec_lo")
    a(f"buffer_store_dwordx2 v[16:17], v4, {R4(R_OUT)}, s12 offen sc1")
    a(f"s_cmp_lg_u32 s{FC}, 0")
    a("s_cbranch_scc1 L_fin7")
    a("s_mov_b64 exec, 1")
    a(f"v_mov_b32 v20, {WS_EPOCH}")
    a(f"v_mov_b32 v21, s{TAG}")
    a(f"buffer_store_dword v21, v20, {R4(R_WS)}, 0 offen sc1")
    a.label("L_fin7")
    fini(10)
    a.label("L_end")
    a("s_endpgm")


def emit_tables(a):
    T = tables()
    a.raw(".p2align 7")
    a.raw(".type L_tab,@object")
    a.label("L_tab")
    for k in range(0, len(T), 8):
        a.raw(".long " + ", ".join("0x%x" % v for v in T[k:k + 8]))
    a.label("L_tabend")
    a.raw(".size L_tab, L_tabend - L_tab")


if __name__ == "__main__":
    ap = argparse.ArgumentParser()
    ap.add_argument("-o", required=True)
    for k, v in dict(stamps=0, only=0, tlb=7, cpf=1, kr=32, ksleep=1, dbg=0, kp=3, psleep=4, frdy=0, hdelay=0, fdelay=0, kload=1, kdma=2,
                     apf=2, nt=0, base=0, dw=2, hw=0, wdp=1, kb1=1, rpre=0, hnat=2, finb=0, ppre=2, fnat=1, fpw=0, fpp=8, prio=0, kat=0, kack=1, nob0=0, pat=3).items():
        ap.add_argument("--" + k, type=int, default=v)
    o = ap.parse_args()
    a = Asm()
    gen(a, o)
    a.lines = haz.fix_all(a.lines)
    emit_tables(a)
    finish(a, o.o, 256, 512, LDS_BYTES, 256, sgpr=102)
```

```python
import argparse, math, struct
from fw import *
import haz

WS_EPOCH = 0
WS_ACK = 0x1000
WS_FRDY = 0x2000
WS_PART = 0x10000
WS_KEY = 0x40000
WS_P = 0x200000
WS_STAMP = 8 << 20
R_X, R_WS, R_OUT, R_A, R_B, R_C = 32, 36, 40, 44, 48, 52
RS, SLOT, TABS = 8, 9, 10
XC, KK, PRM, TAG = 56, 57, 58, 59
T0, T1, T2, T3 = 60, 61, 62, 63
ST = 64
SPIN, TB0, TB1, ROWA, ROWB, REP, RHO, SEL, WSEL = 90, 91, 92, 93, 94, 95, 96, 97, 98
MF = "v_mfma_f32_16x16x32_bf16"
VN, VQ = 2, 3
L_X2 = 16384
L_TAB = 32768
L_KEY = L_TAB + 10240
L_CNT = L_KEY + 4
L_SEL = L_KEY + 8
L_G = L_KEY + 64
L_KB = L_KEY + 1024
L_Y = L_KEY + 256
LF_WD = 65536
LF_X = 98304
LF_E = LF_X + 1024
LDS_BYTES = LF_E + 1024
FC = 99
LOG2E_N = 0xbfb8aa3b
A1R, A1I, FRE, FIM, FRC, FIC, B3, TW, XG, D3 = 144, 148, 152, 156, 160, 164, 168, 184, 216, 232
GF, D1, D2, XR, TGV, PB = 112, 64, 64, 40, 104, 128
t = 96
KA = 247
XR2, GW2 = 232, 240


def f32(x):
    return struct.unpack("<I", struct.pack("<f", x))[0]


def fhex(x):
    return "0x%08x" % f32(x)


def bf(x):
    u = f32(x)
    return ((u + 0x7fff + ((u >> 16) & 1)) >> 16) & 0xffff


def cs(num, den):
    num %= den
    c, s = math.cos(2 * math.pi * num / den), math.sin(2 * math.pi * num / den)
    return (0.0 if abs(c) < 1e-12 else c), (0.0 if abs(s) < 1e-12 else s)


def tables():
    T = []
    def blk(fn):
        for l in range(64):
            for i in range(4):
                T.append(fn(l & 15, l >> 4, i))
    pk = lambda lo, hi: bf(lo) | (bf(hi) << 16)
    blk(lambda n, q, i: pk(*cs((4 * q + i) * n, 16)))
    blk(lambda n, q, i: pk(-cs((4 * q + i) * n, 16)[1], cs((4 * q + i) * n, 16)[0]))
    for h in range(2):
        for k in range(2):
            blk(lambda n, q, i: f32(cs((2 * (4 * q + i) + h) * n, 512)[k]))
    for h in range(2):
        for tau in range(2):
            blk(lambda n, q, i: pk(*cs((2 * (4 * q + i) + h) * (16 * tau + n), 32)))
    return T


def gen(a, o):
    WS_BYTES = (16 << 20) if o.stamps else (4 << 20)

    def NT(bit):
        return " nt" if o.nt & bit else ""

    def stamp(k, end=False):
        if o.stamps and (not o.only or k == 0 or end or (o.only >> k) & 1):
            a(f"{'s_memtime' if o.stamps == 2 else 's_memrealtime'} s[{ST+2*k}:{ST+2*k+1}]")

    def dstamp(k, early):
        if bool(o.dbg) == early:
            stamp(k)

    def lg(n):
        a(f"s_waitcnt lgkmcnt({0 if o.stamps and o.only != 1 else n})")

    def fini(n):
        if o.stamps:
            a("s_mov_b64 exec, -1")
            a("s_waitcnt vmcnt(0) lgkmcnt(0)")
            stamp(n, True)
            a("s_waitcnt lgkmcnt(0)")
            for k in range(n + 1):
                a(f"v_writelane_b32 v250, s{ST+2*k}, {k}")
            a(f"s_mov_b32 s{T0}, {0x5a5a0000 | (n + 1):#x}")
            a(f"v_writelane_b32 v250, s{T0}, 15")
            a(f"s_lshl3_add_u32 s{T0}, s2, s3")
            a(f"s_lshl_b32 s{T0}, s{T0}, 6")
            a(f"s_add_u32 s{T0}, s{T0}, {WS_STAMP:#x}")
            a("v_lshlrev_b32 v251, 2, v0")
            a("s_mov_b64 exec, 0xffff")
            a(f"buffer_store_dword v250, v251, {R4(R_WS)}, s{T0} offen")
        a("s_endpgm")

    def retry(label, sleep=1):
        a(f"s_cbranch_vccz {label}_ok")
        if sleep:
            a(f"s_sleep {sleep}")
        a(f"s_sub_u32 s{SPIN}, s{SPIN}, 1")
        a(f"s_cbranch_scc0 {label}")
        a(f"s_mov_b32 s{SPIN}, 0")
        a.label(f"{label}_ok")

    def srds(epoch=True):
        a("s_waitcnt lgkmcnt(0)")
        if o.stamps:
            for k in range(2, 13):
                a(f"s_mov_b32 s{ST+2*k}, s{ST}")
        stamp(1)
        if o.base:
            a(f"s_add_u32 s30, s30, {o.base:#x}")
            a("s_addc_u32 s31, s31, 0")
        if epoch:
            a(f"s_load_dword s{TAG}, s[30:31], {WS_EPOCH}")
        a.srd(R_X, 4, 2 << 20)
        a.srd(R_WS, 30, WS_BYTES)

    def tag_ready():
        a("s_waitcnt lgkmcnt(0)")
        a(f"s_add_u32 s{TAG}, s{TAG}, 0x9e3779b9")
        a(f"s_bitcmp1_b32 s{TAG}, 0")
        a(f"s_cselect_b32 s{TB0}, 1, 0x10000")
        a(f"s_xor_b32 s{TB1}, s{TB0}, 0x10001")

    def tagv(v):
        a(f"v_mov_b32 v{v}, s{TB0}")
        a(f"v_mov_b32 v{v+1}, s{TB1}")
        a(f"v_mov_b32 v{v+2}, 0x00010001")

    def touch(items):
        if not o.tlb:
            return 0
        for k, (srd, off) in enumerate(items):
            a(f"v_mov_b32 v{252+k}, {off:#x}")
            a(f"buffer_load_dword v{252+k}, v{252+k}, {R4(srd)}, 0 offen")
        return len(items)

    def mtouch(ptrs):
        if not o.tlb:
            return 0
        a(f"v_mov_b32 v252, s{ptrs[0][0]}")
        a(f"v_mov_b32 v253, s{ptrs[0][0]+1}")
        for k, (p, off) in enumerate(ptrs[1:], 1):
            if off:
                a(f"s_add_u32 s{T3}, s{p}, {off:#x}")
                a(f"v_writelane_b32 v252, s{T3}, {k}")
                a(f"s_addc_u32 s{T3}, s{p+1}, 0")
                a(f"v_writelane_b32 v253, s{T3}, {k}")
            else:
                a(f"v_writelane_b32 v252, s{p}, {k}")
                a(f"v_writelane_b32 v253, s{p+1}, {k}")
        a(f"s_mov_b64 exec, {(1 << len(ptrs)) - 1:#x}")
        a("global_load_dword v254, v[252:253], off")
        a("s_mov_b64 exec, -1")
        return 1

    def sigmoid(d, s):
        a(f"v_mul_f32 v{d}, {LOG2E_N:#x}, v{s}")
        a(f"v_exp_f32 v{d}, v{d}")
        a(f"v_add_f32 v{d}, 1.0, v{d}")
        a(f"v_rcp_f32 v{d}, v{d}")

    def rbf(d):
        a(f"v_cvt_pk_bf16_f32 v{d}, v{d}, v{d}")
        a(f"v_and_b32 v{d}, 0xffff0000, v{d}")

    def keys_addr(b):
        a(f"s_and_b32 s15, s{REP}, {o.kr-1}")
        a(f"s_lshl_b32 s15, s15, 11")
        a(f"s_add_u32 s15, s15, {WS_KEY:#x}")
        a(f"v_lshlrev_b32 v{b+6}, 3, v0")
        a(f"v_lshlrev_b32 v{b+5}, 4, v0")

    def keys_issue(b):
        if o.kload & 1:
            a(f"buffer_load_dwordx4 {V(b,4)}, v{b+5}, {R4(R_WS)}, s15 offen sc1")
            return
        for r in range(4):
            a(f"v_mov_b32 v{b+r}, 0")
        a(f"buffer_atomic_or_x2 {V(b,2)}, v{b+6}, {R4(R_WS)}, s15 offen sc0 sc1")
        a(f"buffer_atomic_or_x2 {V(b+2,2)}, v{b+6}, {R4(R_WS)}, s15 offen offset:512 sc0 sc1")

    def keys_wait(b, issued=False):
        l = a.L("pk")
        if issued:
            a(f"s_branch {l}_w")
        a.label(l)
        keys_issue(b)
        a.label(f"{l}_w")
        a("s_waitcnt vmcnt(0)")
        a(f"v_xor_b32 v{b+1}, s{TAG}, v{b+1}")
        a(f"v_bitop3_b32 v{b+1}, v{b+3}, s{TAG}, v{b+1} bitop3:0xbe")
        a(f"v_cmp_ne_u32 vcc, 0, v{b+1}")
        a(f"v_max_u32 v{b}, v{b}, v{b+2}")
        retry(l, o.ksleep)
        for r in (8, 4, 2, 1):
            a(f"v_max_u32_dpp v{b}, v{b}, v{b} row_ror:{r} row_mask:0xf bank_mask:0xf")
        a(f"v_readlane_b32 s{SEL}, v{b}, 0")
        a(f"v_readlane_b32 s{T0}, v{b}, 16")
        a(f"v_readlane_b32 s{T1}, v{b}, 32")
        a(f"v_readlane_b32 s{T2}, v{b}, 48")
        a(f"s_max_u32 s{SEL}, s{SEL}, s{T0}")
        a(f"s_max_u32 s{T1}, s{T1}, s{T2}")
        a(f"s_max_u32 s{SEL}, s{SEL}, s{T1}")

    def keys_max(b):
        for r in (8, 4, 2, 1):
            a(f"v_max_u32_dpp v{b}, v{b}, v{b} row_ror:{r} row_mask:0xf bank_mask:0xf")
        a(f"v_readlane_b32 s{SEL}, v{b}, 0")
        a(f"v_readlane_b32 s{T0}, v{b}, 16")
        a(f"v_readlane_b32 s{T1}, v{b}, 32")
        a(f"v_readlane_b32 s{T2}, v{b}, 48")
        a(f"s_max_u32 s{SEL}, s{SEL}, s{T0}")
        a(f"s_max_u32 s{T1}, s{T1}, s{T2}")
        a(f"s_max_u32 s{SEL}, s{SEL}, s{T1}")

    def poll_pipe(name, K, issue, check, nv, done):
        for j in range(K):
            issue(j)
            if j < K - 1:
                a(f"s_sleep {o.psleep}")
        a.label(name)
        for j in range(K):
            a(f"s_waitcnt vmcnt({nv*(K-1)})")
            check(j)
            a(f"s_cbranch_vccz {name}_d{j}")
            issue(j)
        a(f"s_sub_u32 s{SPIN}, s{SPIN}, 1")
        a(f"s_cbranch_scc0 {name}")
        a("s_waitcnt vmcnt(0)")
        for j in range(K):
            a.label(f"{name}_d{j}")
            done(j)
            if j < K - 1:
                a(f"s_branch {name}_x")
        a.label(f"{name}_x")

    def keys_pipe(b, load, buf=80):
        def issue(j):
            c = buf + 4 * j
            if load:
                a(f"buffer_load_dwordx4 {V(c,4)}, v{b+5}, {R4(R_WS)}, s15 offen sc1")
                return
            for r in range(4):
                a(f"v_mov_b32 v{c+r}, 0")
            a(f"buffer_atomic_or_x2 {V(c,2)}, v{b+6}, {R4(R_WS)}, s15 offen sc0 sc1")
            a(f"buffer_atomic_or_x2 {V(c+2,2)}, v{b+6}, {R4(R_WS)}, s15 offen offset:512 sc0 sc1")
        def check(j):
            c = buf + 4 * j
            a(f"v_xor_b32 v{b+1}, s{TAG}, v{c+1}")
            a(f"v_bitop3_b32 v{b+1}, v{c+3}, s{TAG}, v{b+1} bitop3:0xbe")
            a(f"v_cmp_ne_u32 vcc, 0, v{b+1}")
        def done(j):
            c = buf + 4 * j
            a(f"v_max_u32 v{b}, v{c}, v{c+2}")
        poll_pipe(a.L("kp"), 1 if load else o.kp, issue, check, 1 if load else 2, done)
        for r in (8, 4, 2, 1):
            a(f"v_max_u32_dpp v{b}, v{b}, v{b} row_ror:{r} row_mask:0xf bank_mask:0xf")
        a(f"v_readlane_b32 s{SEL}, v{b}, 0")
        a(f"v_readlane_b32 s{T0}, v{b}, 16")
        a(f"v_readlane_b32 s{T1}, v{b}, 32")
        a(f"v_readlane_b32 s{T2}, v{b}, 48")
        a(f"s_max_u32 s{SEL}, s{SEL}, s{T0}")
        a(f"s_max_u32 s{T1}, s{T1}, s{T2}")
        a(f"s_max_u32 s{SEL}, s{SEL}, s{T1}")

    def fold4(x0, x1, x2, x3):
        a(f"v_permlane32_swap_b32 v{x0}, v{x1}")
        a(f"v_permlane32_swap_b32 v{x2}, v{x3}")
        a(f"v_add_f32 v{x0}, v{x0}, v{x1}")
        a(f"v_add_f32 v{x2}, v{x2}, v{x3}")
        a(f"v_permlane16_swap_b32 v{x0}, v{x2}")
        a(f"v_add_f32 v{x0}, v{x0}, v{x2}")

    def rowsum(x):
        for r in (8, 4, 2, 1):
            a(f"v_add_f32_dpp v{x}, v{x}, v{x} row_ror:{r} row_mask:0xf bank_mask:0xf")

    def cap(fn, *args):
        keep = a.lines
        a.lines = []
        fn(*args)
        out = [l.strip() for l in a.lines]
        a.lines = keep
        return out

    def weave(main, fill, every, first=0):
        fill = list(fill)
        for k, l in enumerate(main):
            if fill and k >= first and (k - first) % every == 0:
                a(fill.pop(0))
            a(l)
        for l in fill:
            a(l)

    def twpk(D, TC, TS, out, t=t):
        for p in range(2):
            a(f"v_pk_mul_f32 {V(t+2*p,2)}, {V(D+2*p,2)}, {V(TC+2*p,2)}")
            a(f"v_pk_mul_f32 {V(t+4+2*p,2)}, {V(D+4+2*p,2)}, {V(TC+2*p,2)}")
        for p in range(2):
            a(f"v_pk_fma_f32 {V(t+2*p,2)}, {V(D+4+2*p,2)}, {V(TS+2*p,2)}, {V(t+2*p,2)}")
            a(f"v_pk_fma_f32 {V(t+4+2*p,2)}, {V(D+2*p,2)}, {V(TS+2*p,2)}, {V(t+4+2*p,2)} neg_lo:[1,0,0] neg_hi:[1,0,0]")
        for i in range(4):
            a(f"v_cvt_pk_bf16_f32 v{out+i}, v{t+i}, v{t+4+i}")

    def tagcheck(first, n):
        a(f"v_xor_b32 v{t}, v{TGV}, v{first}")
        a(f"v_xor_b32 v{t+1}, v{TGV+1}, v{first+1}")
        for r in range(2, n):
            a(f"v_bitop3_b32 v{t+(r&1)}, v{first+r}, v{TGV+(r&1)}, v{t+(r&1)} bitop3:0xbe")
        a(f"v_bitop3_b32 v{t}, v{t}, v{t+1}, v{TGV+2} bitop3:0xa8")
        a(f"v_cmp_ne_u32 vcc, 0, v{t}")

    def dma_blocks(blks):
        a(f"s_lshl_b32 s{T0}, s{blks[0]}, 10")
        a(f"v_lshl_add_u32 v248, v0, 4, s{T0}")
        a(f"s_add_u32 m0, s{T0}, {L_TAB}")
        for k in blks[1]:
            a(f"global_load_lds_dwordx4 v248, s[{TABS}:{TABS+1}] offset:{k*1024}")

    def rotseq(base, step, outs):
        for i, (re, im) in enumerate(outs):
            a(f"v_cos_f32 v{t+6}, v{base}")
            a(f"v_sin_f32 v{t+7}, v{base}")
            if i < len(outs) - 1:
                a(f"v_add_f32 v{base}, v{base}, v{step}")
            a(f"v_cvt_pk_bf16_f32 v{re}, v{t+6}, v{t+7}")
            a(f"v_cvt_pk_bf16_f32 v{im}, -v{t+7}, v{t+6}")

    def a1consts(name):
        a(f"v_lshrrev_b32 v{t}, 1, v{VN}")
        a(f"v_lshlrev_b32 v{t}, 8, v{t}")
        a(f"v_add_u32 v{t}, s{PRM}, v{t}")
        a(f"v_and_b32 v{t+1}, 1, v{VN}")
        a(f"v_lshlrev_b32 v{t+2}, 1, v{VQ}")
        a(f"v_mul_u32_u24 v{t+2}, v{t+2}, v{t}")
        a(f"v_cmp_eq_u32 vcc, 0, v{t+1}")
        for i in range(2):
            a(f"v_and_b32 v{t+3}, 2047, v{t+2}")
            if i == 0:
                a(f"v_add_u32 v{t+2}, v{t+2}, v{t}")
            a(f"v_cvt_f32_u32 v{t+3}, v{t+3}")
            a(f"v_mul_f32 v{t+3}, {fhex(1/2048)}, v{t+3}")
            a(f"v_cos_f32 v{t+4}, v{t+3}")
            a(f"v_sin_f32 v{t+5}, v{t+3}")
            a(f"v_mul_f32 v{t+4}, 0.5, v{t+4}")
            a(f"v_mul_f32 v{t+5}, 0.5, v{t+5}")
            a(f"v_cndmask_b32_e64 v{t+6}, -v{t+5}, v{t+4}, vcc")
            a(f"v_cndmask_b32 v{t+7}, v{t+4}, v{t+5}, vcc")
            a(f"v_cvt_pk_bf16_f32 v{A1R+2*i}, v{t+6}, v{t+7}")
            a(f"v_cvt_pk_bf16_f32 v{A1I+2*i}, -v{t+7}, v{t+6}")
            a(f"v_cndmask_b32 v{t+6}, v{t+5}, v{t+4}, vcc")
            a(f"v_cndmask_b32_e64 v{t+7}, -v{t+4}, v{t+5}, vcc")
            a(f"v_cvt_pk_bf16_f32 v{A1R+2*i+1}, v{t+6}, -v{t+7}")
            a(f"v_cvt_pk_bf16_f32 v{A1I+2*i+1}, -v{t+7}, -v{t+6}")
            a(f"s_and_b32 s{T0}, s{PRM}, 127")
            a(f"s_cbranch_scc1 {name}_a1{i}")
            a(f"v_add_f32 v{t+4}, v{t+4}, v{t+4}")
            a(f"v_add_f32 v{t+5}, v{t+5}, v{t+5}")
            a(f"v_cndmask_b32 v{t+6}, 0, v{t+4}, vcc")
            a(f"v_sub_f32 v{t+7}, v{t+4}, v{t+6}")
            a(f"v_cvt_pk_bf16_f32 v{t+4}, v{t+6}, v{t+7}")
            a(f"v_cndmask_b32 v{t+6}, 0, v{t+5}, vcc")
            a(f"v_sub_f32 v{t+7}, v{t+5}, v{t+6}")
            a(f"v_cvt_pk_bf16_f32 v{t+5}, -v{t+6}, -v{t+7}")
            a(f"s_cmp_eq_u32 s{PRM}, 0")
            a(f"s_cselect_b32 s{T0}, -1, 0")
            a(f"s_cselect_b32 s{T1}, 0, -1")
            a(f"v_and_b32 v{A1R+2*i}, s{T0}, v{t+4}")
            a(f"v_and_b32 v{A1I+2*i}, s{T0}, v{t+5}")
            a(f"v_and_b32 v{A1R+2*i+1}, s{T1}, v{t+4}")
            a(f"v_and_b32 v{A1I+2*i+1}, s{T1}, v{t+5}")
            a.label(f"{name}_a1{i}")

    def p2addr():
        a(f"v_lshlrev_b32 v5, 12, v{VQ}")
        a(f"v_lshl_add_u32 v5, v{VN}, 4, v5")
        a(f"v_lshrrev_b32 v{t}, 2, v{VN}")
        a(f"v_xor_b32 v{t}, v{t}, v{VQ}")
        a(f"v_and_b32 v{t}, 1, v{t}")
        a(f"v_bfe_u32 v{t+1}, v{VN}, 1, 1")
        a(f"v_lshl_or_b32 v{t}, v{t}, 1, v{t+1}")
        a(f"s_lshr_b32 s{T0}, s3, 1")
        a(f"v_xor_b32 v{t}, s{T0}, v{t}")
        a(f"v_lshlrev_b32 v{t}, 4, v{t}")
        a(f"v_and_b32 v{t+2}, 7, v{VN}")
        a(f"v_lshl_add_u32 v{t}, v{t+2}, 6, v{t}")
        a(f"v_lshl_add_u32 v{t}, v{VQ}, 12, v{t}")
        a(f"v_lshrrev_b32 v{t+2}, 3, v{VN}")
        a(f"v_lshl_add_u32 v{t}, v{t+2}, 2, v{t}")
        a(f"s_and_b32 s{T0}, s3, 1")
        a(f"s_lshl_b32 s{T0}, s{T0}, 3")
        a(f"s_add_u32 s{T0}, s{T0}, {L_X2}")
        a(f"v_add_u32 v6, s{T0}, v{t}")
        a(f"v_xor_b32 v7, 48, v6")
        a(f"v_bfe_u32 v{t}, v{VN}, 2, 1")
        a(f"v_xor_b32 v{t}, v{t}, v{t+2}")
        a(f"v_lshl_or_b32 v{t}, v{t}, 1, v{t+2}")
        a(f"v_xor_b32 v{t}, v{t}, v{t+1}")
        a(f"v_xor_b32 v{t}, v{t}, v{VQ}")
        a(f"v_lshlrev_b32 v{t}, 4, v{t}")
        a(f"v_lshl_add_u32 v62, v{VN}, 6, v{t}")

    def p2read_addr(t0):
        a(f"s_lshl_b32 s{T0}, s{t0}, 4")
        a(f"s_and_b32 s{T0}, s{T0}, 32")
        a(f"v_xor_b32 v62, s{T0}, v62")
        a(f"s_lshl_b32 s{T0}, s{t0}, 11")
        a(f"s_add_u32 s{T0}, s{T0}, {L_X2}")
        a(f"v_add_u32 v62, s{T0}, v62")

    def rowoff():
        a(f"v_lshlrev_b32 v4, 5, v{VN}")
        a(f"v_and_b32 v{t}, 1, v{VQ}")
        a(f"v_lshl_add_u32 v4, v{t}, 9, v4")
        a(f"v_lshrrev_b32 v{t}, 1, v{VQ}")
        a(f"v_lshl_add_u32 v4, v{t}, 4, v4")

    def p_issue():
        for i in range(2):
            a(f"buffer_load_dwordx4 {V(8+4*i,4)}, v5, {R4(R_WS)}, s14 offen offset:{2048*i} sc1")

    def c1(name):
        a(f"s_branch {name}_pw")
        a.label(f"{name}_pl")
        p_issue()
        a.label(f"{name}_pw")
        a("s_waitcnt vmcnt(0)")
        a("v_swap_b32 v10, v12")
        a("v_swap_b32 v11, v13")
        mf = []
        for c in range(2):
            mf.append(f"{MF} {V(D1+8*c,4)}, {V(A1R,4)}, {V(8+4*c,4)}, 0")
            mf.append(f"{MF} {V(D1+8*c+4,4)}, {V(A1I,4)}, {V(8+4*c,4)}, 0")
        weave(cap(tagcheck, 8, 8), mf, 2, 2)
        retry(f"{name}_pl")
        stamp(6)
        for c in range(2):
            for i in range(4):
                a(f"v_cvt_pk_bf16_f32 v{16+4*c+i}, v{D1+8*c+i}, v{D1+8*c+4+i}")
                if i & 1:
                    a(f"ds_write2st64_b32 v{6+c}, v{16+4*c+i-1}, v{16+4*c+i} offset0:{4*(i-1)+2*c} offset1:{4*i+2*c}")

    a("s_cmp_ge_u32 s2, 256")
    a("s_cbranch_scc1 L_end")
    stamp(0)
    a(f"s_load_dwordx2 s[4:5], s[0:1], {KA_X}")
    a(f"s_load_dwordx16 s[16:31], s[0:1], {KA_WR}")
    a(f"s_getpc_b64 s[{TABS}:{TABS+1}]")
    a.label("L_pc")
    a("v_lshrrev_b32 v1, 6, v0")
    a(f"s_lshr_b32 s{KK}, s2, 3")
    if o.cpf:
        a(f"v_lshl_add_u32 v4, v0, 5, s{KK}")
        a("v_lshlrev_b32 v4, 7, v4")
        a(f"v_cmp_gt_u32 vcc, L_tabend - L_pc, v4")
        a("s_and_saveexec_b64 s[12:13], vcc")
        a("s_cbranch_execz L_nocpf")
        a(f"global_load_dword v249, v4, s[{TABS}:{TABS+1}]")
        a.label("L_nocpf")
        a("s_mov_b64 exec, s[12:13]")
    a("v_and_b32 v0, 63, v0")
    a("v_readfirstlane_b32 s3, v1")
    a(f"v_and_b32 v{VN}, 15, v0")
    a(f"v_lshrrev_b32 v{VQ}, 4, v0")
    a(f"v_lshlrev_b32 v{KA}, 4, v0")
    a(f"v_lshlrev_b32 v246, 3, v0")
    a(f"s_add_u32 s{TABS}, s{TABS}, L_tab - L_pc")
    a(f"s_addc_u32 s{TABS+1}, s{TABS+1}, 0")
    a(f"s_and_b32 s{XC}, s2, 7")
    a(f"s_mov_b32 s{SPIN}, 400000")
    a(f"s_cmp_lt_u32 s{KK}, 16")
    a("s_cbranch_scc1 L_low")

    A2, A2X, SF, DS, XY, OUT = 112, 128, 52, 64, 96, 80

    def s2consts(nm, special):
        a(f"s_xor_b32 s{WSEL}, s3, 4")
        a(f"v_lshl_add_u32 v{t}, v{VN}, 4, s{WSEL}")
        if special:
            a(f"s_cmp_eq_u32 s{WSEL}, 0")
            a(f"s_cselect_b32 s{T0}, 120, 0")
            a(f"v_subrev_u32 v{t+2}, s{T0}, v{t}")
            a(f"v_cmp_gt_u32 vcc, 8, v{VN}")
            a(f"v_cndmask_b32 v{t}, v{t+2}, v{t}, vcc")
        a(f"v_lshlrev_b32 v{t+2}, 2, v{VQ}")
        a(f"v_cvt_f32_u32 v{t+2}, v{t+2}")
        a(f"v_cvt_f32_u32 v{t}, v{t}")
        a(f"v_mul_f32 v{t}, {fhex(1/256)}, v{t}")
        a(f"v_mul_f32 v{t+3}, v{t+2}, v{t}")
        rotseq(t + 3, t, [(A2 + i, A2 + 4 + i) for i in range(4)])
        a(f"v_mov_b32 v{t}, 0x80000000")
        a(f"v_mov_b32 v{t+1}, 0x8000")
        for i in range(4):
            a(f"v_xor_b32 v{A2+8+i}, v{t}, v{A2+i}")
            a(f"v_xor_b32 v{A2+12+i}, v{t+1}, v{A2+4+i}")
        if special:
            a(f"s_cmp_lg_u32 s{WSEL}, 0")
            a(f"s_cbranch_scc1 {nm}_e")
            a("s_mov_b32 exec_lo, 0x10001")
            a("s_mov_b32 exec_hi, 0x10001")
            for i in (1, 3):
                a(f"v_mov_b32 v{A2+8+i}, 0xbf80")
                a(f"v_mov_b32 v{A2+12+i}, 0xbf800000")
            a("s_mov_b64 exec, -1")
            for k in range(8):
                a(f"v_cndmask_b32_e64 v{A2X+k}, v{A2+k}, 0, vcc")
                a(f"v_cndmask_b32 v{A2+k}, 0, v{A2+k}, vcc")
                a(f"v_cndmask_b32 v{A2X+8+k}, 0, v{A2+8+k}, vcc")
                a(f"v_cndmask_b32_e64 v{A2+8+k}, v{A2+8+k}, 0, vcc")
            a.label(f"{nm}_e")
        a(f"s_sub_u32 s{T0}, 16, s{WSEL}")
        a(f"s_cmp_eq_u32 s{WSEL}, 0")
        a(f"s_cselect_b32 s{T0}, 8, s{T0}")
        a(f"v_bfe_u32 v{t}, v{VN}, 2, 1")
        a(f"v_xor_b32 v{t}, v{t}, v{VN}")
        a(f"v_lshrrev_b32 v{t+1}, 3, v{VN}")
        a(f"v_mul_u32_u24 v{t+2}, 3, v{t+1}")
        a(f"v_xor_b32 v{t+2}, v{t+2}, v{VQ}")
        a(f"v_lshlrev_b32 v{t+2}, 4, v{t+2}")
        a(f"v_lshl_add_u32 v{t}, v{t}, 6, v{t+2}")
        for k, al in enumerate((WSEL, T0)):
            a(f"s_lshl_b32 s{T1}, s{al}, 3")
            a(f"s_and_b32 s{T1}, s{T1}, 32")
            a(f"s_lshl_b32 s{T2}, s{al}, 10")
            a(f"s_or_b32 s{T1}, s{T1}, s{T2}")
            a(f"v_xor_b32 v{60+k}, s{T1}, v{t}")
        a(f"v_lshlrev_b32 v63, 16, v{VQ}")
        a(f"v_lshl_add_u32 v63, v{t+1}, 14, v63")
        a(f"v_and_b32 v{t}, 7, v{VN}")
        a(f"v_lshl_add_u32 v63, v{t}, 4, v63")
        a(f"s_lshl_b32 s6, s{WSEL}, 18")
        a(f"s_lshl_b32 s{T1}, s{XC}, 11")
        a(f"s_add_u32 s6, s6, s{T1}")
        a(f"s_lshl_b32 s{T1}, s{KK}, 7")
        a(f"s_add_u32 s6, s6, s{T1}")
        a(f"s_add_u32 s6, s6, {WS_P:#x}")
        a(f"s_add_u32 s7, s6, 32768")
        rowoff()
        a(f"s_lshl_b32 s{T0}, s3, 8")
        a(f"s_add_u32 s{ROWA}, s{T0}, s{PRM}")
        a(f"s_sub_u32 s{ROWB}, 2048, s{ROWA}")
        a(f"s_and_b32 s{ROWB}, s{ROWB}, 2047")
        a.srd(R_B, 24, 1024)

    def own_rows():
        a(f"s_lshl_b32 s12, s{ROWA}, 10")
        a(f"s_lshl_b32 s13, s{ROWB}, 10")
        for rho in range(2):
            a(f"buffer_load_dwordx4 {V(XR2+4*rho,4)}, v4, {R4(R_X)}, s{12+rho} offen")
        a(f"buffer_load_dwordx4 {V(GW2,4)}, v4, {R4(R_B)}, 0 offen")

    def p2prep(nm, addr=True):
        a1consts(nm)
        if addr:
            p2addr()
            p2read_addr(3)
        a(f"s_lshl_b32 s14, s{SLOT}, 14")
        a(f"s_lshl_b32 s{T0}, s3, 8")
        a(f"s_add_u32 s14, s14, s{T0}")
        a(f"s_add_u32 s14, s14, {WS_P:#x}")
        a.srd(R_OUT, 26, 2 << 20)

    a(f"s_sub_u32 s{KK}, s{KK}, 16")
    a(f"s_lshl4_add_u32 s{SLOT}, s{XC}, s{KK}")
    a(f"s_lshl4_add_u32 s{PRM}, s{KK}, s{XC}")
    a(f"s_sub_u32 s{T2}, s{PRM}, 120")
    a(f"s_cmp_lt_u32 s{SLOT}, 8")
    a(f"s_cselect_b32 s{T2}, s{PRM}, s{T2}")
    a(f"s_cmp_lt_u32 s{SLOT}, 16")
    a(f"s_cselect_b32 s{PRM}, s{T2}, s{PRM}")
    a.label("L_a")
    a("s_cmp_ge_u32 s3, 4")
    a("s_cbranch_scc1 L_p1w")
    RW, WR, DT, RID = 8, 24, 32, 36
    a(f"s_lshl2_add_u32 s{T0}, s{KK}, s3")
    a(f"s_lshl_b32 s{T0}, s{T0}, 5")
    a(f"s_add_u32 s{T0}, s{T0}, s{XC}")
    a(f"s_lshl_b32 s12, s{T0}, 10")
    a(f"s_cmp_eq_u32 s{PRM}, 128")
    a(f"s_cselect_b32 s12, 0x40000000, s12")
    for k in range(1, 4):
        a(f"s_add_u32 s{12+k}, s12, {8192*k}")
    srds()
    for k in range(4):
        a(f"buffer_load_dwordx4 {V(RW+4*k,4)}, v{KA}, {R4(R_X)}, s{12+k} offen")
    a.srd(R_A, 16, 1024)
    a(f"buffer_load_dwordx4 {V(WR,4)}, v{KA}, {R4(R_A)}, 0 offen")
    a(f"v_and_b32 v{RID}, 1, v{VQ}")
    a(f"v_lshrrev_b32 v108, 1, v{VQ}")
    a(f"v_lshl_add_u32 v{RID}, v{RID}, 1, v108")
    a(f"v_lshl_add_u32 v{RID}, v{RID}, 3, s{T0}")
    a(f"v_mov_b32 v108, {L_KEY}")
    a("v_mov_b32 v109, 1")
    a(f"s_mov_b32 s{RS}, 0xfffff800")
    a(f"s_lshl3_add_u32 s15, s{KK}, s{XC}")
    a(f"s_lshl_b32 s15, s15, 3")
    a(f"s_add_u32 s15, s15, {WS_KEY:#x}")
    a("v_lshlrev_b32 v37, 11, v0")
    if o.nob0:
        a("s_barrier")
    if o.rpre:
        s2consts("L_sr", False)
    dstamp(9, True)
    a(f"s_waitcnt vmcnt(1)")
    stamp(2)
    if o.nob0:
        a("s_mov_b64 exec, 1")
        a("ds_add_u32 v108, v109 offset:12")
        a("s_mov_b64 exec, -1")
    else:
        a("s_barrier")
    a(f"s_waitcnt vmcnt(0)")
    stamp(3)
    for k in range(4):
        for r in range(4):
            a(f"v_dot2_f32_bf16 v{DT+r}, v{RW+4*r+k}, v{WR+k}, {('v%d' % (DT+r)) if k else 0}")
    tag_ready()
    fold4(DT, DT + 1, DT + 2, DT + 3)
    a(f"v_mov_b32 v39, s{TAG}")
    rowsum(DT)
    a(f"v_ashrrev_i32 v{DT+1}, 31, v{DT}")
    a(f"v_or_b32 v{DT+1}, 0x80000000, v{DT+1}")
    a(f"v_xor_b32 v{DT+1}, v{DT+1}, v{DT}")
    a(f"v_and_or_b32 v{DT+1}, v{DT+1}, s{RS}, v{RID}")
    a("s_mov_b32 exec_lo, 0x10001")
    a("s_mov_b32 exec_hi, 0x10001")
    if o.safe == 3:
        a(f"ds_max_u32 v108, v{DT+1}")
        a("s_mov_b64 exec, -1")
        a("s_waitcnt lgkmcnt(0)")
        a("s_barrier")
        a("s_cmp_lg_u32 s3, 0")
        a("s_cbranch_scc1 L_b1a")
        a("ds_read_b32 v38, v108")
        a("s_waitcnt lgkmcnt(0)")
    else:
        a(f"ds_max_u32 v108, v{DT+1}")
        a("s_mov_b64 exec, 1")
        a("s_waitcnt lgkmcnt(0)")
        a(f"ds_add_rtn_u32 v{DT+2}, v108, v109 offset:4")
        a("s_mov_b64 exec, -1")
        if o.safe < 2:
            a("ds_read_b32 v38, v108")
        a("s_waitcnt lgkmcnt(0)")
        a(f"v_readfirstlane_b32 s{T1}, v{DT+2}")
        a(f"s_cmp_lg_u32 s{T1}, 3")
        a("s_cbranch_scc1 L_b1a")
        if o.safe == 2:
            a("ds_read_b32 v38, v108")
            a("s_waitcnt lgkmcnt(0)")
    a(f"s_cmp_eq_u32 s{PRM}, 128")
    a("s_cbranch_scc1 L_b1a")
    if o.kr < 64:
        a(f"s_mov_b64 exec, {(1 << o.kr) - 1:#x}")
    a(f"buffer_store_dwordx2 v[38:39], v37, {R4(R_WS)}, s15 offen sc1")
    a("s_mov_b64 exec, -1")
    a.label("L_b1a")
    dstamp(10, True)
    a(f"s_lshl_b32 s{T3}, s3, 1")
    dma_blocks((T3, (0, 1)))
    a(f"s_and_b32 s{T3}, s3, 1")
    a(f"s_add_u32 s{T3}, s{T3}, 8")
    dma_blocks((T3, (0,)))
    if not o.rpre:
        s2consts("L_sr", False)
    own_rows()
    tagv(TGV)
    a("s_branch L_b1")

    LD, FR, F0R, F0I, WA, D = 8, 24, 40, 44, 48, 64
    a.label("L_p1w")
    if o.prio & 1:
        a("s_setprio 2")
    a(f"s_sub_u32 s{RHO}, s3, 4")
    if o.nob0:
        a(f"v_mov_b32 v110, {L_KEY}")
        for r in range(4):
            a(f"v_mov_b32 v{t+r}, 0")
        a(f"ds_write_b128 v110, {V(t,4)}")
        a("s_waitcnt lgkmcnt(0)")
        a("s_barrier")
    if o.apf:
        a(f"s_lshl_b32 s{T0}, s{XC}, 2")
        a(f"s_mul_i32 s{T1}, s{XC}, 3")
        a(f"s_add_u32 s{T1}, s{T1}, 4")
        a(f"s_cmp_lt_u32 s{XC}, 4")
        a(f"s_cselect_b32 s{T0}, s{T0}, s{T1}")
        a(f"s_cselect_b32 s{T1}, 16, 12")
        a(f"s_cmp_ge_u32 s{KK}, s{T1}")
        a(f"s_cselect_b32 s{T3}, 8, s{RHO}")
        a(f"s_lshr_b32 s{T1}, s{KK}, 2")
        a(f"s_add_u32 s{T0}, s{T0}, s{T1}")
        a(f"s_lshl_b32 s6, s{T0}, 7")
        a(f"s_and_b32 s{T1}, s{KK}, 3")
        a(f"s_mul_i32 s{T1}, s{T1}, {o.apf}")
        a(f"s_add_u32 s{T1}, s{T1}, s{RHO}")
        a(f"s_lshl_b32 s{T1}, s{T1}, 5")
        a(f"s_add_u32 s{T1}, s{T1}, {512 - 128*o.apf}")
        a(f"v_lshrrev_b32 v{t+4}, 1, v0")
        a(f"v_add_u32 v{t+4}, s{T1}, v{t+4}")
        a(f"v_mul_u32_u24 v{t+4}, 3584, v{t+4}")
        a(f"v_and_b32 v{t+5}, 1, v0")
        a(f"v_lshl_add_u32 v{t+4}, v{t+5}, 6, v{t+4}")
        a("s_waitcnt lgkmcnt(0)")
        a.srd(R_C, 18, 512 * 3584)
        a(f"s_cmp_ge_u32 s{T3}, {o.apf}")
        a("s_cbranch_scc1 L_noapf")
        a(f"buffer_load_dword v255, v{t+4}, {R4(R_C)}, s6 offen")
        a.label("L_noapf")
    srds(False)
    if o.tlb & 1:
        a("s_cmp_lg_u32 s3, 7")
        a("s_cbranch_scc1 L_nomt")
        mtouch([(16, 0), (24, 0), (26, 0), (30, 0x3000), (30, WS_P + 0x3000)])
        a.label("L_nomt")
    a(f"v_lshlrev_b32 v107, 19, v{VQ}")
    a(f"v_bfe_u32 v108, v0, 2, 2")
    a(f"v_lshl_add_u32 v107, v108, 13, v107")
    a(f"v_and_b32 v109, 3, v0")
    a(f"v_lshl_add_u32 v107, v109, 4, v107")
    if not o.nob0:
        a(f"v_mov_b32 v{t}, {L_KEY}")
        a(f"v_mov_b32 v{t+2}, 0")
        a(f"v_mov_b32 v{t+3}, 0")
        a(f"ds_write_b64 v{t}, {V(t+2,2)}")
    a(f"v_lshlrev_b32 v{t}, 2, v{VQ}")
    a(f"v_cvt_f32_u32 v{t}, v{t}")
    a(f"v_cvt_f32_u32 v{t+1}, v{VN}")
    a(f"v_mul_f32 v{t+1}, {fhex(1/16)}, v{t+1}")
    a(f"v_mul_f32 v{t}, v{t}, v{t+1}")
    rotseq(t, t + 1, [(F0R + i, F0I + i) for i in range(4)])
    a(f"v_lshrrev_b32 v{t}, 1, v109")
    a(f"v_mul_u32_u24 v{t}, 3, v{t}")
    a(f"v_lshlrev_b32 v{t+1}, 1, v{VQ}")
    a(f"v_and_b32 v{t+1}, 2, v{t+1}")
    a(f"v_xor_b32 v{t}, v{t}, v{t+1}")
    a(f"v_xor_b32 v{t}, s{RHO}, v{t}")
    a(f"v_lshl_add_u32 v{t}, v{t}, 2, v108")
    a(f"v_lshlrev_b32 v{t}, 2, v{t}")
    a(f"v_lshl_add_u32 v{t}, v109, 8, v{t}")
    a(f"v_lshl_add_u32 v{t}, v{VQ}, 12, v{t}")
    a(f"v_and_b32 v{t+1}, 1, v109")
    a(f"v_lshl_add_u32 v{WA}, v{t+1}, 6, v{t}")
    a(f"v_xor_b32 v{WA+1}, 64, v{WA}")
    a(f"v_add_u32 v{WA+2}, 128, v{WA}")
    a(f"v_add_u32 v{WA+3}, 128, v{WA+1}")
    s2consts("L_sp", True)
    a(f"s_lshl_b32 s12, s{RHO}, 15")
    a(f"s_lshl_b32 s{T1}, s{XC}, 10")
    a(f"s_add_u32 s12, s12, s{T1}")
    a(f"s_lshl_b32 s{T1}, s{KK}, 6")
    a(f"s_add_u32 s12, s12, s{T1}")
    a(f"s_cmp_eq_u32 s{PRM}, 128")
    a(f"s_cselect_b32 s12, 0x40000000, s12")
    for i in range(1, 4):
        a(f"s_add_u32 s{12+i}, s12, {i*131072}")
    a("s_waitcnt lgkmcnt(0)")
    stamp(2)
    if o.prio & 1:
        a("s_setprio 0")
    if o.nob0:
        a.label("L_tw")
        a("ds_read_b32 v111, v110 offset:12")
        a("s_waitcnt lgkmcnt(0)")
        a(f"v_cmp_gt_u32 vcc, 4, v111")
        retry("L_tw", 1)
    else:
        a("s_barrier")
    for i in range(4):
        a(f"buffer_load_dwordx4 {V(LD+4*i,4)}, v107, {R4(R_X)}, s{12+i} offen")
    a(f"s_load_dword s{TAG}, s[30:31], {WS_EPOCH}")
    own_rows()
    a(f"s_lshr_b32 s15, s{SLOT}, 2")
    a(f"s_add_u32 s15, s15, 32")
    a(f"s_and_b32 s15, s15, {o.kr - 1}")
    a(f"s_lshl_b32 s15, s15, 11")
    a(f"s_add_u32 s15, s15, {WS_KEY:#x}")
    tag_ready()
    tagv(TGV)
    for r in range(4):
        a(f"v_mov_b32 v{184+r}, 0")
    dstamp(10, True)
    if o.prio & 2:
        a("s_setprio 2")
    if o.safe == 3:
        a("s_barrier")
    a(f"s_waitcnt vmcnt(3)")
    stamp(3)
    for c in range(4):
        for i in range(2):
            b = 2 * (c >> 1)
            a(f"v_pk_mov_b32 {V(FR+4*c+2*i,2)}, {V(LD+8*i+b,2)}, {V(LD+8*i+4+b,2)} op_sel:[{c&1},{c&1}]")
        if c:
            a(f"{MF} {V(D+8*(c-1),4)}, {V(F0R,4)}, {V(FR+4*(c-1),4)}, 0")
            a(f"{MF} {V(D+8*(c-1)+4,4)}, {V(F0I,4)}, {V(FR+4*(c-1),4)}, 0")

    def s1out(c):
        for i in range(4):
            a(f"v_cvt_pk_bf16_f32 v{LD+4*c+i}, v{D+8*c+i}, v{D+8*c+4+i}")
            if i & 1:
                a(f"ds_write2st64_b32 v{WA+c}, v{LD+4*c+i-1}, v{LD+4*c+i} offset0:{4*(i-1)} offset1:{4*i}")
    weave(cap(s1out, 0), [f"{MF} {V(D+24,4)}, {V(F0R,4)}, {V(FR+12,4)}, 0", f"{MF} {V(D+28,4)}, {V(F0I,4)}, {V(FR+12,4)}, 0"], 2)
    for c in range(1, 4):
        s1out(c)
    a(f"s_waitcnt lgkmcnt(0)")
    a.label("L_b1")
    stamp(4)
    a("s_barrier")
    def kpoll():
        l = a.L("kq")
        a("s_cmp_lg_u32 s3, 7")
        a(f"s_cbranch_scc1 {l}")
        a(f"buffer_load_dwordx4 v{KA}, {R4(R_WS)}, s15 offen sc1 lds")
        a.label(l)
    a(f"s_cmp_eq_u32 s{PRM}, 128")
    a("s_cbranch_scc1 L_ack128")
    for al in range(2):
        a(f"ds_read_b128 {V(SF+4*al,4)}, v{60+al}")
    KB = 184
    if o.kat:
        a("s_cmp_lg_u32 s3, 7")
        a("s_cbranch_scc1 L_ka")
        a(f"buffer_atomic_or_x2 {V(KB,2)}, v246, {R4(R_WS)}, s15 offen sc0 sc1")
        a(f"buffer_atomic_or_x2 {V(KB+2,2)}, v246, {R4(R_WS)}, s15 offen offset:512 sc0 sc1")
        a.label("L_ka")
    a("s_mov_b32 vcc_lo, 0x00ff00ff")
    a("s_mov_b32 vcc_hi, 0x00ff00ff")
    for al in range(2):
        lg(1 - al)
        a(f"{MF} {V(DS+8*al,4)}, {V(A2+8*al,4)}, {V(SF+4*al,4)}, 0")
        a(f"{MF} {V(DS+8*al+4,4)}, {V(A2+8*al+4,4)}, {V(SF+4*al,4)}, 0")
    a(f"s_cmp_lg_u32 s{WSEL}, 0")
    a("s_cbranch_scc1 L_s2b")
    for al in range(2):
        a(f"{MF} {V(DS+8*al,4)}, {V(A2X+8*al,4)}, {V(SF+4*(1-al),4)}, {V(DS+8*al,4)}")
        a(f"{MF} {V(DS+8*al+4,4)}, {V(A2X+8*al+4,4)}, {V(SF+4*(1-al),4)}, {V(DS+8*al+4,4)}")
    a.label("L_s2b")
    for p in range(2):
        for al in range(2):
            for i in (2 * p, 2 * p + 1):
                a(f"v_cvt_pk_bf16_f32 v{XY+4*al+i}, v{DS+8*al+i}, v{DS+8*al+4+i}")
        for al in range(2):
            for i in (2 * p, 2 * p + 1):
                a(f"v_bitop3_b32 v{XY+4*al+i}, v{TGV+2}, v{TGV+al}, v{XY+4*al+i} bitop3:0xca")
        lo = [f"v_cndmask_b32_dpp v{OUT+4*p+al}, v{XY+4*al+2*p+1}, v{XY+4*al+2*p}, vcc row_ror:8 row_mask:0xf bank_mask:0xf" for al in range(2)]
        hi = [f"v_cndmask_b32_dpp v{OUT+4*p+2+al}, v{XY+4*al+2*p}, v{XY+4*al+2*p+1}, vcc row_ror:8 row_mask:0xf bank_mask:0xf" for al in range(2)]
        for l in (lo if p == 0 else hi):
            a(l)
        a("s_not_b64 vcc, vcc")
        for l in (hi if p == 0 else lo):
            a(l)
        a(f"buffer_store_dwordx4 {V(OUT+4*p,4)}, v63, {R4(R_WS)}, s{6+p} offen sc1")
    a.label("L_nos2")
    stamp(5)
    p2prep("L_ac")
    a("s_waitcnt vmcnt(2)")
    a(f"s_cmp_lg_u32 s{PRM}, 128")
    a("s_cbranch_scc1 L_a7")
    a("s_waitcnt vmcnt(0)")
    a.label("L_a7")
    for k in range(4):
        for rho in range(2):
            a(f"v_dot2_f32_bf16 v{110+rho}, v{XR2+4*rho+k}, v{GW2+k}, {('v%d' % (110+rho)) if k else 0}")
    for rho in range(2):
        for k in range(2):
            a(f"v_permlane16_swap_b32 v{XR2+4*rho+k}, v{XR2+4*rho+2+k}")
    a("v_permlane32_swap_b32 v110, v111")
    a("v_add_f32 v110, v110, v111")
    a("v_mov_b32 v111, v110")
    a("v_permlane16_swap_b32 v110, v111")
    a("v_add_f32 v110, v110, v111")
    xg = []
    for rho in range(2):
        for k in range(4):
            x = XR2 + 4 * rho + k
            d = XG + 8 * rho + 2 * k
            xg.append(f"v_lshlrev_b32 v{d}, 16, v{x}")
            xg.append(f"v_and_b32 v{d+1}, 0xffff0000, v{x}")
    for l in cap(rowsum, 110) + cap(sigmoid, 110, 110):
        a(l)
        for k in range(2):
            if xg:
                a(xg.pop(0))
    a("v_mov_b32 v111, v110")
    a("v_permlane32_swap_b32 v110, v111")
    a(f"v_sub_f32 v{t}, 1.0, v110")
    a(f"v_sub_f32 v{t+1}, 1.0, v111")
    for rho in range(2):
        for k in range(4):
            d = XG + 8 * rho + 2 * k
            a(f"v_pk_mul_f32 {V(d,2)}, {V(d,2)}, {V(t,2)} op_sel:[0,{rho}] op_sel_hi:[1,{rho}]")
    a(f"v_mov_b32 v109, {L_SEL}")
    a("s_cmp_lg_u32 s3, 7")
    a("s_cbranch_scc1 L_a5")
    if o.kat:
        a(f"s_cmp_eq_u32 s{PRM}, 128")
        a("s_cbranch_scc1 L_kd0")
        a("s_waitcnt vmcnt(2)")
        a(f"v_xor_b32 v{PB+1}, s{TAG}, v{KB+1}")
        a(f"v_bitop3_b32 v{PB+1}, v{KB+3}, s{TAG}, v{PB+1} bitop3:0xbe")
        a(f"v_cmp_ne_u32 vcc, 0, v{PB+1}")
        a(f"v_max_u32 v{PB}, v{KB}, v{KB+2}")
        a("s_cbranch_vccz L_kd_ok")
        a.label("L_kd0")
    if o.kack:
        a(f"s_waitcnt vmcnt({o.kack - 1})")
    a.label("L_kd")
    a(f"buffer_load_dwordx4 {V(PB,4)}, v{KA}, {R4(R_WS)}, s15 offen sc1")
    a("s_waitcnt vmcnt(0)")
    a(f"v_xor_b32 v{PB+1}, s{TAG}, v{PB+1}")
    a(f"v_bitop3_b32 v{PB+1}, v{PB+3}, s{TAG}, v{PB+1} bitop3:0xbe")
    a(f"v_cmp_ne_u32 vcc, 0, v{PB+1}")
    a(f"v_max_u32 v{PB}, v{PB}, v{PB+2}")
    retry("L_kd", o.kdma)
    keys_max(PB)
    a(f"s_and_b32 s{SEL}, s{SEL}, 2047")
    a(f"v_mov_b32 v108, s{SEL}")
    a("ds_write_b32 v109, v108")
    a("s_waitcnt lgkmcnt(0)")
    a.label("L_a5")
    dstamp(10, False)
    a("s_barrier")
    dstamp(11, False)
    p_issue()
    a("ds_read_b32 v109, v109")
    for k in range(4):
        a(f"ds_read_b128 {V(TW+16+4*k,4)}, v{KA} offset:{L_TAB+2048+1024*k}")
    a(f"ds_read_b128 {V(FRE,4)}, v{KA} offset:{L_TAB}")
    a(f"ds_read_b128 {V(FIM,4)}, v{KA} offset:{L_TAB+1024}")
    for k in range(4):
        a(f"ds_read_b128 {V(B3+4*k,4)}, v{KA} offset:{L_TAB+6144+1024*k}")
    a("s_waitcnt lgkmcnt(0)")
    a(f"v_readfirstlane_b32 s{SEL}, v109")
    for k in range(8):
        a(f"v_pk_mul_f32 {V(TW+2*k,2)}, {V(TW+16+2*k,2)}, v[110:111] op_sel:[0,0] op_sel_hi:[1,0]")
    for k in range(8):
        a(f"v_pk_mul_f32 {V(TW+16+2*k,2)}, {V(TW+16+2*k,2)}, v[110:111] op_sel:[0,1] op_sel_hi:[1,1]")
    a(f"v_mov_b32 v{t}, 0x80000000")
    for i in range(4):
        a(f"v_xor_b32 v{FRC+i}, v{t}, v{FRE+i}")
        a(f"v_xor_b32 v{FIC+i}, v{t}, v{FIM+i}")
    dstamp(9, False)
    c1("L_a")
    a("s_waitcnt lgkmcnt(0)")
    a("s_barrier")
    stamp(7)
    for h in range(2):
        a(f"ds_read_b128 {V(16+4*h,4)}, v62 offset:{h*1024}")

    def c2(rho, h):
        k = 2 * rho + h
        return [f"{MF} {V(D2+8*k,4)}, {V(16+4*h,4)}, {V(FRC if rho else FRE,4)}, 0",
                f"{MF} {V(D2+8*k+4,4)}, {V(16+4*h,4)}, {V(FIC if rho else FIM,4)}, 0"]

    def tw(rho, h):
        k = 2 * rho + h
        return cap(twpk, D2 + 8 * k, TW + 8 * k, TW + 8 * k + 4, GF + 4 * k)

    def c3(rho, h):
        r = []
        for tau in range(2):
            acc = V(D3 + 8 * rho + 4 * tau, 4)
            cin = acc if h else V(XG + 8 * rho + 4 * tau, 4)
            r.append(f"{MF} {acc}, {V(GF+4*(2*rho+h),4)}, {V(B3+8*h+4*tau,4)}, {cin}")
        return r

    def outcv(rho):
        for k in range(4):
            a(f"v_cvt_pk_bf16_f32 v{8+4*rho+k}, v{D3+8*rho+2*k}, v{D3+8*rho+2*k+1}")
        for k in range(2):
            a(f"v_permlane16_swap_b32 v{8+4*rho+k}, v{8+4*rho+2+k}")

    def outst(rho):
        l = a.L("sk")
        a(f"s_cmp_eq_u32 s{ROWA+rho}, s{SEL}")
        a(f"s_cbranch_scc1 {l}")
        if rho:
            a(f"s_and_b32 s{T0}, s{PRM}, 127")
            a(f"s_cbranch_scc0 {l}")
        a(f"buffer_store_dwordx4 {V(8+4*rho,4)}, v4, {R4(R_OUT)}, s{12+rho} offen {['', 'sc1', 'nt', 'sc1 nt', 'sc0 sc1'][o.osc if o.osc < 10 else (1 if rho else 0)]}")
        a.label(l)

    def tw2(k):
        r = cap(twpk, D2 + 8 * k, TW + 8 * k, TW + 8 * k + 4, GF + 4 * k, t if k % 2 == 0 else 24)
        return r[:8], r[8:]

    def mix(mf, cv):
        cv = list(cv)
        for m in mf:
            a(m)
            for l in cv[:2]:
                a(l)
            cv = cv[2:]
        for l in cv:
            a(l)
    lg(1)
    for l in c2(0, 0):
        a(l)
    lg(0)
    for l in c2(0, 1):
        a(l)
    for k, mf in enumerate((c2(1, 0), c2(1, 1), c3(0, 0), c3(0, 1))):
        pk, cv = tw2(k)
        for l in pk:
            a(l)
        mix(mf, cv)
    for l in c3(1, 0):
        a(l)
    mix(c3(1, 1), cap(outcv, 0))
    outst(0)
    outcv(1)
    outst(1)
    stamp(8)
    fini(12)

    a.label("L_ack128")
    a("s_mov_b64 exec, 1")
    a(f"v_mov_b32 v{t}, {WS_ACK:#x}")
    a(f"v_mov_b32 v{t+1}, s{TAG}")
    a(f"buffer_store_dword v{t+1}, v{t}, {R4(R_WS)}, 0 offen sc1")
    a("s_mov_b64 exec, -1")
    a("s_branch L_nos2")

    a.label("L_low")
    a(f"s_lshl_b32 s{T0}, s{XC}, 3")
    a(f"s_mul_i32 s{T2}, s{XC}, 6")
    a(f"s_add_u32 s{T2}, s{T2}, 8")
    a(f"s_cmp_lt_u32 s{XC}, 4")
    a(f"s_cselect_b32 s{T0}, s{T0}, s{T2}")
    a(f"s_cselect_b32 s{T1}, 8, 6")
    a(f"s_and_b32 s{T2}, s{KK}, 7")
    a(f"s_add_u32 s{PRM}, s{T0}, s{T2}")
    a(f"s_cmp_ge_u32 s{T2}, s{T1}")
    a("s_cbranch_scc1 L_misc")
    a(f"s_cmp_lt_u32 s{KK}, 8")
    a("s_cbranch_scc1 L_f")

    a("v_lshrrev_b32 v4, 1, v0")
    a("v_and_b32 v5, 1, v0")
    a("v_lshlrev_b32 v5, 6, v5")
    a(f"s_lshl_b32 s{T1}, s3, 5")
    a(f"v_add_u32 v4, s{T1}, v4")
    a("v_lshl_add_u32 v6, v4, 7, v5")
    a("v_mul_u32_u24 v4, 3584, v4")
    a("v_add_u32 v4, v4, v5")
    a(f"s_lshr_b32 s{T0}, s{PRM}, 1")
    a(f"s_lshl_b32 s{T0}, s{T0}, 7")
    a(f"s_bitcmp1_b32 s{PRM}, 0")
    a(f"s_cselect_b32 s{T1}, {256*3584}, 0")
    a(f"s_cselect_b32 s{T2}, {(4 - o.apf) * 64 * 3584}, 0")
    a(f"s_add_u32 s{T1}, s{T1}, s{T0}")
    a(f"s_add_u32 s{T2}, s{T2}, s{T0}")
    a("s_waitcnt lgkmcnt(0)")
    a.srd(R_A, 18, 512 * 3584)
    a.srd(R_B, 20, 512 * 3584)
    if o.hnat == 1:
        mtouch([(20, 0), (18, 0)])
        a("s_waitcnt vmcnt(0)")
    elif o.hnat:
        for k in range(o.hnat - 1):
            a(f"s_load_dword s{TAG}, s[{18 + 2*(k&1)}:{19 + 2*(k&1)}], 0")
            a("s_waitcnt lgkmcnt(0)")
    if o.hdelay:
        a(f"s_sleep {o.hdelay}")
    a(f"buffer_load_dword v8, v4, {R4(R_B)}, s{T1} offen")
    a.srd(R_C, 22, 1792 * 1024)
    a(f"s_lshl_b32 s{T2}, s{PRM}, 15")
    if o.hw:
        a("s_waitcnt vmcnt(0)")
    a("s_barrier")
    a(f"buffer_load_dword v10, v6, {R4(R_C)}, s{T2} offen")
    a("s_endpgm")

    a.label("L_misc")
    a(f"s_cmp_eq_u32 s{KK}, 7")
    a("s_cbranch_scc1 L_fin")
    a(f"s_cmp_eq_u32 s{KK}, 14")
    a("s_cbranch_scc1 L_fin")
    a(f"s_cmp_eq_u32 s{KK}, 15")
    a("s_cbranch_scc1 L_w")
    a(f"s_cmp_lg_u32 s{XC}, 4")
    a("s_cbranch_scc1 L_end")
    a(f"s_mov_b32 s{PRM}, 128")
    a(f"s_mov_b32 s{SLOT}, 0")
    a(f"s_mov_b32 s{KK}, 15")
    a("s_branch L_a")

    a.label("L_w")
    if not o.warm:
        a("s_endpgm")
    a(f"s_and_b32 s{T0}, s{XC}, 3")
    a(f"s_lshl3_add_u32 s{T0}, s{T0}, s3")
    a(f"s_lshl_b32 s{T1}, s{T0}, 12")
    a(f"s_add_u32 s{T1}, s{T1}, {WS_KEY:#x}")
    a(f"v_lshlrev_b32 v4, 6, v{VN}")
    a(f"v_lshl_add_u32 v4, v{VQ}, 11, v4")
    a("v_lshlrev_b32 v6, 6, v0")
    a("v_mov_b32 v5, 0")
    a("s_waitcnt lgkmcnt(0)")
    a.srd(R_WS, 30, WS_BYTES)
    a("s_mov_b32 exec_hi, 0")
    a(f"buffer_atomic_or v5, v4, {R4(R_WS)}, s{T1} offen sc1")
    a(f"s_cmp_lg_u32 s{T0}, 0")
    a("s_cbranch_scc1 L_end")
    a(f"s_movk_i32 s{T1}, {WS_FRDY:#x}")
    a(f"buffer_atomic_or v5, v6, {R4(R_WS)}, s{T1} offen sc1")
    a("s_endpgm")

    a.label("L_f")
    WGF, WDF, XF, DG, DD = 16, 48, 64, 80, 88
    a(f"s_lshr_b32 s{REP}, s{PRM}, 1")
    a(f"s_xor_b32 s{WSEL}, s3, 7")
    a("v_lshrrev_b32 v8, 3, v0")
    a("v_and_b32 v9, 2, v8")
    a("v_and_b32 v10, 7, v0")
    a("v_xor_b32 v9, v9, v10")
    a("v_lshlrev_b32 v9, 4, v9")
    a("v_lshl_add_u32 v5, v8, 10, v9")
    a("v_xor_b32 v6, 64, v5")
    a(f"s_lshl_b32 s13, s{PRM}, 15")
    a(f"s_lshl_b32 s{T1}, s3, 7")
    a(f"s_add_u32 s13, s13, s{T1}")
    a(f"s_lshl_b32 s6, s3, 12")
    a(f"s_add_u32 s6, s6, {LF_WD}")
    srds()
    a.srd(R_C, 22, 1792 * 1024)
    if o.fnat == 2:
        mtouch([(22, 0), (18, 0), (20, 0), (4, 0), (30, 0x3000)])
        a("s_waitcnt vmcnt(0)")
    if o.fnat:
        tag_ready()
    if o.fdelay:
        a(f"s_sleep {o.fdelay}")

    def gu_dma(poll=0):
        for n in range(8):
            if o.fpb and n == o.fpp:
                a("s_barrier")
            if poll and n == poll:
                a(f"buffer_load_dwordx4 {V(PB,4)}, v{KA}, {R4(R_WS)}, s15 offen sc1")
            a(f"s_add_u32 m0, s14, {n*1024}")
            a(f"buffer_load_dwordx4 v4, {R4(R_A)}, s12 offen lds")
            if n < 7:
                a(f"s_add_u32 s12, s12, {16*3584}")
        if o.fpb and o.fpp == 8:
            a("s_barrier")
        if poll == 8 and o.fpl:
            a(f"s_waitcnt vmcnt({8 - o.fpl})")
        if poll == 8:
            a(f"buffer_load_dwordx4 {V(PB,4)}, v{KA}, {R4(R_WS)}, s15 offen sc1")

    def wd_dma():
        for n in range(4):
            a(f"s_add_u32 m0, s6, {n*1024}")
            a(f"buffer_load_dwordx4 v{5+(n&1)}, {R4(R_C)}, s13 offen lds")
            if n < 3:
                a(f"s_add_u32 s13, s13, 8192")

    def wdtr():
        for u in range(4):
            for hh in range(2):
                a(f"ds_read_b64_tr_b16 {V(WDF+4*u+2*hh,2)}, v{112+u} offset:{hh*512}")

    def trs(extra):
        for sg in range(4):
            a(f"s_waitcnt vmcnt({(0 if o.trm & 2 else 6 - 2*sg) + extra})")
            for tt in range(2):
                for hh in range(2):
                    a(f"ds_read_b64_tr_b16 {V(WGF+8*sg+4*tt+2*hh,2)}, v{12 if tt else 7} offset:{sg*2048+hh*256}")

    a(f"s_cmp_lt_u32 s{WSEL}, 4")
    a(f"s_cselect_b32 s{R_A}, s18, s20")
    a(f"s_cselect_b32 s{R_A+1}, s19, s21")
    a(f"s_mov_b32 s{R_A+2}, {512*3584:#x}")
    a(f"s_mov_b32 s{R_A+3}, 0x20000")
    a("v_lshrrev_b32 v8, 2, v0")
    a("v_mul_u32_u24 v4, 3584, v8")
    a("v_lshrrev_b32 v8, 2, v8")
    a("v_and_b32 v8, 2, v8")
    a("v_and_b32 v9, 3, v0")
    a("v_xor_b32 v8, v8, v9")
    a("v_lshl_add_u32 v4, v8, 4, v4")
    a(f"s_and_b32 s{T0}, s{WSEL}, 3")
    a(f"s_mul_i32 s12, s{T0}, {128*3584}")
    a(f"s_lshl_b32 s{T1}, s{PRM}, 6")
    a(f"s_add_u32 s12, s12, s{T1}")
    a(f"s_lshl_b32 s14, s3, 13")
    ND = 4 - o.apf
    a(f"s_cmp_ge_u32 s{WSEL}, {ND}")
    a("s_cbranch_scc1 L_fd0")
    gu_dma()
    a.label("L_fd0")
    a(f"v_lshrrev_b32 v8, 2, v{VN}")
    a(f"v_lshl_add_u32 v9, v{VQ}, 3, v8")
    a("v_and_b32 v10, 3, v0")
    a("v_lshlrev_b32 v10, 3, v10")
    a(f"v_and_b32 v11, 1, v{VQ}")
    a("v_lshl_add_u32 v7, v9, 6, v10")
    a("v_lshl_add_u32 v7, v11, 5, v7")
    a("v_add_u32 v7, s14, v7")
    a("v_xor_b32 v12, 32, v7")
    a("v_lshrrev_b32 v8, 1, v8")
    a("v_lshl_add_u32 v8, v11, 1, v8")
    a("v_lshl_add_u32 v112, v9, 7, v10")
    a("v_lshl_add_u32 v112, v8, 5, v112")
    a("v_add_u32 v112, s6, v112")
    for u in range(1, 4):
        a(f"v_xor_b32 v{112+u}, {32*u}, v112")
    a(f"s_and_b32 s{T0}, s{WSEL}, 3")
    a(f"s_lshl_b32 s{T0}, s{T0}, 8")
    a(f"s_add_u32 s{T0}, s{T0}, {LF_X}")
    a(f"v_lshlrev_b32 v14, 4, v{VQ}")
    a(f"v_add_u32 v15, s{T0}, v14")
    a(f"s_lshl_b32 s{T0}, s{WSEL}, 7")
    a(f"s_add_u32 s{T0}, s{T0}, {LF_E}")
    a(f"v_add_u32 v107, s{T0}, v14")
    a(f"v_lshl_add_u32 v111, v{VQ}, 5, v10")
    a(f"v_add_u32 v111, {LF_E}, v111")
    a(f"v_lshlrev_b32 v108, 3, v{VQ}")
    a(f"v_lshl_add_u32 v108, v{VN}, 5, v108")
    a(f"s_mul_i32 s8, s3, {56*128}")
    a(f"s_lshl_b32 s{T1}, s{PRM}, 7")
    a(f"s_add_u32 s8, s8, s{T1}")
    a(f"s_add_u32 s8, s8, {WS_PART:#x}")
    keys_addr(PB)
    if not o.fnat:
        tag_ready()
    tagv(TGV)
    a("v_lshlrev_b32 v118, 1, v0")
    a("v_and_b32 v117, 2, v0")
    a("v_cmp_eq_u32 vcc, 0, v117")
    a(f"v_cndmask_b32 v117, v{TGV+1}, v{TGV}, vcc")
    a(f"s_lshl_b32 s7, s{PRM}, 2")
    a(f"s_add_u32 s7, s7, {WS_FRDY:#x}")
    a("v_lshlrev_b32 v122, 8, v0")
    a(f"v_mov_b32 v123, s{TAG}")

    def kcheck():
        a(f"v_xor_b32 v{PB+1}, s{TAG}, v{PB+1}")
        a(f"v_bitop3_b32 v{PB+1}, v{PB+3}, s{TAG}, v{PB+1} bitop3:0xbe")
        a(f"v_cmp_ne_u32 vcc, 0, v{PB+1}")
        a(f"v_max_u32 v{PB}, v{PB}, v{PB+2}")

    def xsel():
        a(f"s_and_b32 s{SEL}, s{SEL}, 2047")
        a(f"s_lshl_b32 s{T0}, s{SEL}, 10")
        a(f"s_mov_b32 m0, {LF_X}")
        a(f"buffer_load_dwordx4 v{KA}, {R4(R_X)}, s{T0} offen lds")
    a(f"s_cmp_ge_u32 s{WSEL}, {ND}")
    a("s_cbranch_scc1 L_fd1")
    a(f"s_waitcnt vmcnt({o.dw})")
    a("s_barrier")
    stamp(7)
    trs(0)
    if o.wdp == 1:
        a("s_barrier")
        wd_dma()
    a("s_branch L_f2")
    a.label("L_fd1")
    a("s_barrier")
    stamp(7)
    a(f"s_cmp_lg_u32 s3, {o.fpw}")
    a("s_cbranch_scc1 L_f1")
    if o.kmode:
        gu_dma()
        a("s_barrier")
        wd_dma()
        trs(4)
        if o.kmode == 2:
            for r in range(4):
                a(f"v_mov_b32 v{PB+r}, 0")
            a(f"buffer_atomic_or_x2 {V(PB,2)}, v{PB+6}, {R4(R_WS)}, s15 offen sc0 sc1")
            a(f"buffer_atomic_or_x2 {V(PB+2,2)}, v{PB+6}, {R4(R_WS)}, s15 offen offset:512 sc0 sc1")
            a("s_waitcnt vmcnt(0)")
            a(f"v_cmp_eq_u32 vcc, s{TAG}, v{PB+1}")
            a(f"v_cndmask_b32 v{PB}, 0, v{PB}, vcc")
            a(f"v_cmp_eq_u32 s[{T2}:{T3}], s{TAG}, v{PB+3}")
            a(f"v_cndmask_b32 v{PB+2}, 0, v{PB+2}, s[{T2}:{T3}]")
            a(f"s_and_b64 s[{R_B}:{R_B+1}], vcc, s[{T2}:{T3}]")
            a(f"v_max_u32 v{PB}, v{PB}, v{PB+2}")
            keys_max(PB)
            a(f"s_mov_b32 s{RHO}, s{SEL}")
            xsel()
            a(f"s_cmp_eq_u64 s[{R_B}:{R_B+1}], -1")
            a("s_cbranch_scc1 L_f1c")
        keys_pipe(PB, o.kmode == 3, 136)
        stamp(3)
        if o.kmode == 2:
            a(f"s_cmp_eq_u32 s{SEL}, s{RHO}")
            a("s_cbranch_scc1 L_f2")
        xsel()
        a.label("L_f1c")
        a("s_waitcnt vmcnt(0)")
        a("s_branch L_f2")
    else:
        gu_dma(8)
        if o.wdp == 1:
            a("s_barrier")
        a("s_waitcnt vmcnt(0)")
        kcheck()
        a("s_cbranch_vccz L_f1a")
        keys_wait(PB)
        a("s_branch L_f1b")
        a.label("L_f1a")
        keys_max(PB)
        a.label("L_f1b")
        stamp(3)
        xsel()
        if o.wdp == 1:
            wd_dma()
        trs(8)
        a(f"s_waitcnt vmcnt({4 if o.wdp == 1 else 0})")
        a("s_branch L_f2")
    a.label("L_f1")
    gu_dma()
    if o.wdp == 1:
        a("s_barrier")
        wd_dma()
    trs(4 if o.wdp == 1 else 0)
    a.label("L_f2")
    stamp(2)
    a("s_waitcnt lgkmcnt(0)")
    stamp(4)
    a("s_barrier")
    stamp(5)
    for sg in range(4):
        a(f"ds_read_b128 {V(XF+4*sg,4)}, v15 offset:{sg*64}")

    def frdy():
        l = a.L("fr")
        a("s_cmp_lg_u32 s3, 7")
        a(f"s_cbranch_scc1 {l}")
        a("s_mov_b64 exec, 0xff")
        a(f"buffer_store_dword v123, v122, {R4(R_WS)}, s7 offen sc1")
        a("s_mov_b64 exec, -1")
        a.label(l)
    if o.wdp == 0:
        wd_dma()
    for sg in range(4):
        lg(3 - sg)
        for tt in range(2):
            a(f"{MF} {V(DG+4*tt,4)}, {V(WGF+8*sg+4*tt,4)}, {V(XF+4*sg,4)}, {V(DG+4*tt,4) if sg else 0}")
    a("s_mov_b32 exec_lo, 0x10001")
    a("s_mov_b32 exec_hi, 0x10001")
    for tt in range(2):
        a(f"ds_write_b128 v107, {V(DG+4*tt,4)} offset:{tt*64}")
    a("s_mov_b64 exec, -1")
    if o.frdy == 3:
        frdy()
    a("s_waitcnt lgkmcnt(0)")
    a("s_barrier")
    for k in range(8):
        a(f"ds_read_b64 {V(XF+2*k,2)}, v111 offset:{128*k}")
    a("s_waitcnt vmcnt(0)")
    wdtr()
    for m in range(2):
        lg(12 - 4 * m)
        b = XF + 8 * m
        a(f"v_pk_add_f32 {V(b,2)}, {V(b,2)}, {V(b+2,2)}")
        a(f"v_pk_add_f32 {V(b+4,2)}, {V(b+4,2)}, {V(b+6,2)}")
        a(f"v_pk_add_f32 {V(b,2)}, {V(b,2)}, {V(b+4,2)}")
        if m == 0:
            weave(cap(sigmoid, XF + 2, XF), cap(sigmoid, XF + 3, XF + 1), 1)
            a(f"v_pk_mul_f32 {V(XF,2)}, {V(XF,2)}, {V(XF+2,2)}")
    a(f"v_pk_mul_f32 {V(XF,2)}, {V(XF,2)}, {V(XF+8,2)}")
    a(f"v_cvt_pk_bf16_f32 v{XF}, v{XF}, v{XF+1}")
    for k in range(4):
        a(f"v_mov_b32_dpp v{XF+8+k}, v{XF} quad_perm:[{k},{k},{k},{k}] row_mask:0xf bank_mask:0xf")
    if o.plin:
        for u in range(4):
            lg(6 - 2 * u)
            a(f"{MF} {V(DD+4*u,4)}, {V(XF+8,4)}, {V(WDF+4*u,4)}, 0")
        a("s_mov_b32 exec_lo, 0xffff0000")
        a("s_mov_b32 exec_hi, 0")
        a(f"v_mov_b32 v{DD}, v{DD+4}")
        a("s_mov_b32 exec_lo, 0")
        a("s_mov_b32 exec_hi, 0xffff")
        a(f"v_mov_b32 v{DD}, v{DD+8}")
        a("s_mov_b32 exec_hi, 0xffff0000")
        a(f"v_mov_b32 v{DD}, v{DD+12}")
        a("s_mov_b64 exec, -1")
        a(f"v_mov_b32_dpp v{DD+1}, v{DD} quad_perm:[1,1,3,3] row_mask:0xf bank_mask:0xf")
        a(f"v_cvt_pk_bf16_f32 v120, v{DD}, v{DD+1}")
        a("s_mov_b32 exec_lo, 0x55555555")
        a("s_mov_b32 exec_hi, 0x55555555")
        a(f"v_bitop3_b32 v120, v{TGV+2}, v117, v120 bitop3:0xca")
        a(f"buffer_store_dword v120, v118, {R4(R_WS)}, s8 offen sc1")
        a("s_mov_b64 exec, -1")
        stamp(8)
        fini(9)
    for u in range(4):
        a(f"{MF} {V(DD+4*u,4)}, {V(WDF+4*u,4)}, {V(XF+8,4)}, 0")
    for u in range(4):
        a(f"s_mov_b32 exec_lo, {0x00010001 << u:#x}")
        a(f"s_mov_b32 exec_hi, {0x00010001 << u:#x}")
        a(f"v_cvt_pk_bf16_f32 v120, v{DD+4*u}, v{DD+4*u+1}")
        a(f"v_cvt_pk_bf16_f32 v121, v{DD+4*u+2}, v{DD+4*u+3}")
    a("s_mov_b32 exec_lo, 0x000f000f")
    a("s_mov_b32 exec_hi, 0x000f000f")
    a(f"v_bitop3_b32 v120, v{TGV+2}, v{TGV}, v120 bitop3:0xca")
    a(f"v_bitop3_b32 v121, v{TGV+2}, v{TGV+1}, v121 bitop3:0xca")
    a(f"buffer_store_dwordx2 v[120:121], v108, {R4(R_WS)}, s8 offen sc1")
    a("s_mov_b64 exec, -1")
    stamp(8)
    fini(9)

    GW = 28
    a.label("L_fin")
    rowoff()
    a(f"s_add_u32 s{REP}, s{XC}, 24")
    a(f"s_lshr_b32 s{FC}, s{KK}, 1")
    a(f"s_and_b32 s{FC}, s{FC}, 4")
    a(f"s_add_u32 s{FC}, s{FC}, s{XC}")
    a(f"s_sub_u32 s{FC}, s{FC}, 4")
    srds()
    a.srd(R_B, 24, 1024)
    a(f"buffer_load_dwordx4 {V(GW,4)}, v4, {R4(R_B)}, 0 offen")
    dma_blocks((3, (0,)))
    a(f"s_and_b32 s{T3}, s3, 1")
    a(f"s_add_u32 s{T3}, s{T3}, 8")
    dma_blocks((T3, (0,)))
    a.srd(R_OUT, 26, 2 << 20)
    mtouch([(4, 0), (26, 0), (30, 0x3000), (30, WS_P + 0x3000)])
    p2addr()
    keys_addr(PB)
    a(f"s_mul_i32 s7, s{FC}, {56*128}")
    a(f"s_lshl_b32 s{T1}, s3, 10")
    a(f"s_add_u32 s7, s7, s{T1}")
    a(f"s_add_u32 s7, s7, {WS_PART - 1024:#x}")
    a(f"v_and_b32 v108, 1, v{VQ}")
    a(f"v_lshrrev_b32 v111, 1, v{VQ}")
    a("v_lshl_add_u32 v108, v108, 1, v111")
    a(f"v_and_b32 v107, 7, v{VN}")
    if o.pat:
        a(f"v_lshl_add_u32 v108, v{VN}, 2, v108")
    else:
        a(f"v_lshl_add_u32 v108, v107, 3, v108")
    a(f"s_lshl_b32 s{T0}, s3, 8")
    a(f"s_add_u32 s{T0}, s{T0}, {L_Y - 256}")
    a(f"v_lshl_add_u32 v108, v108, 2, s{T0}")
    a(f"v_and_b32 v111, 3, v{VN}")
    a(f"v_lshlrev_b32 v111, 6, v111")
    a(f"v_lshl_add_u32 v111, v{VQ}, 4, v111")
    a(f"v_mov_b32 v109, {L_SEL}")
    tag_ready()
    a("s_cmp_lg_u32 s3, 0")
    a("s_cbranch_scc1 L_fin0")
    a(f"s_cmp_eq_u32 s{FC}, 0")
    a("s_cbranch_scc1 L_fin0")
    a(f"s_lshl_b32 s{T0}, s{FC}, 7")
    a(f"v_mov_b32 v{t}, {WS_ACK:#x}")
    a(f"v_mov_b32 v{t+1}, s{TAG}")
    a("s_mov_b64 exec, 1")
    a(f"buffer_store_dword v{t+1}, v{t}, {R4(R_WS)}, s{T0} offen sc1")
    a("s_mov_b64 exec, -1")
    a.label("L_fin0")
    tagv(TGV)
    a("s_waitcnt vmcnt(0)")
    a("s_barrier")
    a(f"s_lshr_b32 s{T0}, s{FC}, 2")
    a(f"s_lshl_b32 s{T0}, s{T0}, 10")
    a(f"v_add_u32 v110, s{T0}, v{KA}")
    a(f"ds_read_b128 {V(FRE,4)}, v{KA} offset:{L_TAB}")
    a(f"ds_read_b128 {V(FIM,4)}, v{KA} offset:{L_TAB+1024}")
    for k in range(4):
        a(f"ds_read_b128 {V(TW+4*k,4)}, v{KA} offset:{L_TAB+2048+1024*k}")
    for h in range(2):
        a(f"ds_read_b128 {V(B3+4*h,4)}, v110 offset:{L_TAB+6144+2048*h}")
    stamp(2)
    a("s_cmp_lg_u32 s3, 0")
    a("s_cbranch_scc1 L_fin1a")
    if o.fks:
        a(f"s_sleep {o.fks}")
    if o.fkl == 2:
        l = a.L("fk")
        a.label(l)
        for r in range(4):
            a(f"v_mov_b32 v{PB+r}, 0")
        a(f"buffer_atomic_or_x2 {V(PB,2)}, v{PB+6}, {R4(R_WS)}, s15 offen sc0 sc1")
        a(f"buffer_atomic_or_x2 {V(PB+2,2)}, v{PB+6}, {R4(R_WS)}, s15 offen offset:512 sc0 sc1")
        a("s_waitcnt vmcnt(0)")
        kcheck()
        retry(l, o.fsl)
        keys_max(PB)
    else:
        keys_pipe(PB, o.fkl)
    a(f"v_mov_b32 v110, s{SEL}")
    a("ds_write_b32 v109, v110")
    a(f"s_and_b32 s{T0}, s{SEL}, 2047")
    a(f"s_lshl_b32 s12, s{T0}, 10")
    a(f"buffer_load_dwordx4 {V(XR,4)}, v4, {R4(R_X)}, s12 offen")
    a("s_branch L_fin1")
    a.label("L_fin1a")
    a(f"s_lshl3_add_u32 s{T0}, s{FC}, s3")
    a(f"s_cmp_lg_u32 s{T0}, 2")
    a("s_cbranch_scc1 L_fin1")
    a(f"v_lshlrev_b32 v{PB}, 7, v0")
    a("s_mov_b64 exec, 0xff")
    a(f"s_movk_i32 s{T0}, {WS_ACK:#x}")
    a.label("L_ack")
    a(f"buffer_load_dword v{PB+1}, v{PB}, {R4(R_WS)}, s{T0} offen sc1")
    a("s_waitcnt vmcnt(0)")
    a(f"v_cmp_ne_u32 vcc, s{TAG}, v{PB+1}")
    retry("L_ack")
    a("s_mov_b64 exec, -1")
    a.label("L_fin1")
    a("s_waitcnt lgkmcnt(0)")
    a("s_barrier")
    stamp(3)
    a("ds_read_b32 v110, v109")
    a("s_waitcnt lgkmcnt(0)")
    a(f"v_readfirstlane_b32 s{RS}, v110")
    a(f"s_and_b32 s{SEL}, s{RS}, 2047")
    a(f"s_and_b32 s{T0}, s{SEL}, 255")
    a(f"s_and_b32 s{T1}, s{SEL}, 15")
    a(f"s_and_b32 s{T2}, s{SEL}, 7")
    a(f"s_cselect_b32 s{T0}, s{T1}, s{T0}")
    a(f"s_cselect_b32 s{T1}, 8, 128")
    a(f"s_cmp_gt_u32 s{T0}, s{T1}")
    a(f"s_cselect_b32 s{RHO}, 0x80000000, 0")
    a(f"s_sub_u32 s{T1}, 2048, s{SEL}")
    a(f"s_cmp_lg_u32 s{RHO}, 0")
    a(f"s_cselect_b32 s{T0}, s{T1}, s{SEL}")
    a(f"s_and_b32 s{PRM}, s{T0}, 255")
    a(f"s_lshr_b32 s{WSEL}, s{T0}, 8")
    a(f"s_lshr_b32 s{T0}, s{PRM}, 4")
    a(f"s_and_b32 s{T1}, s{PRM}, 15")
    a(f"s_lshl4_add_u32 s{SLOT}, s{T1}, s{T0}")
    a(f"s_add_u32 s{T2}, s{T0}, s{T1}")
    a(f"s_cmp_eq_u32 s{T1}, 8")
    a(f"s_cselect_b32 s{SLOT}, s{T2}, s{SLOT}")
    a(f"s_cmp_eq_u32 s{PRM}, 128")
    a(f"s_cselect_b32 s{SLOT}, 0, s{SLOT}")
    a(f"s_lshl_b32 s14, s{SLOT}, 14")
    a(f"s_lshl_b32 s{T0}, s3, 8")
    a(f"s_add_u32 s14, s14, s{T0}")
    a(f"s_add_u32 s14, s14, {WS_P:#x}")
    a1consts("L_fin")
    a("s_cmp_lg_u32 s3, 0")
    a("s_cbranch_scc1 L_fin3")
    p2read_addr(WSEL)
    for i in range(4):
        a(f"v_xor_b32 v{FRE+i}, s{RHO}, v{FRE+i}")
        a(f"v_xor_b32 v{FIM+i}, s{RHO}, v{FIM+i}")
    a(f"s_ashr_i32 s{T0}, s{RS}, 31")
    a(f"s_orn2_b32 s{T0}, 0x80000000, s{T0}")
    a(f"s_xor_b32 s{RS}, s{RS}, s{T0}")
    a("s_waitcnt vmcnt(0)")
    for k in range(4):
        a(f"v_dot2_f32_bf16 v32, v{XR+k}, v{GW+k}, {'v32' if k else 0}")
    rowsum(32)
    a("v_mov_b32 v33, v32")
    a("v_permlane32_swap_b32 v32, v33")
    a("v_add_f32 v32, v32, v33")
    a("v_mov_b32 v33, v32")
    a("v_permlane16_swap_b32 v32, v33")
    a("v_add_f32 v32, v32, v33")
    a(f"v_mov_b32 v33, s{RS}")
    weave(cap(rbf, 32) + cap(sigmoid, 34, 32) + cap(rbf, 34), cap(rbf, 33) + cap(sigmoid, 35, 33) + cap(rbf, 35), 1)
    for k in range(2):
        a(f"v_permlane16_swap_b32 v{XR+k}, v{XR+2+k}")
    a(f"s_bitcmp1_b32 s{FC}, 2")
    a("s_cbranch_scc0 L_fint")
    a(f"v_mov_b32 v{XR}, v{XR+2}")
    a(f"v_mov_b32 v{XR+1}, v{XR+3}")
    a.label("L_fint")
    a(f"v_sub_f32 v36, 1.0, v34")
    rbf(36)
    for k in range(2):
        a(f"v_lshlrev_b32 v{XG+2*k}, 16, v{XR+k}")
        a(f"v_and_b32 v{XG+2*k+1}, 0xffff0000, v{XR+k}")
        a(f"v_pk_mul_f32 {V(XG+2*k,2)}, {V(XG+2*k,2)}, v[36:37] op_sel_hi:[1,0]")
    a(f"v_mul_f32 v38, v35, v36")
    for k in range(8):
        a(f"v_pk_mul_f32 {V(TW+2*k,2)}, {V(TW+2*k,2)}, v[34:35] op_sel_hi:[1,0]")
    a.label("L_fin3")
    if o.finb:
        a("s_barrier")
    stamp(5)
    p_issue()
    c1("L_fin")
    a("s_waitcnt lgkmcnt(0)")
    a("s_barrier")
    stamp(7)
    a("s_cmp_lg_u32 s3, 0")
    a("s_cbranch_scc1 L_pp0")
    for h in range(2):
        a(f"ds_read_b128 {V(16+4*h,4)}, v62 offset:{h*1024}")
    for h in range(2):
        lg(1 - h)
        a(f"{MF} {V(D2+8*h,4)}, {V(16+4*h,4)}, {V(FRE,4)}, 0")
        a(f"{MF} {V(D2+8*h+4,4)}, {V(16+4*h,4)}, {V(FIM,4)}, 0")
    for h in range(2):
        twpk(D2 + 8 * h, TW + 8 * h, TW + 8 * h + 4, GF + 4 * h)
        a(f"{MF} {V(D3,4)}, {V(GF+4*h,4)}, {V(B3+4*h,4)}, {V(D3 if h else XG,4)}")
    a(f"v_lshlrev_b32 v4, 5, v{VN}")
    a(f"v_lshl_add_u32 v4, v{VQ}, 3, v4")
    a(f"s_lshr_b32 s{T1}, s{FC}, 2")
    a(f"s_lshl_b32 s{T1}, s{T1}, 9")
    a(f"s_add_u32 s12, s12, s{T1}")
    if o.flin:
        a(f"s_and_b32 s{T1}, s{FC}, 3")
        a(f"s_lshl_b32 s{T1}, s{T1}, 2")
        a(f"s_lshl_b32 exec_lo, 0x000f000f, s{T1}")
        a("s_mov_b32 exec_hi, exec_lo")
        a(f"ds_write_b128 v111, {V(D3,4)} offset:{L_Y+7*256}")
        a("s_mov_b64 exec, 0xffff")
        a("s_waitcnt lgkmcnt(0)")
        a(f"ds_read_b128 {V(D3,4)}, v{KA} offset:{L_Y+7*256}")
        a(f"v_mov_b32 v111, v{KA}")
        a(f"v_mov_b32 v4, v246")
        a(f"s_lshl_b32 s12, s{SEL}, 10")
        a(f"s_lshl_b32 s{T1}, s{FC}, 7")
        a(f"s_add_u32 s12, s12, s{T1}")
        a("s_waitcnt lgkmcnt(0)")
    a("s_branch L_fin5")
    a.label("L_pp0")
    if o.frdy:
        a("s_cmp_lg_u32 s3, 1")
        a("s_cbranch_scc1 L_pp1")
        a(f"s_lshl_b32 s{T0}, s{FC}, 8")
        a(f"s_add_u32 s{T0}, s{T0}, {WS_FRDY:#x}")
        a(f"v_lshlrev_b32 v{PB}, 2, v0")
        a("s_mov_b32 exec_hi, 0x00ffffff")
        def issue(j):
            a(f"v_mov_b32 v{PB+1+j}, 0")
            a(f"buffer_atomic_or v{PB+1+j}, v{PB}, {R4(R_WS)}, s{T0} offen sc0 sc1")
        poll_pipe("L_fr", 3, issue, lambda j: a(f"v_cmp_ne_u32 vcc, s{TAG}, v{PB+1+j}"), 1, lambda j: None)
        a("s_mov_b64 exec, -1")
        a.label("L_pp1")
        stamp(4)
        a("s_barrier")
    if o.pat:
        def issue(j):
            if o.pld:
                for k in range(2):
                    a(f"buffer_load_dwordx2 {V(8+4*j+2*k,2)}, v246, {R4(R_WS)}, s7 offen offset:{512*k} sc1")
                return
            for r in range(4):
                a(f"v_mov_b32 v{8+4*j+r}, 0")
            for k in range(2):
                a(f"buffer_atomic_or_x2 {V(8+4*j+2*k,2)}, v246, {R4(R_WS)}, s7 offen offset:{512*k} sc0 sc1")
        def done(j):
            for k in range(4):
                a(f"v_lshlrev_b32 v{32+2*k}, 16, v{8+4*j+k}")
                a(f"v_and_b32 v{33+2*k}, 0xffff0000, v{8+4*j+k}")
        poll_pipe("L_pa", o.pat, issue, lambda j: tagcheck(8 + 4 * j, 4), 2, done)
        a("v_pk_add_f32 v[32:33], v[32:33], v[36:37]")
        a("v_pk_add_f32 v[34:35], v[34:35], v[38:39]")
        fold4(32, 33, 34, 35)
        a("ds_write_b32 v108, v32")
        a("s_waitcnt lgkmcnt(0)")
    else:
        a.label("L_pp")
        a(f"buffer_load_dwordx4 v[8:11], v{KA}, {R4(R_WS)}, s7 offen sc1")
        a("s_waitcnt vmcnt(0)")
        tagcheck(8, 4)
        for k in range(4):
            a(f"v_lshlrev_b32 v{16+2*k}, 16, v{8+k}")
            a(f"v_and_b32 v{17+2*k}, 0xffff0000, v{8+k}")
        retry("L_pp")
        weave(cap(fold4, 16, 17, 18, 19), cap(fold4, 20, 21, 22, 23), 1)
        a("v_add_f32_dpp v16, v16, v16 row_ror:8 row_mask:0xf bank_mask:0xf")
        a("v_add_f32_dpp v20, v20, v20 row_ror:8 row_mask:0xf bank_mask:0xf")
        a("ds_write2_b32 v108, v16, v20 offset0:0 offset1:4")
        a("s_waitcnt lgkmcnt(0)")
    a.label("L_fin5")
    stamp(8)
    a("s_barrier")
    stamp(9)
    a("s_cmp_lg_u32 s3, 0")
    a("s_cbranch_scc1 L_fin7")
    for k in range(7):
        a(f"ds_read_b128 {V(64+4*k,4)}, v111 offset:{L_Y+256*k}")
    a(f"s_and_b32 s{T1}, s{FC}, 3")
    a(f"s_lshl_b32 s{T1}, s{T1}, 2")
    a("s_waitcnt lgkmcnt(0)")
    for k in (1, 3, 5):
        for p in range(2):
            a(f"v_pk_add_f32 {V(64+4*k+2*p,2)}, {V(64+4*k+2*p,2)}, {V(68+4*k+2*p,2)}")
    for p in range(2):
        a(f"v_pk_add_f32 {V(64+2*p,2)}, {V(64+2*p,2)}, {V(68+2*p,2)}")
        a(f"v_pk_add_f32 {V(76+2*p,2)}, {V(76+2*p,2)}, {V(84+2*p,2)}")
    for p in range(2):
        a(f"v_pk_add_f32 {V(64+2*p,2)}, {V(64+2*p,2)}, {V(76+2*p,2)}")
    for p in range(2):
        a(f"v_pk_fma_f32 {V(64+2*p,2)}, {V(64+2*p,2)}, v[38:39], {V(D3+2*p,2)} op_sel_hi:[1,0,1]")
    a("v_cvt_pk_bf16_f32 v16, v64, v65")
    a("v_cvt_pk_bf16_f32 v17, v66, v67")
    if not o.flin:
        a(f"s_lshl_b32 exec_lo, 0x000f000f, s{T1}")
        a("s_mov_b32 exec_hi, exec_lo")
    a(f"buffer_store_dwordx2 v[16:17], v4, {R4(R_OUT)}, s12 offen sc1")
    a(f"s_cmp_lg_u32 s{FC}, 0")
    a("s_cbranch_scc1 L_fin7")
    a("s_mov_b64 exec, 1")
    a(f"v_mov_b32 v20, {WS_EPOCH}")
    a(f"v_mov_b32 v21, s{TAG}")
    if o.noep == 0:
        a(f"buffer_store_dword v21, v20, {R4(R_WS)}, 0 offen sc1")
    elif o.noep == 2:
        a(f"buffer_store_dword v21, v20, {R4(R_WS)}, 0 offen")
    elif o.noep == 3:
        a(f"buffer_atomic_swap v21, v20, {R4(R_WS)}, 0 offen sc1")
    a.label("L_fin7")
    fini(10)
    a.label("L_end")
    a("s_endpgm")


def emit_tables(a):
    T = tables()
    a.raw(".p2align 7")
    a.raw(".type L_tab,@object")
    a.label("L_tab")
    for k in range(0, len(T), 8):
        a.raw(".long " + ", ".join("0x%x" % v for v in T[k:k + 8]))
    a.label("L_tabend")
    a.raw(".size L_tab, L_tabend - L_tab")


if __name__ == "__main__":
    ap = argparse.ArgumentParser()
    ap.add_argument("-o", required=True)
    for k, v in dict(stamps=0, only=0, tlb=1, cpf=1, kr=32, ksleep=1, dbg=0, kp=3, psleep=4, frdy=0, hdelay=0, fdelay=0, kload=1, kdma=2,
                     apf=3, nt=0, base=0, dw=0, hw=0, wdp=1, kb1=1, rpre=1, hnat=0, finb=0, ppre=2, fnat=1, fpw=2, fpp=8, fpb=0, spec=0, kmode=0, fks=0, fkl=0, fsl=8, flin=1, plin=1, warm=0, noep=0, fpl=8, safe=3, trm=0, osc=1, pld=0, sw=1, prio=0, kat=0, kack=1, nob0=0, pat=3).items():
        ap.add_argument("--" + k, type=int, default=v)
    o = ap.parse_args()
    a = Asm()
    gen(a, o)
    a.lines = haz.fix_all(a.lines)
    emit_tables(a)
    finish(a, o.o, 256, 512, LDS_BYTES, 256, sgpr=102)
```

```python
import argparse, math, struct
from fw import *
import haz

WS_EPOCH = 0
WS_ACK = 0x1000
WS_FRDY = 0x2000
WS_PART = 0x10000
WS_KEY = 0x40000
WS_P = 0x200000
WS_STAMP = 8 << 20
R_X, R_WS, R_OUT, R_A, R_B, R_C = 32, 36, 40, 44, 48, 52
RS, SLOT, TABS = 8, 9, 10
XC, KK, PRM, TAG = 56, 57, 58, 59
T0, T1, T2, T3 = 60, 61, 62, 63
ST = 64
SPIN, TB0, TB1, ROWA, ROWB, REP, RHO, SEL, WSEL = 90, 91, 92, 93, 94, 95, 96, 97, 98
MF = "v_mfma_f32_16x16x32_bf16"
VN, VQ = 2, 3
L_X2 = 16384
L_TAB = 32768
L_KEY = L_TAB + 10240
L_CNT = L_KEY + 4
L_SEL = L_KEY + 8
L_G = L_KEY + 64
L_KB = L_KEY + 1024
L_Y = L_KEY + 256
LF_WD = 65536
LF_X = 98304
LF_E = LF_X + 1024
LDS_BYTES = LF_E + 1024
FC = 99
LOG2E_N = 0xbfb8aa3b
A1R, A1I, FRE, FIM, FRC, FIC, B3, TW, XG, D3 = 144, 148, 152, 156, 160, 164, 168, 184, 216, 232
GF, D1, D2, XR, TGV, PB = 112, 64, 64, 40, 104, 128
t = 96
KA = 247
XR2, GW2 = 232, 240


def f32(x):
    return struct.unpack("<I", struct.pack("<f", x))[0]


def fhex(x):
    return "0x%08x" % f32(x)


def bf(x):
    u = f32(x)
    return ((u + 0x7fff + ((u >> 16) & 1)) >> 16) & 0xffff


def cs(num, den):
    num %= den
    c, s = math.cos(2 * math.pi * num / den), math.sin(2 * math.pi * num / den)
    return (0.0 if abs(c) < 1e-12 else c), (0.0 if abs(s) < 1e-12 else s)


def tables():
    T = []
    def blk(fn):
        for l in range(64):
            for i in range(4):
                T.append(fn(l & 15, l >> 4, i))
    pk = lambda lo, hi: bf(lo) | (bf(hi) << 16)
    blk(lambda n, q, i: pk(*cs((4 * q + i) * n, 16)))
    blk(lambda n, q, i: pk(-cs((4 * q + i) * n, 16)[1], cs((4 * q + i) * n, 16)[0]))
    for h in range(2):
        for k in range(2):
            blk(lambda n, q, i: f32(cs((2 * (4 * q + i) + h) * n, 512)[k]))
    for h in range(2):
        for tau in range(2):
            blk(lambda n, q, i: pk(*cs((2 * (4 * q + i) + h) * (16 * tau + n), 32)))
    return T


def gen(a, o):
    WS_BYTES = (16 << 20) if o.stamps else (4 << 20)

    def NT(bit):
        return " nt" if o.nt & bit else ""

    def stamp(k, end=False):
        if o.stamps and (not o.only or k == 0 or end or (o.only >> k) & 1):
            a(f"{'s_memtime' if o.stamps == 2 else 's_memrealtime'} s[{ST+2*k}:{ST+2*k+1}]")

    def dstamp(k, early):
        if bool(o.dbg) == early:
            stamp(k)

    def lg(n):
        a(f"s_waitcnt lgkmcnt({0 if o.stamps and o.only != 1 else n})")

    def fini(n):
        if o.stamps:
            a("s_mov_b64 exec, -1")
            a("s_waitcnt vmcnt(0) lgkmcnt(0)")
            stamp(n, True)
            a("s_waitcnt lgkmcnt(0)")
            for k in range(n + 1):
                a(f"v_writelane_b32 v250, s{ST+2*k}, {k}")
            a(f"s_mov_b32 s{T0}, {0x5a5a0000 | (n + 1):#x}")
            a(f"v_writelane_b32 v250, s{T0}, 15")
            a(f"s_lshl3_add_u32 s{T0}, s2, s3")
            a(f"s_lshl_b32 s{T0}, s{T0}, 6")
            a(f"s_add_u32 s{T0}, s{T0}, {WS_STAMP:#x}")
            a("v_lshlrev_b32 v251, 2, v0")
            a("s_mov_b64 exec, 0xffff")
            a(f"buffer_store_dword v250, v251, {R4(R_WS)}, s{T0} offen")
        a("s_endpgm")

    def retry(label, sleep=1):
        a(f"s_cbranch_vccz {label}_ok")
        if sleep:
            a(f"s_sleep {sleep}")
        a(f"s_sub_u32 s{SPIN}, s{SPIN}, 1")
        a(f"s_cbranch_scc0 {label}")
        a(f"s_mov_b32 s{SPIN}, 0")
        a.label(f"{label}_ok")

    def srds(epoch=True):
        a("s_waitcnt lgkmcnt(0)")
        if o.stamps:
            for k in range(2, 13):
                a(f"s_mov_b32 s{ST+2*k}, s{ST}")
        stamp(1)
        if o.base:
            a(f"s_add_u32 s30, s30, {o.base:#x}")
            a("s_addc_u32 s31, s31, 0")
        if epoch:
            a(f"s_load_dword s{TAG}, s[30:31], {WS_EPOCH}")
        a.srd(R_X, 4, 2 << 20)
        a.srd(R_WS, 30, WS_BYTES)

    def tag_ready():
        a("s_waitcnt lgkmcnt(0)")
        a(f"s_add_u32 s{TAG}, s{TAG}, 0x9e3779b9")
        a(f"s_bitcmp1_b32 s{TAG}, 0")
        a(f"s_cselect_b32 s{TB0}, 1, 0x10000")
        a(f"s_xor_b32 s{TB1}, s{TB0}, 0x10001")

    def tagv(v):
        a(f"v_mov_b32 v{v}, s{TB0}")
        a(f"v_mov_b32 v{v+1}, s{TB1}")
        a(f"v_mov_b32 v{v+2}, 0x00010001")

    def touch(items):
        if not o.tlb:
            return 0
        for k, (srd, off) in enumerate(items):
            a(f"v_mov_b32 v{252+k}, {off:#x}")
            a(f"buffer_load_dword v{252+k}, v{252+k}, {R4(srd)}, 0 offen")
        return len(items)

    def mtouch(ptrs):
        if not o.tlb:
            return 0
        a(f"v_mov_b32 v252, s{ptrs[0][0]}")
        a(f"v_mov_b32 v253, s{ptrs[0][0]+1}")
        for k, (p, off) in enumerate(ptrs[1:], 1):
            if off:
                a(f"s_add_u32 s{T3}, s{p}, {off:#x}")
                a(f"v_writelane_b32 v252, s{T3}, {k}")
                a(f"s_addc_u32 s{T3}, s{p+1}, 0")
                a(f"v_writelane_b32 v253, s{T3}, {k}")
            else:
                a(f"v_writelane_b32 v252, s{p}, {k}")
                a(f"v_writelane_b32 v253, s{p+1}, {k}")
        a(f"s_mov_b64 exec, {(1 << len(ptrs)) - 1:#x}")
        a("global_load_dword v254, v[252:253], off")
        a("s_mov_b64 exec, -1")
        return 1

    def sigmoid(d, s):
        a(f"v_mul_f32 v{d}, {LOG2E_N:#x}, v{s}")
        a(f"v_exp_f32 v{d}, v{d}")
        a(f"v_add_f32 v{d}, 1.0, v{d}")
        a(f"v_rcp_f32 v{d}, v{d}")

    def rbf(d):
        a(f"v_cvt_pk_bf16_f32 v{d}, v{d}, v{d}")
        a(f"v_and_b32 v{d}, 0xffff0000, v{d}")

    def keys_addr(b):
        a(f"s_and_b32 s15, s{REP}, {o.kr-1}")
        a(f"s_lshl_b32 s15, s15, 11")
        a(f"s_add_u32 s15, s15, {WS_KEY:#x}")
        a(f"v_lshlrev_b32 v{b+6}, 3, v0")
        a(f"v_lshlrev_b32 v{b+5}, 4, v0")

    def keys_issue(b):
        if o.kload & 1:
            a(f"buffer_load_dwordx4 {V(b,4)}, v{b+5}, {R4(R_WS)}, s15 offen sc1")
            return
        for r in range(4):
            a(f"v_mov_b32 v{b+r}, 0")
        a(f"buffer_atomic_or_x2 {V(b,2)}, v{b+6}, {R4(R_WS)}, s15 offen sc0 sc1")
        a(f"buffer_atomic_or_x2 {V(b+2,2)}, v{b+6}, {R4(R_WS)}, s15 offen offset:512 sc0 sc1")

    def keys_wait(b, issued=False):
        l = a.L("pk")
        if issued:
            a(f"s_branch {l}_w")
        a.label(l)
        keys_issue(b)
        a.label(f"{l}_w")
        a("s_waitcnt vmcnt(0)")
        a(f"v_xor_b32 v{b+1}, s{TAG}, v{b+1}")
        a(f"v_bitop3_b32 v{b+1}, v{b+3}, s{TAG}, v{b+1} bitop3:0xbe")
        a(f"v_cmp_ne_u32 vcc, 0, v{b+1}")
        a(f"v_max_u32 v{b}, v{b}, v{b+2}")
        retry(l, o.ksleep)
        for r in (8, 4, 2, 1):
            a(f"v_max_u32_dpp v{b}, v{b}, v{b} row_ror:{r} row_mask:0xf bank_mask:0xf")
        a(f"v_readlane_b32 s{SEL}, v{b}, 0")
        a(f"v_readlane_b32 s{T0}, v{b}, 16")
        a(f"v_readlane_b32 s{T1}, v{b}, 32")
        a(f"v_readlane_b32 s{T2}, v{b}, 48")
        a(f"s_max_u32 s{SEL}, s{SEL}, s{T0}")
        a(f"s_max_u32 s{T1}, s{T1}, s{T2}")
        a(f"s_max_u32 s{SEL}, s{SEL}, s{T1}")

    def keys_max(b):
        for r in (8, 4, 2, 1):
            a(f"v_max_u32_dpp v{b}, v{b}, v{b} row_ror:{r} row_mask:0xf bank_mask:0xf")
        a(f"v_readlane_b32 s{SEL}, v{b}, 0")
        a(f"v_readlane_b32 s{T0}, v{b}, 16")
        a(f"v_readlane_b32 s{T1}, v{b}, 32")
        a(f"v_readlane_b32 s{T2}, v{b}, 48")
        a(f"s_max_u32 s{SEL}, s{SEL}, s{T0}")
        a(f"s_max_u32 s{T1}, s{T1}, s{T2}")
        a(f"s_max_u32 s{SEL}, s{SEL}, s{T1}")

    def poll_pipe(name, K, issue, check, nv, done):
        for j in range(K):
            issue(j)
            if j < K - 1:
                a(f"s_sleep {o.psleep}")
        a.label(name)
        for j in range(K):
            a(f"s_waitcnt vmcnt({nv*(K-1)})")
            check(j)
            a(f"s_cbranch_vccz {name}_d{j}")
            issue(j)
        a(f"s_sub_u32 s{SPIN}, s{SPIN}, 1")
        a(f"s_cbranch_scc0 {name}")
        a("s_waitcnt vmcnt(0)")
        for j in range(K):
            a.label(f"{name}_d{j}")
            done(j)
            if j < K - 1:
                a(f"s_branch {name}_x")
        a.label(f"{name}_x")

    def keys_pipe(b, load, buf=80):
        def issue(j):
            c = buf + 4 * j
            if load:
                a(f"buffer_load_dwordx4 {V(c,4)}, v{b+5}, {R4(R_WS)}, s15 offen sc1")
                return
            for r in range(4):
                a(f"v_mov_b32 v{c+r}, 0")
            a(f"buffer_atomic_or_x2 {V(c,2)}, v{b+6}, {R4(R_WS)}, s15 offen sc0 sc1")
            a(f"buffer_atomic_or_x2 {V(c+2,2)}, v{b+6}, {R4(R_WS)}, s15 offen offset:512 sc0 sc1")
        def check(j):
            c = buf + 4 * j
            a(f"v_xor_b32 v{b+1}, s{TAG}, v{c+1}")
            a(f"v_bitop3_b32 v{b+1}, v{c+3}, s{TAG}, v{b+1} bitop3:0xbe")
            a(f"v_cmp_ne_u32 vcc, 0, v{b+1}")
        def done(j):
            c = buf + 4 * j
            a(f"v_max_u32 v{b}, v{c}, v{c+2}")
        poll_pipe(a.L("kp"), 1 if load else o.kp, issue, check, 1 if load else 2, done)
        for r in (8, 4, 2, 1):
            a(f"v_max_u32_dpp v{b}, v{b}, v{b} row_ror:{r} row_mask:0xf bank_mask:0xf")
        a(f"v_readlane_b32 s{SEL}, v{b}, 0")
        a(f"v_readlane_b32 s{T0}, v{b}, 16")
        a(f"v_readlane_b32 s{T1}, v{b}, 32")
        a(f"v_readlane_b32 s{T2}, v{b}, 48")
        a(f"s_max_u32 s{SEL}, s{SEL}, s{T0}")
        a(f"s_max_u32 s{T1}, s{T1}, s{T2}")
        a(f"s_max_u32 s{SEL}, s{SEL}, s{T1}")

    def fold4(x0, x1, x2, x3):
        a(f"v_permlane32_swap_b32 v{x0}, v{x1}")
        a(f"v_permlane32_swap_b32 v{x2}, v{x3}")
        a(f"v_add_f32 v{x0}, v{x0}, v{x1}")
        a(f"v_add_f32 v{x2}, v{x2}, v{x3}")
        a(f"v_permlane16_swap_b32 v{x0}, v{x2}")
        a(f"v_add_f32 v{x0}, v{x0}, v{x2}")

    def rowsum(x):
        for r in (8, 4, 2, 1):
            a(f"v_add_f32_dpp v{x}, v{x}, v{x} row_ror:{r} row_mask:0xf bank_mask:0xf")

    def cap(fn, *args):
        keep = a.lines
        a.lines = []
        fn(*args)
        out = [l.strip() for l in a.lines]
        a.lines = keep
        return out

    def weave(main, fill, every, first=0):
        fill = list(fill)
        for k, l in enumerate(main):
            if fill and k >= first and (k - first) % every == 0:
                a(fill.pop(0))
            a(l)
        for l in fill:
            a(l)

    def twpk(D, TC, TS, out, t=t):
        for p in range(2):
            a(f"v_pk_mul_f32 {V(t+2*p,2)}, {V(D+2*p,2)}, {V(TC+2*p,2)}")
            a(f"v_pk_mul_f32 {V(t+4+2*p,2)}, {V(D+4+2*p,2)}, {V(TC+2*p,2)}")
        for p in range(2):
            a(f"v_pk_fma_f32 {V(t+2*p,2)}, {V(D+4+2*p,2)}, {V(TS+2*p,2)}, {V(t+2*p,2)}")
            a(f"v_pk_fma_f32 {V(t+4+2*p,2)}, {V(D+2*p,2)}, {V(TS+2*p,2)}, {V(t+4+2*p,2)} neg_lo:[1,0,0] neg_hi:[1,0,0]")
        for i in range(4):
            a(f"v_cvt_pk_bf16_f32 v{out+i}, v{t+i}, v{t+4+i}")

    def tagcheck(first, n):
        a(f"v_xor_b32 v{t}, v{TGV}, v{first}")
        a(f"v_xor_b32 v{t+1}, v{TGV+1}, v{first+1}")
        for r in range(2, n):
            a(f"v_bitop3_b32 v{t+(r&1)}, v{first+r}, v{TGV+(r&1)}, v{t+(r&1)} bitop3:0xbe")
        a(f"v_bitop3_b32 v{t}, v{t}, v{t+1}, v{TGV+2} bitop3:0xa8")
        a(f"v_cmp_ne_u32 vcc, 0, v{t}")

    def dma_blocks(blks):
        a(f"s_lshl_b32 s{T0}, s{blks[0]}, 10")
        a(f"v_lshl_add_u32 v248, v0, 4, s{T0}")
        a(f"s_add_u32 m0, s{T0}, {L_TAB}")
        for k in blks[1]:
            a(f"global_load_lds_dwordx4 v248, s[{TABS}:{TABS+1}] offset:{k*1024}")

    def rotseq(base, step, outs):
        for i, (re, im) in enumerate(outs):
            a(f"v_cos_f32 v{t+6}, v{base}")
            a(f"v_sin_f32 v{t+7}, v{base}")
            if i < len(outs) - 1:
                a(f"v_add_f32 v{base}, v{base}, v{step}")
            a(f"v_cvt_pk_bf16_f32 v{re}, v{t+6}, v{t+7}")
            a(f"v_cvt_pk_bf16_f32 v{im}, -v{t+7}, v{t+6}")

    def a1consts(name):
        a(f"v_lshrrev_b32 v{t}, 1, v{VN}")
        a(f"v_lshlrev_b32 v{t}, 8, v{t}")
        a(f"v_add_u32 v{t}, s{PRM}, v{t}")
        a(f"v_and_b32 v{t+1}, 1, v{VN}")
        a(f"v_lshlrev_b32 v{t+2}, 1, v{VQ}")
        a(f"v_mul_u32_u24 v{t+2}, v{t+2}, v{t}")
        a(f"v_cmp_eq_u32 vcc, 0, v{t+1}")
        for i in range(2):
            a(f"v_and_b32 v{t+3}, 2047, v{t+2}")
            if i == 0:
                a(f"v_add_u32 v{t+2}, v{t+2}, v{t}")
            a(f"v_cvt_f32_u32 v{t+3}, v{t+3}")
            a(f"v_mul_f32 v{t+3}, {fhex(1/2048)}, v{t+3}")
            a(f"v_cos_f32 v{t+4}, v{t+3}")
            a(f"v_sin_f32 v{t+5}, v{t+3}")
            a(f"v_mul_f32 v{t+4}, 0.5, v{t+4}")
            a(f"v_mul_f32 v{t+5}, 0.5, v{t+5}")
            a(f"v_cndmask_b32_e64 v{t+6}, -v{t+5}, v{t+4}, vcc")
            a(f"v_cndmask_b32 v{t+7}, v{t+4}, v{t+5}, vcc")
            a(f"v_cvt_pk_bf16_f32 v{A1R+2*i}, v{t+6}, v{t+7}")
            a(f"v_cvt_pk_bf16_f32 v{A1I+2*i}, -v{t+7}, v{t+6}")
            a(f"v_cndmask_b32 v{t+6}, v{t+5}, v{t+4}, vcc")
            a(f"v_cndmask_b32_e64 v{t+7}, -v{t+4}, v{t+5}, vcc")
            a(f"v_cvt_pk_bf16_f32 v{A1R+2*i+1}, v{t+6}, -v{t+7}")
            a(f"v_cvt_pk_bf16_f32 v{A1I+2*i+1}, -v{t+7}, -v{t+6}")
            a(f"s_and_b32 s{T0}, s{PRM}, 127")
            a(f"s_cbranch_scc1 {name}_a1{i}")
            a(f"v_add_f32 v{t+4}, v{t+4}, v{t+4}")
            a(f"v_add_f32 v{t+5}, v{t+5}, v{t+5}")
            a(f"v_cndmask_b32 v{t+6}, 0, v{t+4}, vcc")
            a(f"v_sub_f32 v{t+7}, v{t+4}, v{t+6}")
            a(f"v_cvt_pk_bf16_f32 v{t+4}, v{t+6}, v{t+7}")
            a(f"v_cndmask_b32 v{t+6}, 0, v{t+5}, vcc")
            a(f"v_sub_f32 v{t+7}, v{t+5}, v{t+6}")
            a(f"v_cvt_pk_bf16_f32 v{t+5}, -v{t+6}, -v{t+7}")
            a(f"s_cmp_eq_u32 s{PRM}, 0")
            a(f"s_cselect_b32 s{T0}, -1, 0")
            a(f"s_cselect_b32 s{T1}, 0, -1")
            a(f"v_and_b32 v{A1R+2*i}, s{T0}, v{t+4}")
            a(f"v_and_b32 v{A1I+2*i}, s{T0}, v{t+5}")
            a(f"v_and_b32 v{A1R+2*i+1}, s{T1}, v{t+4}")
            a(f"v_and_b32 v{A1I+2*i+1}, s{T1}, v{t+5}")
            a.label(f"{name}_a1{i}")

    def p2addr():
        a(f"v_lshlrev_b32 v5, 12, v{VQ}")
        a(f"v_lshl_add_u32 v5, v{VN}, 4, v5")
        a(f"v_lshrrev_b32 v{t}, 2, v{VN}")
        a(f"v_xor_b32 v{t}, v{t}, v{VQ}")
        a(f"v_and_b32 v{t}, 1, v{t}")
        a(f"v_bfe_u32 v{t+1}, v{VN}, 1, 1")
        a(f"v_lshl_or_b32 v{t}, v{t}, 1, v{t+1}")
        a(f"s_lshr_b32 s{T0}, s3, 1")
        a(f"v_xor_b32 v{t}, s{T0}, v{t}")
        a(f"v_lshlrev_b32 v{t}, 4, v{t}")
        a(f"v_and_b32 v{t+2}, 7, v{VN}")
        a(f"v_lshl_add_u32 v{t}, v{t+2}, 6, v{t}")
        a(f"v_lshl_add_u32 v{t}, v{VQ}, 12, v{t}")
        a(f"v_lshrrev_b32 v{t+2}, 3, v{VN}")
        a(f"v_lshl_add_u32 v{t}, v{t+2}, 2, v{t}")
        a(f"s_and_b32 s{T0}, s3, 1")
        a(f"s_lshl_b32 s{T0}, s{T0}, 3")
        a(f"s_add_u32 s{T0}, s{T0}, {L_X2}")
        a(f"v_add_u32 v6, s{T0}, v{t}")
        a(f"v_xor_b32 v7, 48, v6")
        a(f"v_bfe_u32 v{t}, v{VN}, 2, 1")
        a(f"v_xor_b32 v{t}, v{t}, v{t+2}")
        a(f"v_lshl_or_b32 v{t}, v{t}, 1, v{t+2}")
        a(f"v_xor_b32 v{t}, v{t}, v{t+1}")
        a(f"v_xor_b32 v{t}, v{t}, v{VQ}")
        a(f"v_lshlrev_b32 v{t}, 4, v{t}")
        a(f"v_lshl_add_u32 v62, v{VN}, 6, v{t}")

    def p2read_addr(t0):
        a(f"s_lshl_b32 s{T0}, s{t0}, 4")
        a(f"s_and_b32 s{T0}, s{T0}, 32")
        a(f"v_xor_b32 v62, s{T0}, v62")
        a(f"s_lshl_b32 s{T0}, s{t0}, 11")
        a(f"s_add_u32 s{T0}, s{T0}, {L_X2}")
        a(f"v_add_u32 v62, s{T0}, v62")

    def rowoff():
        a(f"v_lshlrev_b32 v4, 5, v{VN}")
        a(f"v_and_b32 v{t}, 1, v{VQ}")
        a(f"v_lshl_add_u32 v4, v{t}, 9, v4")
        a(f"v_lshrrev_b32 v{t}, 1, v{VQ}")
        a(f"v_lshl_add_u32 v4, v{t}, 4, v4")

    def p_issue():
        for i in range(2):
            a(f"buffer_load_dwordx4 {V(8+4*i,4)}, v5, {R4(R_WS)}, s14 offen offset:{2048*i} sc1")

    def c1(name):
        a(f"s_branch {name}_pw")
        a.label(f"{name}_pl")
        p_issue()
        a.label(f"{name}_pw")
        a("s_waitcnt vmcnt(0)")
        a("v_swap_b32 v10, v12")
        a("v_swap_b32 v11, v13")
        mf = []
        for c in range(2):
            mf.append(f"{MF} {V(D1+8*c,4)}, {V(A1R,4)}, {V(8+4*c,4)}, 0")
            mf.append(f"{MF} {V(D1+8*c+4,4)}, {V(A1I,4)}, {V(8+4*c,4)}, 0")
        weave(cap(tagcheck, 8, 8), mf, 2, 2)
        retry(f"{name}_pl")
        stamp(6)
        for c in range(2):
            for i in range(4):
                a(f"v_cvt_pk_bf16_f32 v{16+4*c+i}, v{D1+8*c+i}, v{D1+8*c+4+i}")
                if i & 1:
                    a(f"ds_write2st64_b32 v{6+c}, v{16+4*c+i-1}, v{16+4*c+i} offset0:{4*(i-1)+2*c} offset1:{4*i+2*c}")

    a("s_cmp_ge_u32 s2, 256")
    a("s_cbranch_scc1 L_end")
    stamp(0)
    a(f"s_load_dwordx2 s[4:5], s[0:1], {KA_X}")
    a(f"s_load_dwordx16 s[16:31], s[0:1], {KA_WR}")
    a(f"s_getpc_b64 s[{TABS}:{TABS+1}]")
    a.label("L_pc")
    a("v_lshrrev_b32 v1, 6, v0")
    a(f"s_lshr_b32 s{KK}, s2, 3")
    if o.cpf:
        a(f"v_lshl_add_u32 v4, v0, 5, s{KK}")
        a("v_lshlrev_b32 v4, 7, v4")
        a(f"v_cmp_gt_u32 vcc, L_tabend - L_pc, v4")
        a("s_and_saveexec_b64 s[12:13], vcc")
        a("s_cbranch_execz L_nocpf")
        a(f"global_load_dword v249, v4, s[{TABS}:{TABS+1}]")
        a.label("L_nocpf")
        a("s_mov_b64 exec, s[12:13]")
    a("v_and_b32 v0, 63, v0")
    a("v_readfirstlane_b32 s3, v1")
    a(f"v_and_b32 v{VN}, 15, v0")
    a(f"v_lshrrev_b32 v{VQ}, 4, v0")
    a(f"v_lshlrev_b32 v{KA}, 4, v0")
    a(f"v_lshlrev_b32 v246, 3, v0")
    a(f"s_add_u32 s{TABS}, s{TABS}, L_tab - L_pc")
    a(f"s_addc_u32 s{TABS+1}, s{TABS+1}, 0")
    a(f"s_and_b32 s{XC}, s2, 7")
    a(f"s_mov_b32 s{SPIN}, 400000")
    a(f"s_cmp_lt_u32 s{KK}, 16")
    a("s_cbranch_scc1 L_low")

    A2, A2X, SF, DS, XY, OUT = 112, 128, 52, 64, 96, 80

    def s2consts(nm, special):
        a(f"s_xor_b32 s{WSEL}, s3, 4")
        a(f"v_lshl_add_u32 v{t}, v{VN}, 4, s{WSEL}")
        if special:
            a(f"s_cmp_eq_u32 s{WSEL}, 0")
            a(f"s_cselect_b32 s{T0}, 120, 0")
            a(f"v_subrev_u32 v{t+2}, s{T0}, v{t}")
            a(f"v_cmp_gt_u32 vcc, 8, v{VN}")
            a(f"v_cndmask_b32 v{t}, v{t+2}, v{t}, vcc")
        a(f"v_lshlrev_b32 v{t+2}, 2, v{VQ}")
        a(f"v_cvt_f32_u32 v{t+2}, v{t+2}")
        a(f"v_cvt_f32_u32 v{t}, v{t}")
        a(f"v_mul_f32 v{t}, {fhex(1/256)}, v{t}")
        a(f"v_mul_f32 v{t+3}, v{t+2}, v{t}")
        rotseq(t + 3, t, [(A2 + i, A2 + 4 + i) for i in range(4)])
        a(f"v_mov_b32 v{t}, 0x80000000")
        a(f"v_mov_b32 v{t+1}, 0x8000")
        for i in range(4):
            a(f"v_xor_b32 v{A2+8+i}, v{t}, v{A2+i}")
            a(f"v_xor_b32 v{A2+12+i}, v{t+1}, v{A2+4+i}")
        if special:
            a(f"s_cmp_lg_u32 s{WSEL}, 0")
            a(f"s_cbranch_scc1 {nm}_e")
            a("s_mov_b32 exec_lo, 0x10001")
            a("s_mov_b32 exec_hi, 0x10001")
            for i in (1, 3):
                a(f"v_mov_b32 v{A2+8+i}, 0xbf80")
                a(f"v_mov_b32 v{A2+12+i}, 0xbf800000")
            a("s_mov_b64 exec, -1")
            for k in range(8):
                a(f"v_cndmask_b32_e64 v{A2X+k}, v{A2+k}, 0, vcc")
                a(f"v_cndmask_b32 v{A2+k}, 0, v{A2+k}, vcc")
                a(f"v_cndmask_b32 v{A2X+8+k}, 0, v{A2+8+k}, vcc")
                a(f"v_cndmask_b32_e64 v{A2+8+k}, v{A2+8+k}, 0, vcc")
            a.label(f"{nm}_e")
        a(f"s_sub_u32 s{T0}, 16, s{WSEL}")
        a(f"s_cmp_eq_u32 s{WSEL}, 0")
        a(f"s_cselect_b32 s{T0}, 8, s{T0}")
        a(f"v_bfe_u32 v{t}, v{VN}, 2, 1")
        a(f"v_xor_b32 v{t}, v{t}, v{VN}")
        a(f"v_lshrrev_b32 v{t+1}, 3, v{VN}")
        a(f"v_mul_u32_u24 v{t+2}, 3, v{t+1}")
        a(f"v_xor_b32 v{t+2}, v{t+2}, v{VQ}")
        a(f"v_lshlrev_b32 v{t+2}, 4, v{t+2}")
        a(f"v_lshl_add_u32 v{t}, v{t}, 6, v{t+2}")
        for k, al in enumerate((WSEL, T0)):
            a(f"s_lshl_b32 s{T1}, s{al}, 3")
            a(f"s_and_b32 s{T1}, s{T1}, 32")
            a(f"s_lshl_b32 s{T2}, s{al}, 10")
            a(f"s_or_b32 s{T1}, s{T1}, s{T2}")
            a(f"v_xor_b32 v{60+k}, s{T1}, v{t}")
        a(f"v_lshlrev_b32 v63, 16, v{VQ}")
        a(f"v_lshl_add_u32 v63, v{t+1}, 14, v63")
        a(f"v_and_b32 v{t}, 7, v{VN}")
        a(f"v_lshl_add_u32 v63, v{t}, 4, v63")
        a(f"s_lshl_b32 s6, s{WSEL}, 18")
        a(f"s_lshl_b32 s{T1}, s{XC}, 11")
        a(f"s_add_u32 s6, s6, s{T1}")
        a(f"s_lshl_b32 s{T1}, s{KK}, 7")
        a(f"s_add_u32 s6, s6, s{T1}")
        a(f"s_add_u32 s6, s6, {WS_P:#x}")
        a(f"s_add_u32 s7, s6, 32768")
        rowoff()
        a(f"s_lshl_b32 s{T0}, s3, 8")
        a(f"s_add_u32 s{ROWA}, s{T0}, s{PRM}")
        a(f"s_sub_u32 s{ROWB}, 2048, s{ROWA}")
        a(f"s_and_b32 s{ROWB}, s{ROWB}, 2047")
        a.srd(R_B, 24, 1024)

    def own_rows():
        a(f"s_lshl_b32 s12, s{ROWA}, 10")
        a(f"s_lshl_b32 s13, s{ROWB}, 10")
        for rho in range(2):
            a(f"buffer_load_dwordx4 {V(XR2+4*rho,4)}, v4, {R4(R_X)}, s{12+rho} offen")
        a(f"buffer_load_dwordx4 {V(GW2,4)}, v4, {R4(R_B)}, 0 offen")

    def p2prep(nm, addr=True):
        a1consts(nm)
        if addr:
            p2addr()
            p2read_addr(3)
        a(f"s_lshl_b32 s14, s{SLOT}, 14")
        a(f"s_lshl_b32 s{T0}, s3, 8")
        a(f"s_add_u32 s14, s14, s{T0}")
        a(f"s_add_u32 s14, s14, {WS_P:#x}")
        a.srd(R_OUT, 26, 2 << 20)

    a(f"s_sub_u32 s{KK}, s{KK}, 16")
    a(f"s_lshl4_add_u32 s{SLOT}, s{XC}, s{KK}")
    a(f"s_lshl4_add_u32 s{PRM}, s{KK}, s{XC}")
    a(f"s_sub_u32 s{T2}, s{PRM}, 120")
    a(f"s_cmp_lt_u32 s{SLOT}, 8")
    a(f"s_cselect_b32 s{T2}, s{PRM}, s{T2}")
    a(f"s_cmp_lt_u32 s{SLOT}, 16")
    a(f"s_cselect_b32 s{PRM}, s{T2}, s{PRM}")
    a.label("L_a")
    a("s_cmp_ge_u32 s3, 4")
    a("s_cbranch_scc1 L_p1w")
    RW, WR, DT, RID = 8, 24, 32, 36
    a(f"s_lshl2_add_u32 s{T0}, s{KK}, s3")
    a(f"s_lshl_b32 s{T0}, s{T0}, 5")
    a(f"s_add_u32 s{T0}, s{T0}, s{XC}")
    a(f"s_lshl_b32 s12, s{T0}, 10")
    a(f"s_cmp_eq_u32 s{PRM}, 128")
    a(f"s_cselect_b32 s12, 0x40000000, s12")
    for k in range(1, 4):
        a(f"s_add_u32 s{12+k}, s12, {8192*k}")
    srds()
    for k in range(4):
        a(f"buffer_load_dwordx4 {V(RW+4*k,4)}, v{KA}, {R4(R_X)}, s{12+k} offen")
    a.srd(R_A, 16, 1024)
    a(f"buffer_load_dwordx4 {V(WR,4)}, v{KA}, {R4(R_A)}, 0 offen")
    a(f"v_and_b32 v{RID}, 1, v{VQ}")
    a(f"v_lshrrev_b32 v108, 1, v{VQ}")
    a(f"v_lshl_add_u32 v{RID}, v{RID}, 1, v108")
    a(f"v_lshl_add_u32 v{RID}, v{RID}, 3, s{T0}")
    a(f"v_mov_b32 v108, {L_KEY}")
    a(f"s_mov_b32 s{RS}, 0xfffff800")
    a(f"s_lshl3_add_u32 s15, s{KK}, s{XC}")
    a(f"s_lshl_b32 s15, s15, 3")
    a(f"s_add_u32 s15, s15, {WS_KEY:#x}")
    a("v_lshlrev_b32 v37, 11, v0")
    if o.nob0:
        a("s_barrier")
    if o.rpre:
        s2consts("L_sr", False)
    dstamp(9, True)
    a(f"s_waitcnt vmcnt(1)")
    stamp(2)
    if o.nob0:
        a("s_mov_b64 exec, 1")
        a("ds_add_u32 v108, v109 offset:12")
        a("s_mov_b64 exec, -1")
    else:
        a("s_barrier")
    a(f"s_waitcnt vmcnt(0)")
    stamp(3)
    for k in range(4):
        for r in range(4):
            a(f"v_dot2_f32_bf16 v{DT+r}, v{RW+4*r+k}, v{WR+k}, {('v%d' % (DT+r)) if k else 0}")
    tag_ready()
    fold4(DT, DT + 1, DT + 2, DT + 3)
    a(f"v_mov_b32 v39, s{TAG}")
    rowsum(DT)
    a(f"v_ashrrev_i32 v{DT+1}, 31, v{DT}")
    a(f"v_or_b32 v{DT+1}, 0x80000000, v{DT+1}")
    a(f"v_xor_b32 v{DT+1}, v{DT+1}, v{DT}")
    a(f"v_and_or_b32 v{DT+1}, v{DT+1}, s{RS}, v{RID}")
    a("s_mov_b32 exec_lo, 0x10001")
    a("s_mov_b32 exec_hi, 0x10001")
    if o.safe == 3:
        a(f"ds_max_u32 v108, v{DT+1}")
        a("s_mov_b64 exec, -1")
        a("s_waitcnt lgkmcnt(0)")
        a("s_barrier")
        a("s_cmp_lg_u32 s3, 0")
        a("s_cbranch_scc1 L_b1a")
        a("ds_read_b32 v38, v108")
        a("s_waitcnt lgkmcnt(0)")
    else:
        a(f"ds_max_u32 v108, v{DT+1}")
        a("s_mov_b64 exec, 1")
        a("s_waitcnt lgkmcnt(0)")
        a(f"ds_add_rtn_u32 v{DT+2}, v108, v109 offset:4")
        a("s_mov_b64 exec, -1")
        if o.safe < 2:
            a("ds_read_b32 v38, v108")
        a("s_waitcnt lgkmcnt(0)")
        a(f"v_readfirstlane_b32 s{T1}, v{DT+2}")
        a(f"s_cmp_lg_u32 s{T1}, 3")
        a("s_cbranch_scc1 L_b1a")
        if o.safe == 2:
            a("ds_read_b32 v38, v108")
            a("s_waitcnt lgkmcnt(0)")
    a(f"s_cmp_eq_u32 s{PRM}, 128")
    a("s_cbranch_scc1 L_b1a")
    if o.kr < 64:
        a(f"s_mov_b64 exec, {(1 << o.kr) - 1:#x}")
    a(f"buffer_store_dwordx2 v[38:39], v37, {R4(R_WS)}, s15 offen sc1")
    a("s_mov_b64 exec, -1")
    a.label("L_b1a")
    dstamp(10, True)
    a(f"s_lshl_b32 s{T3}, s3, 1")
    dma_blocks((T3, (0, 1)))
    a(f"s_and_b32 s{T3}, s3, 1")
    a(f"s_add_u32 s{T3}, s{T3}, 8")
    dma_blocks((T3, (0,)))
    if not o.rpre:
        s2consts("L_sr", False)
    own_rows()
    tagv(TGV)
    a("s_branch L_b1")

    LD, FR, F0R, F0I, WA, D = 8, 24, 40, 44, 48, 64
    a.label("L_p1w")
    if o.prio & 1:
        a("s_setprio 2")
    a(f"s_sub_u32 s{RHO}, s3, 4")
    if o.nob0:
        a(f"v_mov_b32 v110, {L_KEY}")
        for r in range(4):
            a(f"v_mov_b32 v{t+r}, 0")
        a(f"ds_write_b128 v110, {V(t,4)}")
        a("s_waitcnt lgkmcnt(0)")
        a("s_barrier")
    if o.apf:
        a(f"s_lshl_b32 s{T0}, s{XC}, 2")
        a(f"s_mul_i32 s{T1}, s{XC}, 3")
        a(f"s_add_u32 s{T1}, s{T1}, 4")
        a(f"s_cmp_lt_u32 s{XC}, 4")
        a(f"s_cselect_b32 s{T0}, s{T0}, s{T1}")
        a(f"s_cselect_b32 s{T1}, 16, 12")
        a(f"s_cmp_ge_u32 s{KK}, s{T1}")
        a(f"s_cselect_b32 s{T3}, 8, s{RHO}")
        a(f"s_lshr_b32 s{T1}, s{KK}, 2")
        a(f"s_add_u32 s{T0}, s{T0}, s{T1}")
        a(f"s_lshl_b32 s6, s{T0}, 7")
        a(f"s_and_b32 s{T1}, s{KK}, 3")
        a(f"s_mul_i32 s{T1}, s{T1}, {o.apf}")
        a(f"s_add_u32 s{T1}, s{T1}, s{RHO}")
        a(f"s_lshl_b32 s{T1}, s{T1}, 5")
        a(f"s_add_u32 s{T1}, s{T1}, {512 - 128*o.apf}")
        a(f"v_lshrrev_b32 v{t+4}, 1, v0")
        a(f"v_add_u32 v{t+4}, s{T1}, v{t+4}")
        a(f"v_mul_u32_u24 v{t+4}, 3584, v{t+4}")
        a(f"v_and_b32 v{t+5}, 1, v0")
        a(f"v_lshl_add_u32 v{t+4}, v{t+5}, 6, v{t+4}")
        a("s_waitcnt lgkmcnt(0)")
        a.srd(R_C, 18, 512 * 3584)
        a(f"s_cmp_ge_u32 s{T3}, {o.apf}")
        a("s_cbranch_scc1 L_noapf")
        a(f"buffer_load_dword v255, v{t+4}, {R4(R_C)}, s6 offen")
        a.label("L_noapf")
    srds(False)
    if o.tlb & 1:
        a("s_cmp_lg_u32 s3, 7")
        a("s_cbranch_scc1 L_nomt")
        mtouch([(16, 0), (24, 0), (26, 0), (30, 0x3000), (30, WS_P + 0x3000)])
        a.label("L_nomt")
    a(f"v_lshlrev_b32 v107, 19, v{VQ}")
    a(f"v_bfe_u32 v108, v0, 2, 2")
    a(f"v_lshl_add_u32 v107, v108, 13, v107")
    a(f"v_and_b32 v109, 3, v0")
    a(f"v_lshl_add_u32 v107, v109, 4, v107")
    if not o.nob0:
        a(f"v_mov_b32 v{t}, {L_KEY}")
        a(f"v_mov_b32 v{t+2}, 0")
        a(f"v_mov_b32 v{t+3}, 0")
        a(f"ds_write_b64 v{t}, {V(t+2,2)}")
    a(f"v_lshlrev_b32 v{t}, 2, v{VQ}")
    a(f"v_cvt_f32_u32 v{t}, v{t}")
    a(f"v_cvt_f32_u32 v{t+1}, v{VN}")
    a(f"v_mul_f32 v{t+1}, {fhex(1/16)}, v{t+1}")
    a(f"v_mul_f32 v{t}, v{t}, v{t+1}")
    rotseq(t, t + 1, [(F0R + i, F0I + i) for i in range(4)])
    a(f"v_lshrrev_b32 v{t}, 1, v109")
    a(f"v_mul_u32_u24 v{t}, 3, v{t}")
    a(f"v_lshlrev_b32 v{t+1}, 1, v{VQ}")
    a(f"v_and_b32 v{t+1}, 2, v{t+1}")
    a(f"v_xor_b32 v{t}, v{t}, v{t+1}")
    a(f"v_xor_b32 v{t}, s{RHO}, v{t}")
    a(f"v_lshl_add_u32 v{t}, v{t}, 2, v108")
    a(f"v_lshlrev_b32 v{t}, 2, v{t}")
    a(f"v_lshl_add_u32 v{t}, v109, 8, v{t}")
    a(f"v_lshl_add_u32 v{t}, v{VQ}, 12, v{t}")
    a(f"v_and_b32 v{t+1}, 1, v109")
    a(f"v_lshl_add_u32 v{WA}, v{t+1}, 6, v{t}")
    a(f"v_xor_b32 v{WA+1}, 64, v{WA}")
    a(f"v_add_u32 v{WA+2}, 128, v{WA}")
    a(f"v_add_u32 v{WA+3}, 128, v{WA+1}")
    s2consts("L_sp", True)
    a(f"s_lshl_b32 s12, s{RHO}, 15")
    a(f"s_lshl_b32 s{T1}, s{XC}, 10")
    a(f"s_add_u32 s12, s12, s{T1}")
    a(f"s_lshl_b32 s{T1}, s{KK}, 6")
    a(f"s_add_u32 s12, s12, s{T1}")
    a(f"s_cmp_eq_u32 s{PRM}, 128")
    a(f"s_cselect_b32 s12, 0x40000000, s12")
    for i in range(1, 4):
        a(f"s_add_u32 s{12+i}, s12, {i*131072}")
    a("s_waitcnt lgkmcnt(0)")
    stamp(2)
    if o.prio & 1:
        a("s_setprio 0")
    if o.nob0:
        a.label("L_tw")
        a("ds_read_b32 v111, v110 offset:12")
        a("s_waitcnt lgkmcnt(0)")
        a(f"v_cmp_gt_u32 vcc, 4, v111")
        retry("L_tw", 1)
    else:
        a("s_barrier")
    for i in range(4):
        a(f"buffer_load_dwordx4 {V(LD+4*i,4)}, v107, {R4(R_X)}, s{12+i} offen")
    a(f"s_load_dword s{TAG}, s[30:31], {WS_EPOCH}")
    own_rows()
    a(f"s_lshr_b32 s15, s{SLOT}, 2")
    a(f"s_add_u32 s15, s15, 32")
    a(f"s_and_b32 s15, s15, {o.kr - 1}")
    a(f"s_lshl_b32 s15, s15, 11")
    a(f"s_add_u32 s15, s15, {WS_KEY:#x}")
    tag_ready()
    tagv(TGV)
    dstamp(10, True)
    if o.prio & 2:
        a("s_setprio 2")
    if o.safe == 3:
        a("s_barrier")
    a(f"s_waitcnt vmcnt(3)")
    stamp(3)
    for c in range(4):
        for i in range(2):
            b = 2 * (c >> 1)
            a(f"v_pk_mov_b32 {V(FR+4*c+2*i,2)}, {V(LD+8*i+b,2)}, {V(LD+8*i+4+b,2)} op_sel:[{c&1},{c&1}]")
        if c:
            a(f"{MF} {V(D+8*(c-1),4)}, {V(F0R,4)}, {V(FR+4*(c-1),4)}, 0")
            a(f"{MF} {V(D+8*(c-1)+4,4)}, {V(F0I,4)}, {V(FR+4*(c-1),4)}, 0")

    def s1out(c):
        for i in range(4):
            a(f"v_cvt_pk_bf16_f32 v{LD+4*c+i}, v{D+8*c+i}, v{D+8*c+4+i}")
            if i & 1:
                a(f"ds_write2st64_b32 v{WA+c}, v{LD+4*c+i-1}, v{LD+4*c+i} offset0:{4*(i-1)} offset1:{4*i}")
    weave(cap(s1out, 0), [f"{MF} {V(D+24,4)}, {V(F0R,4)}, {V(FR+12,4)}, 0", f"{MF} {V(D+28,4)}, {V(F0I,4)}, {V(FR+12,4)}, 0"], 2)
    for c in range(1, 4):
        s1out(c)
    a(f"s_waitcnt lgkmcnt(0)")
    a.label("L_b1")
    stamp(4)
    a("s_barrier")
    def kpoll():
        l = a.L("kq")
        a("s_cmp_lg_u32 s3, 7")
        a(f"s_cbranch_scc1 {l}")
        a(f"buffer_load_dwordx4 v{KA}, {R4(R_WS)}, s15 offen sc1 lds")
        a.label(l)
    a(f"s_cmp_eq_u32 s{PRM}, 128")
    a("s_cbranch_scc1 L_ack128")
    for al in range(2):
        a(f"ds_read_b128 {V(SF+4*al,4)}, v{60+al}")
    KB = 184
    if o.kat:
        a("s_cmp_lg_u32 s3, 7")
        a("s_cbranch_scc1 L_ka")
        a(f"buffer_atomic_or_x2 {V(KB,2)}, v246, {R4(R_WS)}, s15 offen sc0 sc1")
        a(f"buffer_atomic_or_x2 {V(KB+2,2)}, v246, {R4(R_WS)}, s15 offen offset:512 sc0 sc1")
        a.label("L_ka")
    a("s_mov_b32 vcc_lo, 0x00ff00ff")
    a("s_mov_b32 vcc_hi, 0x00ff00ff")
    for al in range(2):
        lg(1 - al)
        a(f"{MF} {V(DS+8*al,4)}, {V(A2+8*al,4)}, {V(SF+4*al,4)}, 0")
        a(f"{MF} {V(DS+8*al+4,4)}, {V(A2+8*al+4,4)}, {V(SF+4*al,4)}, 0")
    a(f"s_cmp_lg_u32 s{WSEL}, 0")
    a("s_cbranch_scc1 L_s2b")
    for al in range(2):
        a(f"{MF} {V(DS+8*al,4)}, {V(A2X+8*al,4)}, {V(SF+4*(1-al),4)}, {V(DS+8*al,4)}")
        a(f"{MF} {V(DS+8*al+4,4)}, {V(A2X+8*al+4,4)}, {V(SF+4*(1-al),4)}, {V(DS+8*al+4,4)}")
    a.label("L_s2b")
    for p in range(2):
        for al in range(2):
            for i in (2 * p, 2 * p + 1):
                a(f"v_cvt_pk_bf16_f32 v{XY+4*al+i}, v{DS+8*al+i}, v{DS+8*al+4+i}")
        for al in range(2):
            for i in (2 * p, 2 * p + 1):
                a(f"v_bitop3_b32 v{XY+4*al+i}, v{TGV+2}, v{TGV+al}, v{XY+4*al+i} bitop3:0xca")
        lo = [f"v_cndmask_b32_dpp v{OUT+4*p+al}, v{XY+4*al+2*p+1}, v{XY+4*al+2*p}, vcc row_ror:8 row_mask:0xf bank_mask:0xf" for al in range(2)]
        hi = [f"v_cndmask_b32_dpp v{OUT+4*p+2+al}, v{XY+4*al+2*p}, v{XY+4*al+2*p+1}, vcc row_ror:8 row_mask:0xf bank_mask:0xf" for al in range(2)]
        for l in (lo if p == 0 else hi):
            a(l)
        a("s_not_b64 vcc, vcc")
        for l in (hi if p == 0 else lo):
            a(l)
        a(f"buffer_store_dwordx4 {V(OUT+4*p,4)}, v63, {R4(R_WS)}, s{6+p} offen sc1")
    a.label("L_nos2")
    stamp(5)
    p2prep("L_ac")
    a("s_waitcnt vmcnt(2)")
    a(f"s_cmp_lg_u32 s{PRM}, 128")
    a("s_cbranch_scc1 L_a7")
    a("s_waitcnt vmcnt(0)")
    a.label("L_a7")
    for k in range(4):
        for rho in range(2):
            a(f"v_dot2_f32_bf16 v{110+rho}, v{XR2+4*rho+k}, v{GW2+k}, {('v%d' % (110+rho)) if k else 0}")
    for rho in range(2):
        for k in range(2):
            a(f"v_permlane16_swap_b32 v{XR2+4*rho+k}, v{XR2+4*rho+2+k}")
    a("v_permlane32_swap_b32 v110, v111")
    a("v_add_f32 v110, v110, v111")
    a("v_mov_b32 v111, v110")
    a("v_permlane16_swap_b32 v110, v111")
    a("v_add_f32 v110, v110, v111")
    xg = []
    for rho in range(2):
        for k in range(4):
            x = XR2 + 4 * rho + k
            d = XG + 8 * rho + 2 * k
            xg.append(f"v_lshlrev_b32 v{d}, 16, v{x}")
            xg.append(f"v_and_b32 v{d+1}, 0xffff0000, v{x}")
    for l in cap(rowsum, 110) + cap(sigmoid, 110, 110):
        a(l)
        for k in range(2):
            if xg:
                a(xg.pop(0))
    a("v_mov_b32 v111, v110")
    a("v_permlane32_swap_b32 v110, v111")
    a(f"v_sub_f32 v{t}, 1.0, v110")
    a(f"v_sub_f32 v{t+1}, 1.0, v111")
    for rho in range(2):
        for k in range(4):
            d = XG + 8 * rho + 2 * k
            a(f"v_pk_mul_f32 {V(d,2)}, {V(d,2)}, {V(t,2)} op_sel:[0,{rho}] op_sel_hi:[1,{rho}]")
    a(f"v_mov_b32 v109, {L_SEL}")
    a("s_cmp_lg_u32 s3, 7")
    a("s_cbranch_scc1 L_a5")
    if o.kat:
        a(f"s_cmp_eq_u32 s{PRM}, 128")
        a("s_cbranch_scc1 L_kd0")
        a("s_waitcnt vmcnt(2)")
        a(f"v_xor_b32 v{PB+1}, s{TAG}, v{KB+1}")
        a(f"v_bitop3_b32 v{PB+1}, v{KB+3}, s{TAG}, v{PB+1} bitop3:0xbe")
        a(f"v_cmp_ne_u32 vcc, 0, v{PB+1}")
        a(f"v_max_u32 v{PB}, v{KB}, v{KB+2}")
        a("s_cbranch_vccz L_kd_ok")
        a.label("L_kd0")
    if o.kack:
        a(f"s_waitcnt vmcnt({o.kack - 1})")
    a.label("L_kd")
    a(f"buffer_load_dwordx4 {V(PB,4)}, v{KA}, {R4(R_WS)}, s15 offen sc1")
    a("s_waitcnt vmcnt(0)")
    a(f"v_xor_b32 v{PB+1}, s{TAG}, v{PB+1}")
    a(f"v_bitop3_b32 v{PB+1}, v{PB+3}, s{TAG}, v{PB+1} bitop3:0xbe")
    a(f"v_cmp_ne_u32 vcc, 0, v{PB+1}")
    a(f"v_max_u32 v{PB}, v{PB}, v{PB+2}")
    retry("L_kd", o.kdma)
    keys_max(PB)
    a(f"s_and_b32 s{SEL}, s{SEL}, 2047")
    a(f"v_mov_b32 v108, s{SEL}")
    a("ds_write_b32 v109, v108")
    a("s_waitcnt lgkmcnt(0)")
    a.label("L_a5")
    dstamp(10, False)
    a("s_barrier")
    dstamp(11, False)
    p_issue()
    a("ds_read_b32 v109, v109")
    for k in range(4):
        a(f"ds_read_b128 {V(TW+16+4*k,4)}, v{KA} offset:{L_TAB+2048+1024*k}")
    a(f"ds_read_b128 {V(FRE,4)}, v{KA} offset:{L_TAB}")
    a(f"ds_read_b128 {V(FIM,4)}, v{KA} offset:{L_TAB+1024}")
    for k in range(4):
        a(f"ds_read_b128 {V(B3+4*k,4)}, v{KA} offset:{L_TAB+6144+1024*k}")
    a("s_waitcnt lgkmcnt(0)")
    a(f"v_readfirstlane_b32 s{SEL}, v109")
    for k in range(8):
        a(f"v_pk_mul_f32 {V(TW+2*k,2)}, {V(TW+16+2*k,2)}, v[110:111] op_sel:[0,0] op_sel_hi:[1,0]")
    for k in range(8):
        a(f"v_pk_mul_f32 {V(TW+16+2*k,2)}, {V(TW+16+2*k,2)}, v[110:111] op_sel:[0,1] op_sel_hi:[1,1]")
    a(f"v_mov_b32 v{t}, 0x80000000")
    for i in range(4):
        a(f"v_xor_b32 v{FRC+i}, v{t}, v{FRE+i}")
        a(f"v_xor_b32 v{FIC+i}, v{t}, v{FIM+i}")
    dstamp(9, False)
    c1("L_a")
    a("s_waitcnt lgkmcnt(0)")
    a("s_barrier")
    stamp(7)
    for h in range(2):
        a(f"ds_read_b128 {V(16+4*h,4)}, v62 offset:{h*1024}")

    def c2(rho, h):
        k = 2 * rho + h
        return [f"{MF} {V(D2+8*k,4)}, {V(16+4*h,4)}, {V(FRC if rho else FRE,4)}, 0",
                f"{MF} {V(D2+8*k+4,4)}, {V(16+4*h,4)}, {V(FIC if rho else FIM,4)}, 0"]

    def tw(rho, h):
        k = 2 * rho + h
        return cap(twpk, D2 + 8 * k, TW + 8 * k, TW + 8 * k + 4, GF + 4 * k)

    def c3(rho, h):
        r = []
        for tau in range(2):
            acc = V(D3 + 8 * rho + 4 * tau, 4)
            cin = acc if h else V(XG + 8 * rho + 4 * tau, 4)
            r.append(f"{MF} {acc}, {V(GF+4*(2*rho+h),4)}, {V(B3+8*h+4*tau,4)}, {cin}")
        return r

    def outcv(rho):
        for k in range(4):
            a(f"v_cvt_pk_bf16_f32 v{8+4*rho+k}, v{D3+8*rho+2*k}, v{D3+8*rho+2*k+1}")
        for k in range(2):
            a(f"v_permlane16_swap_b32 v{8+4*rho+k}, v{8+4*rho+2+k}")

    def outst(rho):
        l = a.L("sk")
        a(f"s_cmp_eq_u32 s{ROWA+rho}, s{SEL}")
        a(f"s_cbranch_scc1 {l}")
        if rho:
            a(f"s_and_b32 s{T0}, s{PRM}, 127")
            a(f"s_cbranch_scc0 {l}")
        a(f"buffer_store_dwordx4 {V(8+4*rho,4)}, v4, {R4(R_OUT)}, s{12+rho} offen {['', 'sc1', 'nt', 'sc1 nt', 'sc0 sc1'][o.osc if o.osc < 10 else (1 if rho else 0)]}")
        a.label(l)

    def tw2(k):
        r = cap(twpk, D2 + 8 * k, TW + 8 * k, TW + 8 * k + 4, GF + 4 * k, t if k % 2 == 0 else 24)
        return r[:8], r[8:]

    def mix(mf, cv):
        cv = list(cv)
        for m in mf:
            a(m)
            for l in cv[:2]:
                a(l)
            cv = cv[2:]
        for l in cv:
            a(l)
    lg(1)
    for l in c2(0, 0):
        a(l)
    lg(0)
    for l in c2(0, 1):
        a(l)
    for k, mf in enumerate((c2(1, 0), c2(1, 1), c3(0, 0), c3(0, 1))):
        pk, cv = tw2(k)
        for l in pk:
            a(l)
        mix(mf, cv)
    for l in c3(1, 0):
        a(l)
    mix(c3(1, 1), cap(outcv, 0))
    outst(0)
    outcv(1)
    outst(1)
    stamp(8)
    fini(12)

    a.label("L_ack128")
    a("s_mov_b64 exec, 1")
    a(f"v_mov_b32 v{t}, {WS_ACK:#x}")
    a(f"v_mov_b32 v{t+1}, s{TAG}")
    a(f"buffer_store_dword v{t+1}, v{t}, {R4(R_WS)}, 0 offen sc1")
    a("s_mov_b64 exec, -1")
    a("s_branch L_nos2")

    a.label("L_low")
    a(f"s_lshl_b32 s{T0}, s{XC}, 3")
    a(f"s_mul_i32 s{T2}, s{XC}, 6")
    a(f"s_add_u32 s{T2}, s{T2}, 8")
    a(f"s_cmp_lt_u32 s{XC}, 4")
    a(f"s_cselect_b32 s{T0}, s{T0}, s{T2}")
    a(f"s_cselect_b32 s{T1}, 8, 6")
    a(f"s_and_b32 s{T2}, s{KK}, 7")
    a(f"s_add_u32 s{PRM}, s{T0}, s{T2}")
    a(f"s_cmp_ge_u32 s{T2}, s{T1}")
    a("s_cbranch_scc1 L_misc")
    a(f"s_cmp_lt_u32 s{KK}, 8")
    a("s_cbranch_scc1 L_f")

    a("v_lshrrev_b32 v4, 1, v0")
    a("v_and_b32 v5, 1, v0")
    a("v_lshlrev_b32 v5, 6, v5")
    a(f"s_lshl_b32 s{T1}, s3, 5")
    a(f"v_add_u32 v4, s{T1}, v4")
    a("v_lshl_add_u32 v6, v4, 7, v5")
    a("v_mul_u32_u24 v4, 3584, v4")
    a("v_add_u32 v4, v4, v5")
    a(f"s_lshr_b32 s{T0}, s{PRM}, 1")
    a(f"s_lshl_b32 s{T0}, s{T0}, 7")
    a(f"s_bitcmp1_b32 s{PRM}, 0")
    a(f"s_cselect_b32 s{T1}, {256*3584}, 0")
    a(f"s_add_u32 s{T1}, s{T1}, s{T0}")
    a("s_waitcnt lgkmcnt(0)")
    a.srd(R_B, 20, 512 * 3584)
    if o.hnat == 1:
        mtouch([(20, 0), (18, 0)])
        a("s_waitcnt vmcnt(0)")
    elif o.hnat:
        for k in range(o.hnat - 1):
            a(f"s_load_dword s{TAG}, s[{18 + 2*(k&1)}:{19 + 2*(k&1)}], 0")
            a("s_waitcnt lgkmcnt(0)")
    if o.hdelay:
        a(f"s_sleep {o.hdelay}")
    a(f"buffer_load_dword v8, v4, {R4(R_B)}, s{T1} offen")
    a.srd(R_C, 22, 1792 * 1024)
    a(f"s_lshl_b32 s{T2}, s{PRM}, 15")
    if o.hw:
        a("s_waitcnt vmcnt(0)")
    a("s_barrier")
    a(f"buffer_load_dword v10, v6, {R4(R_C)}, s{T2} offen")
    a("s_endpgm")

    a.label("L_misc")
    a(f"s_cmp_eq_u32 s{KK}, 7")
    a("s_cbranch_scc1 L_fin")
    a(f"s_cmp_eq_u32 s{KK}, 14")
    a("s_cbranch_scc1 L_fin")
    a(f"s_cmp_lg_u32 s2, {6*8+4}")
    a("s_cbranch_scc1 L_end")
    a(f"s_mov_b32 s{PRM}, 128")
    a(f"s_mov_b32 s{SLOT}, 0")
    a(f"s_mov_b32 s{KK}, 15")
    a("s_branch L_a")

    a.label("L_f")
    WGF, WDF, XF, DG, DD = 16, 48, 64, 80, 88
    a(f"s_lshr_b32 s{REP}, s{PRM}, 1")
    a(f"s_xor_b32 s{WSEL}, s3, {o.rot}")
    a("v_lshrrev_b32 v8, 3, v0")
    a("v_and_b32 v9, 2, v8")
    a("v_and_b32 v10, 7, v0")
    a("v_xor_b32 v9, v9, v10")
    a("v_lshlrev_b32 v9, 4, v9")
    a("v_lshl_add_u32 v5, v8, 10, v9")
    a("v_xor_b32 v6, 64, v5")
    a(f"s_lshl_b32 s13, s{PRM}, 15")
    a(f"s_lshl_b32 s{T1}, s3, 7")
    a(f"s_add_u32 s13, s13, s{T1}")
    a(f"s_lshl_b32 s6, s3, 12")
    a(f"s_add_u32 s6, s6, {LF_WD}")
    a("v_lshrrev_b32 v118, 1, v0")
    a(f"s_lshl_b32 s{T1}, s3, 5")
    a(f"v_add_u32 v118, s{T1}, v118")
    a("v_mul_u32_u24 v118, 3584, v118")
    a("v_and_b32 v119, 1, v0")
    a("v_lshl_add_u32 v118, v119, 6, v118")
    a(f"s_lshl_b32 s7, s{REP}, 7")
    a(f"s_bitcmp1_b32 s{PRM}, 0")
    a(f"s_cselect_b32 s{T1}, {(4 - o.apf) * 64 * 3584}, 0")
    a(f"s_add_u32 s7, s7, s{T1}")
    srds()
    a.srd(R_C, 22, 1792 * 1024)
    if o.fnat == 2:
        mtouch([(22, 0), (18, 0), (20, 0), (4, 0), (30, 0x3000)])
        a("s_waitcnt vmcnt(0)")
    if o.fnat:
        tag_ready()
    if o.fdelay:
        a(f"s_sleep {o.fdelay}")
    a.srd(R_B, 18, 512 * 3584)
    a(f"s_cmp_ge_u32 s3, {2 * (4 - o.apf)}")
    a("s_cbranch_scc1 L_fg")
    a(f"buffer_load_dword v119, v118, {R4(R_B)}, s7 offen")
    a.label("L_fg")

    def gu_dma(poll=0):
        for n in range(8):
            if o.fpb and n == o.fpp:
                a("s_barrier")
            if poll and n == poll:
                a(f"buffer_load_dwordx4 {V(PB,4)}, v{KA}, {R4(R_WS)}, s15 offen sc1")
            a(f"s_add_u32 m0, s14, {n*1024}")
            a(f"buffer_load_dwordx4 v4, {R4(R_A)}, s12 offen lds")
            if n < 7:
                a(f"s_add_u32 s12, s12, {16*3584}")
        if o.fpb and o.fpp == 8:
            a("s_barrier")
        if poll == 8 and o.fpl:
            a(f"s_waitcnt vmcnt({8 - o.fpl})")
        if poll == 8:
            a(f"buffer_load_dwordx4 {V(PB,4)}, v{KA}, {R4(R_WS)}, s15 offen sc1")

    def wd_dma():
        for n in range(4):
            a(f"s_add_u32 m0, s6, {n*1024}")
            a(f"buffer_load_dwordx4 v{5+(n&1)}, {R4(R_C)}, s13 offen lds")
            if n < 3:
                a(f"s_add_u32 s13, s13, 8192")

    def wdtr():
        for u in range(4):
            for hh in range(2):
                a(f"ds_read_b64_tr_b16 {V(WDF+4*u+2*hh,2)}, v{112+u} offset:{hh*512}")

    def trs(extra):
        for sg in range(4):
            a(f"s_waitcnt vmcnt({(0 if o.trm & 2 else 6 - 2*sg) + extra})")
            for tt in range(2):
                for hh in range(2):
                    a(f"ds_read_b64_tr_b16 {V(WGF+8*sg+4*tt+2*hh,2)}, v{12 if tt else 7} offset:{sg*2048+hh*256}")

    a(f"s_cmp_lt_u32 s{WSEL}, 4")
    a(f"s_cselect_b32 s{R_A}, s18, s20")
    a(f"s_cselect_b32 s{R_A+1}, s19, s21")
    a(f"s_mov_b32 s{R_A+2}, {512*3584:#x}")
    a(f"s_mov_b32 s{R_A+3}, 0x20000")
    a("v_lshrrev_b32 v8, 2, v0")
    a("v_mul_u32_u24 v4, 3584, v8")
    a("v_lshrrev_b32 v8, 2, v8")
    a("v_and_b32 v8, 2, v8")
    a("v_and_b32 v9, 3, v0")
    a("v_xor_b32 v8, v8, v9")
    a("v_lshl_add_u32 v4, v8, 4, v4")
    a(f"s_and_b32 s{T0}, s{WSEL}, 3")
    a(f"s_mul_i32 s12, s{T0}, {128*3584}")
    a(f"s_lshl_b32 s{T1}, s{PRM}, 6")
    a(f"s_add_u32 s12, s12, s{T1}")
    a(f"s_lshl_b32 s14, s3, 13")
    ND = 0
    a(f"v_lshrrev_b32 v8, 2, v{VN}")
    a(f"v_lshl_add_u32 v9, v{VQ}, 3, v8")
    a("v_and_b32 v10, 3, v0")
    a("v_lshlrev_b32 v10, 3, v10")
    a(f"v_and_b32 v11, 1, v{VQ}")
    a("v_lshl_add_u32 v7, v9, 6, v10")
    a("v_lshl_add_u32 v7, v11, 5, v7")
    a("v_add_u32 v7, s14, v7")
    a("v_xor_b32 v12, 32, v7")
    a("v_lshrrev_b32 v8, 1, v8")
    a("v_lshl_add_u32 v8, v11, 1, v8")
    a("v_lshl_add_u32 v112, v9, 7, v10")
    a("v_lshl_add_u32 v112, v8, 5, v112")
    a("v_add_u32 v112, s6, v112")
    for u in range(1, 4):
        a(f"v_xor_b32 v{112+u}, {32*u}, v112")
    a(f"s_and_b32 s{T0}, s{WSEL}, 3")
    a(f"s_lshl_b32 s{T0}, s{T0}, 8")
    a(f"s_add_u32 s{T0}, s{T0}, {LF_X}")
    a(f"v_lshlrev_b32 v14, 4, v{VQ}")
    a(f"v_add_u32 v15, s{T0}, v14")
    a(f"s_lshl_b32 s{T0}, s{WSEL}, 7")
    a(f"s_add_u32 s{T0}, s{T0}, {LF_E}")
    a(f"v_add_u32 v107, s{T0}, v14")
    a(f"v_lshl_add_u32 v111, v{VQ}, 5, v10")
    a(f"v_add_u32 v111, {LF_E}, v111")
    a(f"s_mul_i32 s8, s3, {56*128}")
    a(f"s_lshl_b32 s{T1}, s{PRM}, 7")
    a(f"s_add_u32 s8, s8, s{T1}")
    a(f"s_add_u32 s8, s8, {WS_PART:#x}")
    keys_addr(PB)
    if not o.fnat:
        tag_ready()
    tagv(TGV)
    a("v_lshlrev_b32 v118, 1, v0")
    a("v_and_b32 v117, 2, v0")
    a("v_cmp_eq_u32 vcc, 0, v117")
    a(f"v_cndmask_b32 v117, v{TGV+1}, v{TGV}, vcc")

    def kcheck():
        a(f"v_xor_b32 v{PB+1}, s{TAG}, v{PB+1}")
        a(f"v_bitop3_b32 v{PB+1}, v{PB+3}, s{TAG}, v{PB+1} bitop3:0xbe")
        a(f"v_cmp_ne_u32 vcc, 0, v{PB+1}")
        a(f"v_max_u32 v{PB}, v{PB}, v{PB+2}")

    def xsel():
        a(f"s_and_b32 s{SEL}, s{SEL}, 2047")
        a(f"s_lshl_b32 s{T0}, s{SEL}, 10")
        a(f"s_mov_b32 m0, {LF_X}")
        a(f"buffer_load_dwordx4 v{KA}, {R4(R_X)}, s{T0} offen lds")
    a("s_waitcnt vmcnt(0)")
    a.label("L_fd1")
    a("s_barrier")
    stamp(7)
    a(f"s_cmp_lg_u32 s3, {o.fpw}")
    a("s_cbranch_scc1 L_f1")
    if o.kmode:
        gu_dma()
        a("s_barrier")
        wd_dma()
        trs(4)
        if o.kmode == 2:
            for r in range(4):
                a(f"v_mov_b32 v{PB+r}, 0")
            a(f"buffer_atomic_or_x2 {V(PB,2)}, v{PB+6}, {R4(R_WS)}, s15 offen sc0 sc1")
            a(f"buffer_atomic_or_x2 {V(PB+2,2)}, v{PB+6}, {R4(R_WS)}, s15 offen offset:512 sc0 sc1")
            a("s_waitcnt vmcnt(0)")
            a(f"v_cmp_eq_u32 vcc, s{TAG}, v{PB+1}")
            a(f"v_cndmask_b32 v{PB}, 0, v{PB}, vcc")
            a(f"v_cmp_eq_u32 s[{T2}:{T3}], s{TAG}, v{PB+3}")
            a(f"v_cndmask_b32 v{PB+2}, 0, v{PB+2}, s[{T2}:{T3}]")
            a(f"s_and_b64 s[{R_B}:{R_B+1}], vcc, s[{T2}:{T3}]")
            a(f"v_max_u32 v{PB}, v{PB}, v{PB+2}")
            keys_max(PB)
            a(f"s_mov_b32 s{RHO}, s{SEL}")
            xsel()
            a(f"s_cmp_eq_u64 s[{R_B}:{R_B+1}], -1")
            a("s_cbranch_scc1 L_f1c")
        keys_pipe(PB, o.kmode == 3, 136)
        stamp(3)
        if o.kmode == 2:
            a(f"s_cmp_eq_u32 s{SEL}, s{RHO}")
            a("s_cbranch_scc1 L_f2")
        xsel()
        a.label("L_f1c")
        a("s_waitcnt vmcnt(0)")
        a("s_branch L_f2")
    else:
        gu_dma(8)
        if o.wdp == 1:
            a("s_barrier")
        if o.wde:
            wd_dma()
            trs(8)
            a("s_waitcnt vmcnt(4)")
        else:
            a("s_waitcnt vmcnt(0)")
        kcheck()
        a("s_cbranch_vccz L_f1a")
        keys_wait(PB)
        a("s_branch L_f1b")
        a.label("L_f1a")
        keys_max(PB)
        a.label("L_f1b")
        stamp(3)
        xsel()
        if o.wde:
            a("s_waitcnt vmcnt(1)")
            wdtr()
            a("s_waitcnt vmcnt(0)")
        else:
            if o.wdp == 1:
                wd_dma()
            trs(8)
            a(f"s_waitcnt vmcnt({4 if o.wdp == 1 else 0})")
        a("s_branch L_f2")
    a.label("L_f1")
    gu_dma()
    if o.wdp == 1:
        a("s_barrier")
        wd_dma()
    trs(4 if o.wdp == 1 else 0)
    if o.wde:
        a.label("L_f1w")
        a("s_waitcnt vmcnt(0)")
        wdtr()
    a.label("L_f2")
    stamp(2)
    a("s_waitcnt lgkmcnt(0)")
    stamp(4)
    a("s_barrier")
    stamp(5)
    for sg in range(4):
        a(f"ds_read_b128 {V(XF+4*sg,4)}, v15 offset:{sg*64}")

    def frdy():
        l = a.L("fr")
        a("s_cmp_lg_u32 s3, 7")
        a(f"s_cbranch_scc1 {l}")
        a("s_mov_b64 exec, 0xff")
        a(f"buffer_store_dword v123, v122, {R4(R_WS)}, s7 offen sc1")
        a("s_mov_b64 exec, -1")
        a.label(l)
    if o.wdp == 0:
        wd_dma()
    for sg in range(4):
        lg(3 - sg)
        for tt in range(2):
            a(f"{MF} {V(DG+4*tt,4)}, {V(WGF+8*sg+4*tt,4)}, {V(XF+4*sg,4)}, {V(DG+4*tt,4) if sg else 0}")
    a("s_mov_b32 exec_lo, 0x10001")
    a("s_mov_b32 exec_hi, 0x10001")
    for tt in range(2):
        a(f"ds_write_b128 v107, {V(DG+4*tt,4)} offset:{tt*64}")
    a("s_mov_b64 exec, -1")
    if o.frdy == 3:
        frdy()
    a("s_waitcnt lgkmcnt(0)")
    a("s_barrier")
    for k in range(8):
        a(f"ds_read_b64 {V(XF+2*k,2)}, v111 offset:{128*k}")
    if not o.wde:
        a("s_waitcnt vmcnt(0)")
        wdtr()
    for m in range(2):
        lg((4 if o.wde else 12) - 4 * m)
        b = XF + 8 * m
        a(f"v_pk_add_f32 {V(b,2)}, {V(b,2)}, {V(b+2,2)}")
        a(f"v_pk_add_f32 {V(b+4,2)}, {V(b+4,2)}, {V(b+6,2)}")
        a(f"v_pk_add_f32 {V(b,2)}, {V(b,2)}, {V(b+4,2)}")
        if m == 0:
            weave(cap(sigmoid, XF + 2, XF), cap(sigmoid, XF + 3, XF + 1), 1)
            a(f"v_pk_mul_f32 {V(XF,2)}, {V(XF,2)}, {V(XF+2,2)}")
    a(f"v_pk_mul_f32 {V(XF,2)}, {V(XF,2)}, {V(XF+8,2)}")
    a(f"v_cvt_pk_bf16_f32 v{XF}, v{XF}, v{XF+1}")
    for k in range(4):
        a(f"v_mov_b32_dpp v{XF+8+k}, v{XF} quad_perm:[{k},{k},{k},{k}] row_mask:0xf bank_mask:0xf")
    if o.plin:
        for u in range(4):
            if not o.wde:
                lg(6 - 2 * u)
            a(f"{MF} {V(DD+4*u,4)}, {V(XF+8,4)}, {V(WDF+4*u,4)}, 0")
        a("s_mov_b32 exec_lo, 0xffff0000")
        a("s_mov_b32 exec_hi, 0")
        a(f"v_mov_b32 v{DD}, v{DD+4}")
        a("s_mov_b32 exec_lo, 0")
        a("s_mov_b32 exec_hi, 0xffff")
        a(f"v_mov_b32 v{DD}, v{DD+8}")
        a("s_mov_b32 exec_hi, 0xffff0000")
        a(f"v_mov_b32 v{DD}, v{DD+12}")
        a("s_mov_b64 exec, -1")
        a(f"v_mov_b32_dpp v{DD+1}, v{DD} quad_perm:[1,1,3,3] row_mask:0xf bank_mask:0xf")
        a(f"v_cvt_pk_bf16_f32 v120, v{DD}, v{DD+1}")
        a("s_mov_b32 exec_lo, 0x55555555")
        a("s_mov_b32 exec_hi, 0x55555555")
        a(f"v_bitop3_b32 v120, v{TGV+2}, v117, v120 bitop3:0xca")
        a(f"buffer_store_dword v120, v118, {R4(R_WS)}, s8 offen sc1")
        a("s_mov_b64 exec, -1")
        stamp(8)
        fini(9)

    GW = 28
    a.label("L_fin")
    rowoff()
    a(f"s_add_u32 s{REP}, s{XC}, 24")
    a(f"s_lshr_b32 s{FC}, s{KK}, 1")
    a(f"s_and_b32 s{FC}, s{FC}, 4")
    a(f"s_add_u32 s{FC}, s{FC}, s{XC}")
    a(f"s_sub_u32 s{FC}, s{FC}, 4")
    srds()
    a.srd(R_B, 24, 1024)
    a(f"buffer_load_dwordx4 {V(GW,4)}, v4, {R4(R_B)}, 0 offen")
    dma_blocks((3, (0,)))
    a(f"s_and_b32 s{T3}, s3, 1")
    a(f"s_add_u32 s{T3}, s{T3}, 8")
    dma_blocks((T3, (0,)))
    a.srd(R_OUT, 26, 2 << 20)
    mtouch([(4, 0), (26, 0), (30, 0x3000), (30, WS_P + 0x3000)])
    p2addr()
    keys_addr(PB)
    a(f"s_mul_i32 s7, s{FC}, {56*128}")
    a(f"s_lshl_b32 s{T1}, s3, 10")
    a(f"s_add_u32 s7, s7, s{T1}")
    a(f"s_add_u32 s7, s7, {WS_PART - 1024:#x}")
    a(f"v_and_b32 v108, 1, v{VQ}")
    a(f"v_lshrrev_b32 v111, 1, v{VQ}")
    a("v_lshl_add_u32 v108, v108, 1, v111")
    a(f"v_and_b32 v107, 7, v{VN}")
    if o.pat:
        a(f"v_lshl_add_u32 v108, v{VN}, 2, v108")
    else:
        a(f"v_lshl_add_u32 v108, v107, 3, v108")
    a(f"s_lshl_b32 s{T0}, s3, 8")
    a(f"s_add_u32 s{T0}, s{T0}, {L_Y - 256}")
    a(f"v_lshl_add_u32 v108, v108, 2, s{T0}")
    a(f"v_and_b32 v111, 3, v{VN}")
    a(f"v_lshlrev_b32 v111, 6, v111")
    a(f"v_lshl_add_u32 v111, v{VQ}, 4, v111")
    a(f"v_mov_b32 v109, {L_SEL}")
    tag_ready()
    a("s_cmp_lg_u32 s3, 0")
    a("s_cbranch_scc1 L_fin0")
    a(f"s_cmp_eq_u32 s{FC}, 0")
    a("s_cbranch_scc1 L_fin0")
    a(f"s_lshl_b32 s{T0}, s{FC}, 7")
    a(f"v_mov_b32 v{t}, {WS_ACK:#x}")
    a(f"v_mov_b32 v{t+1}, s{TAG}")
    a("s_mov_b64 exec, 1")
    a(f"buffer_store_dword v{t+1}, v{t}, {R4(R_WS)}, s{T0} offen sc1")
    a("s_mov_b64 exec, -1")
    a.label("L_fin0")
    tagv(TGV)
    a("s_waitcnt vmcnt(0)")
    a("s_barrier")
    a(f"s_lshr_b32 s{T0}, s{FC}, 2")
    a(f"s_lshl_b32 s{T0}, s{T0}, 10")
    a(f"v_add_u32 v110, s{T0}, v{KA}")
    a(f"ds_read_b128 {V(FRE,4)}, v{KA} offset:{L_TAB}")
    a(f"ds_read_b128 {V(FIM,4)}, v{KA} offset:{L_TAB+1024}")
    for k in range(4):
        a(f"ds_read_b128 {V(TW+4*k,4)}, v{KA} offset:{L_TAB+2048+1024*k}")
    for h in range(2):
        a(f"ds_read_b128 {V(B3+4*h,4)}, v110 offset:{L_TAB+6144+2048*h}")
    stamp(2)
    a("s_cmp_lg_u32 s3, 0")
    a("s_cbranch_scc1 L_fin1a")
    if o.fks:
        a(f"s_sleep {o.fks}")
    if o.fkl == 2:
        l = a.L("fk")
        a.label(l)
        for r in range(4):
            a(f"v_mov_b32 v{PB+r}, 0")
        a(f"buffer_atomic_or_x2 {V(PB,2)}, v{PB+6}, {R4(R_WS)}, s15 offen sc0 sc1")
        a(f"buffer_atomic_or_x2 {V(PB+2,2)}, v{PB+6}, {R4(R_WS)}, s15 offen offset:512 sc0 sc1")
        a("s_waitcnt vmcnt(0)")
        kcheck()
        retry(l, o.fsl)
        keys_max(PB)
    else:
        keys_pipe(PB, o.fkl)
    a(f"v_mov_b32 v110, s{SEL}")
    a("ds_write_b32 v109, v110")
    a(f"s_and_b32 s{T0}, s{SEL}, 2047")
    a(f"s_lshl_b32 s12, s{T0}, 10")
    a(f"buffer_load_dwordx4 {V(XR,4)}, v4, {R4(R_X)}, s12 offen")
    a("s_branch L_fin1")
    a.label("L_fin1a")
    a(f"s_lshl3_add_u32 s{T0}, s{FC}, s3")
    a(f"s_cmp_lg_u32 s{T0}, 2")
    a("s_cbranch_scc1 L_fin1")
    a(f"v_lshlrev_b32 v{PB}, 7, v0")
    a("s_mov_b64 exec, 0xff")
    a(f"s_movk_i32 s{T0}, {WS_ACK:#x}")
    a.label("L_ack")
    a(f"buffer_load_dword v{PB+1}, v{PB}, {R4(R_WS)}, s{T0} offen sc1")
    a("s_waitcnt vmcnt(0)")
    a(f"v_cmp_ne_u32 vcc, s{TAG}, v{PB+1}")
    retry("L_ack")
    a("s_mov_b64 exec, -1")
    a.label("L_fin1")
    a("s_waitcnt lgkmcnt(0)")
    a("s_barrier")
    stamp(3)
    a("ds_read_b32 v110, v109")
    a("s_waitcnt lgkmcnt(0)")
    a(f"v_readfirstlane_b32 s{RS}, v110")
    a(f"s_and_b32 s{SEL}, s{RS}, 2047")
    a(f"s_and_b32 s{T0}, s{SEL}, 255")
    a(f"s_and_b32 s{T1}, s{SEL}, 15")
    a(f"s_and_b32 s{T2}, s{SEL}, 7")
    a(f"s_cselect_b32 s{T0}, s{T1}, s{T0}")
    a(f"s_cselect_b32 s{T1}, 8, 128")
    a(f"s_cmp_gt_u32 s{T0}, s{T1}")
    a(f"s_cselect_b32 s{RHO}, 0x80000000, 0")
    a(f"s_sub_u32 s{T1}, 2048, s{SEL}")
    a(f"s_cmp_lg_u32 s{RHO}, 0")
    a(f"s_cselect_b32 s{T0}, s{T1}, s{SEL}")
    a(f"s_and_b32 s{PRM}, s{T0}, 255")
    a(f"s_lshr_b32 s{WSEL}, s{T0}, 8")
    a(f"s_lshr_b32 s{T0}, s{PRM}, 4")
    a(f"s_and_b32 s{T1}, s{PRM}, 15")
    a(f"s_lshl4_add_u32 s{SLOT}, s{T1}, s{T0}")
    a(f"s_add_u32 s{T2}, s{T0}, s{T1}")
    a(f"s_cmp_eq_u32 s{T1}, 8")
    a(f"s_cselect_b32 s{SLOT}, s{T2}, s{SLOT}")
    a(f"s_cmp_eq_u32 s{PRM}, 128")
    a(f"s_cselect_b32 s{SLOT}, 0, s{SLOT}")
    a(f"s_lshl_b32 s14, s{SLOT}, 14")
    a(f"s_lshl_b32 s{T0}, s3, 8")
    a(f"s_add_u32 s14, s14, s{T0}")
    a(f"s_add_u32 s14, s14, {WS_P:#x}")
    a1consts("L_fin")
    a("s_cmp_lg_u32 s3, 0")
    a("s_cbranch_scc1 L_fin3")
    p2read_addr(WSEL)
    for i in range(4):
        a(f"v_xor_b32 v{FRE+i}, s{RHO}, v{FRE+i}")
        a(f"v_xor_b32 v{FIM+i}, s{RHO}, v{FIM+i}")
    a(f"s_ashr_i32 s{T0}, s{RS}, 31")
    a(f"s_orn2_b32 s{T0}, 0x80000000, s{T0}")
    a(f"s_xor_b32 s{RS}, s{RS}, s{T0}")
    a("s_waitcnt vmcnt(0)")
    for k in range(4):
        a(f"v_dot2_f32_bf16 v32, v{XR+k}, v{GW+k}, {'v32' if k else 0}")
    rowsum(32)
    a("v_mov_b32 v33, v32")
    a("v_permlane32_swap_b32 v32, v33")
    a("v_add_f32 v32, v32, v33")
    a("v_mov_b32 v33, v32")
    a("v_permlane16_swap_b32 v32, v33")
    a("v_add_f32 v32, v32, v33")
    a(f"v_mov_b32 v33, s{RS}")
    weave(cap(rbf, 32) + cap(sigmoid, 34, 32) + cap(rbf, 34), cap(rbf, 33) + cap(sigmoid, 35, 33) + cap(rbf, 35), 1)
    for k in range(2):
        a(f"v_permlane16_swap_b32 v{XR+k}, v{XR+2+k}")
    a(f"s_bitcmp1_b32 s{FC}, 2")
    a("s_cbranch_scc0 L_fint")
    a(f"v_mov_b32 v{XR}, v{XR+2}")
    a(f"v_mov_b32 v{XR+1}, v{XR+3}")
    a.label("L_fint")
    a(f"v_sub_f32 v36, 1.0, v34")
    rbf(36)
    for k in range(2):
        a(f"v_lshlrev_b32 v{XG+2*k}, 16, v{XR+k}")
        a(f"v_and_b32 v{XG+2*k+1}, 0xffff0000, v{XR+k}")
        a(f"v_pk_mul_f32 {V(XG+2*k,2)}, {V(XG+2*k,2)}, v[36:37] op_sel_hi:[1,0]")
    a(f"v_mul_f32 v38, v35, v36")
    for k in range(8):
        a(f"v_pk_mul_f32 {V(TW+2*k,2)}, {V(TW+2*k,2)}, v[34:35] op_sel_hi:[1,0]")
    a.label("L_fin3")
    if o.finb:
        a("s_barrier")
    stamp(5)
    p_issue()
    c1("L_fin")
    a("s_waitcnt lgkmcnt(0)")
    a("s_barrier")
    stamp(7)
    a("s_cmp_lg_u32 s3, 0")
    a("s_cbranch_scc1 L_pp0")
    for h in range(2):
        a(f"ds_read_b128 {V(16+4*h,4)}, v62 offset:{h*1024}")
    for h in range(2):
        lg(1 - h)
        a(f"{MF} {V(D2+8*h,4)}, {V(16+4*h,4)}, {V(FRE,4)}, 0")
        a(f"{MF} {V(D2+8*h+4,4)}, {V(16+4*h,4)}, {V(FIM,4)}, 0")
    for h in range(2):
        twpk(D2 + 8 * h, TW + 8 * h, TW + 8 * h + 4, GF + 4 * h)
        a(f"{MF} {V(D3,4)}, {V(GF+4*h,4)}, {V(B3+4*h,4)}, {V(D3 if h else XG,4)}")
    if o.flin:
        a(f"s_and_b32 s{T1}, s{FC}, 3")
        a(f"s_lshl_b32 s{T1}, s{T1}, 2")
        a(f"s_lshl_b32 exec_lo, 0x000f000f, s{T1}")
        a("s_mov_b32 exec_hi, exec_lo")
        a(f"ds_write_b128 v111, {V(D3,4)} offset:{L_Y+7*256}")
        a("s_mov_b64 exec, 0xffff")
        a("s_waitcnt lgkmcnt(0)")
        a(f"ds_read_b128 {V(D3,4)}, v{KA} offset:{L_Y+7*256}")
        a(f"v_mov_b32 v111, v{KA}")
        a(f"v_mov_b32 v4, v246")
        a(f"s_lshl_b32 s12, s{SEL}, 10")
        a(f"s_lshl_b32 s{T1}, s{FC}, 7")
        a(f"s_add_u32 s12, s12, s{T1}")
        a("s_waitcnt lgkmcnt(0)")
    a("s_branch L_fin5")
    a.label("L_pp0")
    if o.frdy:
        a("s_cmp_lg_u32 s3, 1")
        a("s_cbranch_scc1 L_pp1")
        a(f"s_lshl_b32 s{T0}, s{FC}, 8")
        a(f"s_add_u32 s{T0}, s{T0}, {WS_FRDY:#x}")
        a(f"v_lshlrev_b32 v{PB}, 2, v0")
        a("s_mov_b32 exec_hi, 0x00ffffff")
        def issue(j):
            a(f"v_mov_b32 v{PB+1+j}, 0")
            a(f"buffer_atomic_or v{PB+1+j}, v{PB}, {R4(R_WS)}, s{T0} offen sc0 sc1")
        poll_pipe("L_fr", 3, issue, lambda j: a(f"v_cmp_ne_u32 vcc, s{TAG}, v{PB+1+j}"), 1, lambda j: None)
        a("s_mov_b64 exec, -1")
        a.label("L_pp1")
        stamp(4)
        a("s_barrier")
    if o.pat:
        def issue(j):
            if o.pld:
                for k in range(2):
                    a(f"buffer_load_dwordx2 {V(8+4*j+2*k,2)}, v246, {R4(R_WS)}, s7 offen offset:{512*k} sc1")
                return
            for r in range(4):
                a(f"v_mov_b32 v{8+4*j+r}, 0")
            for k in range(2):
                a(f"buffer_atomic_or_x2 {V(8+4*j+2*k,2)}, v246, {R4(R_WS)}, s7 offen offset:{512*k} sc0 sc1")
        def done(j):
            for k in range(4):
                a(f"v_lshlrev_b32 v{32+2*k}, 16, v{8+4*j+k}")
                a(f"v_and_b32 v{33+2*k}, 0xffff0000, v{8+4*j+k}")
        poll_pipe("L_pa", o.pat, issue, lambda j: tagcheck(8 + 4 * j, 4), 2, done)
        a("v_pk_add_f32 v[32:33], v[32:33], v[36:37]")
        a("v_pk_add_f32 v[34:35], v[34:35], v[38:39]")
        fold4(32, 33, 34, 35)
        a("ds_write_b32 v108, v32")
        a("s_waitcnt lgkmcnt(0)")
    else:
        a.label("L_pp")
        a(f"buffer_load_dwordx4 v[8:11], v{KA}, {R4(R_WS)}, s7 offen sc1")
        a("s_waitcnt vmcnt(0)")
        tagcheck(8, 4)
        for k in range(4):
            a(f"v_lshlrev_b32 v{16+2*k}, 16, v{8+k}")
            a(f"v_and_b32 v{17+2*k}, 0xffff0000, v{8+k}")
        retry("L_pp")
        weave(cap(fold4, 16, 17, 18, 19), cap(fold4, 20, 21, 22, 23), 1)
        a("v_add_f32_dpp v16, v16, v16 row_ror:8 row_mask:0xf bank_mask:0xf")
        a("v_add_f32_dpp v20, v20, v20 row_ror:8 row_mask:0xf bank_mask:0xf")
        a("ds_write2_b32 v108, v16, v20 offset0:0 offset1:4")
        a("s_waitcnt lgkmcnt(0)")
    a.label("L_fin5")
    stamp(8)
    a("s_barrier")
    stamp(9)
    a("s_cmp_lg_u32 s3, 0")
    a("s_cbranch_scc1 L_fin7")
    for k in range(7):
        a(f"ds_read_b128 {V(64+4*k,4)}, v111 offset:{L_Y+256*k}")
    a("s_waitcnt lgkmcnt(0)")
    for k in (1, 3, 5):
        for p in range(2):
            a(f"v_pk_add_f32 {V(64+4*k+2*p,2)}, {V(64+4*k+2*p,2)}, {V(68+4*k+2*p,2)}")
    for p in range(2):
        a(f"v_pk_add_f32 {V(64+2*p,2)}, {V(64+2*p,2)}, {V(68+2*p,2)}")
        a(f"v_pk_add_f32 {V(76+2*p,2)}, {V(76+2*p,2)}, {V(84+2*p,2)}")
    for p in range(2):
        a(f"v_pk_add_f32 {V(64+2*p,2)}, {V(64+2*p,2)}, {V(76+2*p,2)}")
    for p in range(2):
        a(f"v_pk_fma_f32 {V(64+2*p,2)}, {V(64+2*p,2)}, v[38:39], {V(D3+2*p,2)} op_sel_hi:[1,0,1]")
    a("v_cvt_pk_bf16_f32 v16, v64, v65")
    a("v_cvt_pk_bf16_f32 v17, v66, v67")
    if not o.flin:
        a(f"s_lshl_b32 exec_lo, 0x000f000f, s{T1}")
        a("s_mov_b32 exec_hi, exec_lo")
    a(f"buffer_store_dwordx2 v[16:17], v4, {R4(R_OUT)}, s12 offen sc1")
    a(f"s_cmp_lg_u32 s{FC}, 0")
    a("s_cbranch_scc1 L_fin7")
    a("s_mov_b64 exec, 1")
    a(f"v_mov_b32 v20, {WS_EPOCH}")
    a(f"v_mov_b32 v21, s{TAG}")
    if o.noep == 0:
        a(f"buffer_store_dword v21, v20, {R4(R_WS)}, 0 offen sc1")
    elif o.noep == 2:
        a(f"buffer_store_dword v21, v20, {R4(R_WS)}, 0 offen")
    elif o.noep == 3:
        a(f"buffer_atomic_swap v21, v20, {R4(R_WS)}, 0 offen sc1")
    a.label("L_fin7")
    fini(10)
    a.label("L_end")
    a("s_endpgm")


def emit_tables(a):
    T = tables()
    a.raw(".p2align 7")
    a.raw(".type L_tab,@object")
    a.label("L_tab")
    for k in range(0, len(T), 8):
        a.raw(".long " + ", ".join("0x%x" % v for v in T[k:k + 8]))
    a.label("L_tabend")
    a.raw(".size L_tab, L_tabend - L_tab")


if __name__ == "__main__":
    ap = argparse.ArgumentParser()
    ap.add_argument("-o", required=True)
    for k, v in dict(stamps=0, only=0, tlb=1, cpf=1, kr=32, ksleep=1, dbg=0, kp=3, psleep=4, frdy=0, hdelay=0, fdelay=0, kload=1, kdma=2,
                     apf=0, nt=0, base=0, dw=0, hw=0, wdp=1, kb1=1, rpre=1, hnat=0, finb=0, ppre=2, fnat=1, fpw=2, fpp=8, fpb=0, spec=0, rot=7, wde=0, kmode=0, fks=0, fkl=0, fsl=8, flin=1, plin=1, warm=0, noep=0, fpl=8, safe=3, trm=0, osc=1, pld=0, sw=1, prio=0, kat=0, kack=1, nob0=0, pat=3).items():
        ap.add_argument("--" + k, type=int, default=v)
    o = ap.parse_args()
    a = Asm()
    gen(a, o)
    a.lines = haz.fix_all(a.lines)
    emit_tables(a)
    finish(a, o.o, 256, 512, LDS_BYTES, 256, sgpr=102)
```
